```python
import torch

def _softmax(x, axis=-1):
    return torch.softmax(x, dim=axis)
def _gelu(x):
    return torch.nn.functional.gelu(x, approximate="tanh")
def _silu(x):
    return torch.nn.functional.silu(x)
def _sigmoid(x):
    return torch.sigmoid(x)
def _layernorm(x, axis=-1, eps=1e-5):
    m = x.mean(dim=axis, keepdim=True)
    v = x.var(dim=axis, keepdim=True, unbiased=False)
    return (x - m) / torch.sqrt(v + eps)
def _scatter_add(tgt, idx, src, axis=0):
    return tgt.clone().index_add_(axis, idx, src)
def _segment_sum(src, seg, n):
    out = torch.zeros((n,) + src.shape[1:], dtype=src.dtype)
    return out.index_add_(0, seg, src)
def _pad(x, pw):
    flat = tuple(v for pair in reversed(pw) for v in pair)
    return torch.nn.functional.pad(x, flat)

kernel_name = 'gated_mix__ssm_conv_s5__ssm_conv_s5__prompt'

def setup_inputs():

    _w = (lambda a: (lambda t: t.to(torch.bfloat16) if t.is_floating_point() else t)(torch.as_tensor(a)))
    def _A_setup():
        B, S, D = 1, 2048, 640
        P = D
        Lambda_re = -0.5 * (lambda _x: torch.exp(torch.as_tensor(_x)))((lambda *s: torch.randn(*s, dtype=torch.bfloat16) * 0.2)(P))
        Lambda_im = (lambda *s: torch.randn(*s, dtype=torch.bfloat16) * 0.4)(P) * 1.0
        B_re = (lambda *s: torch.randn(*s, dtype=torch.bfloat16) * 0.2)(P, D) * (D ** -0.5)
        B_im = (lambda *s: torch.randn(*s, dtype=torch.bfloat16) * 0.2)(P, D) * (D ** -0.5)
        C_re = (lambda *s: torch.randn(*s, dtype=torch.bfloat16) * 0.2)(D, P) * (P ** -0.5)
        C_im = (lambda *s: torch.randn(*s, dtype=torch.bfloat16) * 0.2)(D, P) * (P ** -0.5)
        log_dt = (lambda *s: torch.randn(*s, dtype=torch.bfloat16) * 0.2)(P) * 0.3 - 2.0
        Dskip = (lambda *s: torch.randn(*s, dtype=torch.bfloat16) * 0.05)(D)
        return {
            "x": _w((lambda *s: torch.randn(*s, dtype=torch.bfloat16) * 0.05)(B, S, D)),
            "Lambda_re": _w(Lambda_re),
            "Lambda_im": _w(Lambda_im),
            "B_re": _w(B_re),
            "B_im": _w(B_im),
            "C_re": _w(C_re),
            "C_im": _w(C_im),
            "log_dt": _w(log_dt),
            "Dskip": _w(Dskip),
        }
    _A_in = _A_setup()

    def _B_setup():
        B, S, D = 1, 2048, 640
        P = D
        Lambda_re = -0.5 * (lambda _x: torch.exp(torch.as_tensor(_x)))((lambda *s: torch.randn(*s, dtype=torch.bfloat16) * 0.2)(P))
        Lambda_im = (lambda *s: torch.randn(*s, dtype=torch.bfloat16) * 0.4)(P) * 1.0
        B_re = (lambda *s: torch.randn(*s, dtype=torch.bfloat16) * 0.2)(P, D) * (D ** -0.5)
        B_im = (lambda *s: torch.randn(*s, dtype=torch.bfloat16) * 0.2)(P, D) * (D ** -0.5)
        C_re = (lambda *s: torch.randn(*s, dtype=torch.bfloat16) * 0.2)(D, P) * (P ** -0.5)
        C_im = (lambda *s: torch.randn(*s, dtype=torch.bfloat16) * 0.2)(D, P) * (P ** -0.5)
        log_dt = (lambda *s: torch.randn(*s, dtype=torch.bfloat16) * 0.2)(P) * 0.3 - 2.0
        Dskip = (lambda *s: torch.randn(*s, dtype=torch.bfloat16) * 0.05)(D)
        return {
            "x": _w((lambda *s: torch.randn(*s, dtype=torch.bfloat16) * 0.05)(B, S, D)),
            "Lambda_re": _w(Lambda_re),
            "Lambda_im": _w(Lambda_im),
            "B_re": _w(B_re),
            "B_im": _w(B_im),
            "C_re": _w(C_re),
            "C_im": _w(C_im),
            "log_dt": _w(log_dt),
            "Dskip": _w(Dskip),
        }
    _B_in = _B_setup()

    return {
        "A_x": _A_in["x"],
        "A_Lambda_re": _A_in["Lambda_re"],
        "A_Lambda_im": _A_in["Lambda_im"],
        "A_B_re": _A_in["B_re"],
        "A_B_im": _A_in["B_im"],
        "A_C_re": _A_in["C_re"],
        "A_C_im": _A_in["C_im"],
        "A_log_dt": _A_in["log_dt"],
        "A_Dskip": _A_in["Dskip"],
        "B_x": _B_in["x"],
        "B_Lambda_re": _B_in["Lambda_re"],
        "B_Lambda_im": _B_in["Lambda_im"],
        "B_B_re": _B_in["B_re"],
        "B_B_im": _B_in["B_im"],
        "B_C_re": _B_in["C_re"],
        "B_C_im": _B_in["C_im"],
        "B_log_dt": _B_in["log_dt"],
        "B_Dskip": _B_in["Dskip"],
        "gate_w": _w((lambda *s: torch.randn(*s, dtype=torch.bfloat16) * 0.05)(640) * 16.0),
    }

def reference(A_x, A_Lambda_re, A_Lambda_im, A_B_re, A_B_im, A_C_re, A_C_im, A_log_dt, A_Dskip, B_x, B_Lambda_re, B_Lambda_im, B_B_re, B_B_im, B_C_re, B_C_im, B_log_dt, B_Dskip, gate_w):
    def _A_ref(x, Lambda_re, Lambda_im, B_re, B_im, C_re, C_im, log_dt, Dskip):
        Bsz, L, H = x.shape
        Lam = Lambda_re + 1j * Lambda_im
        Bmat = B_re + 1j * B_im
        Cmat = C_re + 1j * C_im
        dt = torch.exp(log_dt)
        Lam_bar = torch.exp(dt * Lam)
        B_bar = ((Lam_bar - 1.0) / Lam)[:, None] * Bmat
        Bu = torch.einsum("bld,pd->blp", x + 0j, B_bar)
        h = torch.zeros_like(Bu[:, 0, :])
        hs = []
        for t in range(L):
            h = Lam_bar[None, :] * h + Bu[:, t, :]
            hs.append(h)
        hseq = torch.stack(hs, 1)
        y = 2.0 * torch.einsum("blp,dp->bld", hseq, Cmat).real + x * Dskip[None, None, :]
        return y

    def _B_ref(x, Lambda_re, Lambda_im, B_re, B_im, C_re, C_im, log_dt, Dskip):
        Bsz, L, H = x.shape
        Lam = Lambda_re + 1j * Lambda_im
        Bmat = B_re + 1j * B_im
        Cmat = C_re + 1j * C_im
        dt = torch.exp(log_dt)
        Lam_bar = torch.exp(dt * Lam)
        B_bar = ((Lam_bar - 1.0) / Lam)[:, None] * Bmat
        Bu = torch.einsum("bld,pd->blp", x + 0j, B_bar)
        h = torch.zeros_like(Bu[:, 0, :])
        hs = []
        for t in range(L):
            h = Lam_bar[None, :] * h + Bu[:, t, :]
            hs.append(h)
        hseq = torch.stack(hs, 1)
        y = 2.0 * torch.einsum("blp,dp->bld", hseq, Cmat).real + x * Dskip[None, None, :]
        return y

    x = A_x
    g = _sigmoid((x * gate_w).sum(-1, keepdims=True))
    a = _A_ref(x, A_Lambda_re, A_Lambda_im, A_B_re, A_B_im, A_C_re, A_C_im, A_log_dt, A_Dskip)
    b = _B_ref(x, B_Lambda_re, B_Lambda_im, B_B_re, B_B_im, B_C_re, B_C_im, B_log_dt, B_Dskip)
    return g * a + (1 - g) * b
```

```python
import re

REG_RE = re.compile(r"(?<![\w.])(-?)(?:abs\()?([vas])(?:(\d+)|\[(\d+):(\d+)\])")


def regs_of(tok):
    out = set()
    t = tok.strip()
    if t in ("vcc", "vcc_lo", "vcc_hi"):
        return {("s", "vcc")}
    if t in ("exec", "exec_lo", "exec_hi"):
        return {("s", "exec")}
    if t == "m0":
        return {("s", "m0")}
    m = REG_RE.match(t)
    if m:
        f = m.group(2)
        if m.group(3) is not None:
            out.add((f, int(m.group(3))))
        else:
            for i in range(int(m.group(4)), int(m.group(5)) + 1):
                out.add((f, i))
    return out


TRANS = ("v_exp_f32", "v_log_f32", "v_rcp_f32", "v_rsq_f32", "v_sqrt_f32", "v_sin_f32", "v_cos_f32")


class Ins:
    __slots__ = ("text", "op", "kind", "rd", "wr", "srcc", "srcab", "tag", "label", "target", "states",
                 "dpp", "lds_dma", "wide_store", "sgpr_rd_vmem", "passes", "counted", "waits")

    def __init__(self, text, tag=None, counted=True):
        self.text = text
        self.tag = tag
        self.counted = counted
        self.label = None
        self.target = None
        self.rd = set()
        self.wr = set()
        self.srcc = set()
        self.srcab = set()
        self.states = 1
        self.dpp = False
        self.lds_dma = False
        self.wide_store = set()
        self.passes = 0
        self.waits = {}
        t = text.split(";")[0].strip()
        if t.endswith(":"):
            self.label = t[:-1]
            self.kind = "label"
            self.op = ""
            self.states = 0
            return
        if t.startswith(".") or not t:
            self.kind = "dir"
            self.op = ""
            self.states = 0
            return
        parts = t.split(None, 1)
        op = parts[0]
        self.op = op
        rest = parts[1] if len(parts) > 1 else ""
        ops = []
        cur = ""
        depth = 0
        for ch in rest:
            if ch in "[(":
                depth += 1
            if ch in "])":
                depth -= 1
            if ch == "," and depth == 0:
                ops.append(cur.strip())
                cur = ""
            else:
                cur += ch
        if cur.strip():
            ops.append(cur.strip())
        mods = ""
        if ops:
            sp = ops[-1].split(None, 1)
            ops[-1] = sp[0]
            mods = sp[1] if len(sp) > 1 else ""
        R = [regs_of(o) for o in ops]

        def u(lst):
            s = set()
            for x in lst:
                s |= x
            return s

        if op.startswith("v_mfma"):
            self.kind = "mfma"
            self.wr = R[0]
            self.srcab = R[1] | R[2]
            self.srcc = R[3]
            self.rd = self.srcab | self.srcc
            self.passes = 8 if "32x32x16" in op else 4
        elif op.startswith("v_cmp"):
            self.kind = "valu"
            self.wr = R[0]
            self.rd = u(R[1:])
        elif op.startswith("v_permlane"):
            self.kind = "valu"
            self.wr = R[0] | R[1]
            self.rd = R[0] | R[1]
        elif op.startswith("v_"):
            self.kind = "valu"
            self.wr = R[0]
            self.rd = u(R[1:])
            if op.startswith(("v_fmac", "v_dot2c", "v_writelane")) or "_dpp" in op:
                self.rd |= R[0]
            if op.startswith(("v_add_co", "v_sub_co", "v_addc_co", "v_div_scale")):
                self.wr = R[0] | R[1]
                self.rd = u(R[2:])
            if op.startswith("v_cndmask") and len(ops) == 3:
                self.rd |= {("s", "vcc")}
            if "_dpp" in op or "row_" in mods or "quad_perm" in mods:
                self.dpp = True
        elif op.startswith("ds_"):
            self.kind = "ds"
            if op.startswith("ds_read") or "permute" in op or "swizzle" in op:
                self.wr = R[0]
                self.rd = u(R[1:])
            else:
                self.rd = u(R)
        elif op.startswith(("buffer_", "global_")):
            self.kind = "vmem"
            is_lds = re.search(r"\blds\b", mods) is not None
            if "load" in op:
                if is_lds:
                    self.lds_dma = True
                    self.rd = u(R) | {("s", "m0")}
                else:
                    self.wr = R[0]
                    self.rd = u(R[1:])
                    if "d16" in op:
                        self.rd |= R[0]
            elif "store" in op:
                self.rd = u(R)
                data = R[0] if op.startswith("buffer_") else R[1]
                if op.endswith(("x3", "x4")):
                    self.wide_store = data
            elif "atomic" in op:
                self.rd = u(R)
                if "sc0" in mods:
                    self.wr = R[0]
            else:
                self.rd = u(R)
        elif op.startswith(("s_load", "s_memtime", "s_memrealtime", "s_buffer_load")):
            self.kind = "smem"
            self.wr = R[0]
            self.rd = u(R[1:])
        elif op == "s_waitcnt":
            self.kind = "wait"
            for k, n in re.findall(r"(vmcnt|lgkmcnt)\((\d+)\)", rest):
                self.waits[k] = int(n)
        elif op == "s_nop":
            self.kind = "nop"
            self.states = int(ops[0], 0) + 1
        elif op.startswith(("s_branch", "s_cbranch")):
            self.kind = "branch"
            self.target = ops[0]
            if "vcc" in op:
                self.rd = {("s", "vcc")}
        elif op in ("s_barrier", "s_endpgm", "s_sleep", "s_setprio"):
            self.kind = "misc"
        elif op.startswith("s_"):
            self.kind = "salu"
            if op.startswith("s_cmp") or op.startswith("s_bitcmp"):
                self.rd = u(R)
            else:
                self.wr = R[0]
                self.rd = u(R[1:])
                if "saveexec" in op:
                    self.wr |= {("s", "exec")}
                    self.rd |= {("s", "exec")}
                if op.startswith(("s_addk", "s_mulk")):
                    self.rd |= R[0]
        else:
            raise ValueError("unknown instruction: " + text)


def vg(s):
    return {r for r in s if r[0] in "va"}


def sg(s):
    return {r for r in s if r[0] == "s"}


def need(p, c):
    n = 0
    if p.kind == "valu":
        pv = vg(p.wr)
        ps = sg(p.wr)
        if c.kind == "mfma" and pv & c.rd:
            n = max(n, 2)
        if c.kind == "valu":
            if pv & c.rd:
                if c.dpp or c.op.startswith("v_permlane"):
                    n = max(n, 2)
                if c.op.startswith(("v_readlane", "v_readfirstlane")):
                    n = max(n, 1)
                if p.op.startswith(TRANS) and not c.op.startswith(TRANS):
                    n = max(n, 1)
            if p.op.startswith("v_dot2") and (pv & (c.rd | c.wr)):
                if not (c.op == p.op):
                    n = max(n, 3)
            if ps & c.rd:
                n = max(n, 4 if c.op.startswith(("v_readlane", "v_writelane")) else 2)
        if c.kind == "vmem" and ps & c.rd:
            n = max(n, 5)
        if p.op.startswith("v_dot2") and c.kind in ("vmem", "ds", "mfma") and pv & c.rd:
            n = max(n, 3)
    if p.kind == "mfma":
        big = 8 if p.passes == 4 else 12
        if c.kind == "mfma":
            if p.wr & c.srcab:
                n = max(n, big)
            if p.wr & c.srcc and not (p.wr == c.srcc and p.passes == c.passes):
                n = max(n, big - 2)
            if p.wr & c.wr and not (p.wr == c.srcc and p.passes == c.passes):
                n = max(n, big)
        elif c.kind in ("valu", "vmem", "ds"):
            if p.wr & (c.rd | c.wr):
                n = max(n, big)
            if p.srcc & c.wr:
                n = max(n, 3 if p.passes == 4 else 7)
    if p.kind == "vmem" and p.wide_store:
        if p.wide_store & c.wr:
            n = max(n, 2)
    if p.kind == "salu" and ("s", "m0") in p.wr and c.lds_dma:
        n = max(n, 1)
    return n


class Asm:
    def __init__(self):
        self.ins = []

    def __call__(self, text, tag=None, counted=True):
        for line in text.split("\n"):
            if line.strip():
                self.ins.append(Ins(line.strip(), tag, counted))

    def _count_after(self, kind, tag):
        key = "vmcnt" if kind == "vmem" else "lgkmcnt"
        n = 0
        total = 0
        waits = []
        for i in reversed(self.ins):
            if i.kind == "wait" and key in i.waits:
                waits.append((n, i.waits[key]))
            if i.kind == kind:
                if i.tag == tag:
                    for after, cnt in waits:
                        if n - after >= cnt:
                            return None
                    return n
                if i.counted:
                    n += 1
        raise KeyError("no %s op tagged %r" % (kind, tag))

    def wait(self, vm=None, lgkm=None):
        parts = []
        if vm is not None:
            n = vm if isinstance(vm, int) else self._count_after("vmem", vm)
            if n is not None:
                assert n <= 63, n
                parts.append("vmcnt(%d)" % n)
        if lgkm is not None:
            n = lgkm if isinstance(lgkm, int) else self._count_after("ds", lgkm)
            if n is not None:
                parts.append("lgkmcnt(%d)" % min(n, 15))
        if parts:
            self("s_waitcnt " + " ".join(parts))

    def fix_hazards(self, verbose=False):
        total = 0
        while True:
            ins = self.ins
            labels = {x.label: k for k, x in enumerate(ins) if x.label}
            preds = {}
            for k, x in enumerate(ins):
                if x.kind == "branch":
                    preds.setdefault(labels[x.target], []).append(k)
            changed = False
            out = []
            for k, c in enumerate(ins):
                if c.kind in ("valu", "mfma", "vmem", "ds", "salu", "smem"):
                    worst = 0
                    stack = [(k - 1, 0)]
                    seen = set()
                    while stack:
                        j, dist = stack.pop()
                        while j >= 0 and dist < 20:
                            if (j, dist) in seen:
                                break
                            seen.add((j, dist))
                            p = ins[j]
                            if p.label:
                                for b in preds.get(j, ()):
                                    stack.append((b, dist))
                            r = need(p, c)
                            if r > dist:
                                worst = max(worst, r - dist)
                            dist += p.states
                            j -= 1
                    if worst:
                        out.append(Ins("s_nop %d" % (worst - 1)))
                        total += worst
                        changed = True
                        if verbose:
                            print("nop", worst, "before", c.text)
                        out.extend(ins[k:])
                        break
                out.append(c)
            self.ins = out
            if not changed:
                return total

    def check_waits(self):
        vq, lq = [], []
        errs = []
        smem = set()
        for k, x in enumerate(self.ins):
            if x.kind == "wait":
                if "vmcnt" in x.waits:
                    n = x.waits["vmcnt"]
                    vq = vq[len(vq) - n:] if n < len(vq) and n > 0 else ([] if n == 0 else vq)
                if "lgkmcnt" in x.waits:
                    n = x.waits["lgkmcnt"]
                    lq = lq[len(lq) - n:] if n < len(lq) and n > 0 else ([] if n == 0 else lq)
                    if n == 0:
                        smem = set()
                continue
            touched = x.rd | x.wr
            for q in (vq, lq):
                for p in q:
                    if p.wr & touched:
                        errs.append("line %d: %s touches %s of un-waited %s" % (k, x.text, sorted(p.wr & touched)[:2], p.text))
            if smem & touched:
                errs.append("line %d: %s touches un-waited scalar load %s" % (k, x.text, sorted(smem & touched)[:2]))
            if x.kind == "vmem":
                vq.append(x)
                if len(vq) > 63:
                    errs.append("line %d: more than 63 vmem ops outstanding" % k)
            elif x.kind == "ds":
                lq.append(x)
            elif x.kind == "smem" and not x.op.startswith("s_mem"):
                smem |= x.wr
        return errs

    def text(self):
        out = []
        for x in self.ins:
            out.append(x.text if x.label else "    " + x.text)
        return "\n".join(out) + "\n"
```

```python
import sys, os, argparse
sys.path.insert(0, os.path.dirname(os.path.abspath(__file__)))
from asmlib import Asm

NAME = "gated_mix__ssm_conv_s5__ssm_conv_s5__prompt"

WS_EPOCH = 0
WS_FLAG = 4096
WS_CARRY = 135168
WS_H = 524288
WS_PROF = WS_H + 10485760
WS_USED = WS_PROF + 1024 * 128

SLOT = 36864
PIECE = 9216
TOP = 4 * SLOT
TAB = TOP
PART1 = TOP + 10240
PART2 = PART1 + 2560
LDS_BYTES = 163840

sTC, sCG, sRT, sDG, sW, sBW, sTAG, sK = 4, 5, 6, 7, 8, 9, 10, 11
sT0, sT1, sT2, sT3 = 12, 13, 14, 15
SX, SB, SCR, SCI, SWS, SOUT = 16, 20, 24, 28, 32, 36
pL, pB, pDT, pX, pC, pGW, pOUT, pWS, pDA, pDB, pK1, pK2 = 40, 44, 48, 50, 52, 56, 58, 60, 62, 64, 66, 68
STAMP_REGS = list(range(70, 102, 2)) + [40, 42, 44, 46, 48, 52, 54, 66, 68]
sSPIN = 3


def srd(b):
    return "s[%d:%d]" % (b, b + 3)


def sp(b):
    return "s[%d:%d]" % (b, b + 1)


def v2(b):
    return "v[%d:%d]" % (b, b + 1)


def v4(b, f="v"):
    return "%s[%d:%d]" % (f, b, b + 3)


class Gen:
    def __init__(self, cfg):
        self.cfg = cfg
        self.a = Asm()
        self.nstamp = 0
        self.stamp_names = []

    def stamp(self, name):
        if not self.cfg.prof:
            return
        op = "s_memrealtime" if name.startswith("rt") else "s_memtime"
        self.a("%s %s" % (op, sp(STAMP_REGS[self.nstamp])))
        self.stamp_names.append(name)
        self.nstamp += 1

    def cmul(self, d, x, y):
        a = self.a
        a(f"v_pk_mul_f32 {v2(d)}, {v2(x)}, {v2(y)} op_sel_hi:[1,0]")
        a(f"v_pk_fma_f32 {v2(d)}, {v2(x)}, {v2(y)}, {v2(d)} op_sel:[1,1,0] op_sel_hi:[0,1,1] neg_lo:[1,0,0]")

    def cfma1(self, d, x, y, c):
        self.a(f"v_pk_fma_f32 {v2(d)}, {v2(x)}, {v2(y)}, {v2(c)} op_sel_hi:[1,0,1]")

    def cfma2(self, d, x, y):
        self.a(f"v_pk_fma_f32 {v2(d)}, {v2(x)}, {v2(y)}, {v2(d)} op_sel:[1,1,0] op_sel_hi:[0,1,1] neg_lo:[1,0,0]")

    def cfma(self, d, x, y, c):
        self.cfma1(d, x, y, c)
        self.cfma2(d, x, y)

    def prologue(self):
        a, cfg = self.a, self.cfg
        a("s_cmp_ge_u32 s2, 0x100")
        a("s_cbranch_scc1 L_end")
        self.stamp("rt0")
        self.stamp("start")
        a(f"s_getpc_b64 {sp(sT0)}")
        a("L_pc:")
        a("v_lshlrev_b32 v18, 7, v0")
        a("v_min_u32 v19, L_end-L_pc, v18")
        a(f"global_load_dword v255, v19, {sp(sT0)}", tag="pf")
        if cfg.pf2:
            a("v_add_u32 v18, 0x8000, v18")
            a("v_min_u32 v19, L_end-L_pc, v18")
            a(f"global_load_dword v254, v19, {sp(sT0)}", tag="pf")
        a("v_lshrrev_b32 v18, 6, v0")
        a(f"s_and_b32 s{sT2}, s2, 7")
        a(f"s_lshr_b32 s{sT3}, s2, 3")
        a(f"v_readfirstlane_b32 s{sW}, v18")
        if cfg.place == 2:
            a(f"s_lshr_b32 s{sTC}, s{sT2}, 1")
            a(f"s_lshl_b32 s{sRT}, s{sTC}, 3")
            a(f"s_lshl_b32 s{sTC}, s{sTC}, 2")
            a(f"s_lshr_b32 s{sCG}, s{sT3}, 3")
            a(f"s_add_u32 s{sTC}, s{sTC}, s{sCG}")
            a(f"s_lshr_b32 s{sCG}, s{sT3}, 2")
            a(f"s_add_u32 s{sRT}, s{sRT}, s{sCG}")
            a(f"s_and_b32 s{sT2}, s{sT2}, 1")
            a(f"s_lshl_b32 s{sCG}, s{sT2}, 3")
            a(f"s_and_b32 s{sDG}, s{sT3}, 7")
            a(f"s_add_u32 s{sCG}, s{sCG}, s{sDG}")
            a(f"s_lshl_b32 s{sT2}, s{sT2}, 2")
            a(f"s_and_b32 s{sDG}, s{sT3}, 3")
            a(f"s_add_u32 s{sDG}, s{sDG}, s{sT2}")
        else:
            a(f"s_lshl_b32 s{sTC}, s{sT2}, 1")
            a(f"s_lshr_b32 s{sCG}, s{sT3}, 4")
            a(f"s_add_u32 s{sTC}, s{sTC}, s{sCG}")
            a(f"s_and_b32 s{sCG}, s{sT3}, 15")
            a(f"s_lshl_b32 s{sRT}, s{sTC}, 1")
            a(f"s_lshr_b32 s{sDG}, s{sCG}, 3")
            a(f"s_add_u32 s{sRT}, s{sRT}, s{sDG}")
            a(f"s_and_b32 s{sDG}, s{sCG}, 7")
        a(f"s_lshr_b32 s{sT2}, s{sCG}, 3")
        a(f"s_mul_i32 s{sT2}, s{sT2}, 72")
        a(f"s_add_u32 s{pK1}, s0, s{sT2}")
        a(f"s_addc_u32 s{pK1+1}, s1, 0")
        a(f"s_load_dwordx2 {sp(pX)}, s[0:1], 0")
        a(f"s_load_dwordx4 {srd(pB)}, {sp(pK1)}, 24")
        a(f"s_load_dwordx4 {srd(pL)}, {sp(pK1)}, 8")
        a(f"s_load_dwordx2 {sp(pDT)}, {sp(pK1)}, 56")
        a(f"s_lshr_b32 s{sT2}, s{sW}, 1")
        a(f"s_mul_i32 s{sT2}, s{sT2}, 72")
        a(f"s_add_u32 s{pK2}, s0, s{sT2}")
        a(f"s_addc_u32 s{pK2+1}, s1, 0")
        a(f"s_load_dwordx4 {srd(pC)}, {sp(pK2)}, 40")
        a(f"s_load_dwordx4 {srd(pGW)}, s[0:1], 144")
        a(f"s_load_dwordx2 {sp(pWS)}, s[0:1], 168")
        a(f"s_load_dwordx2 {sp(pDA)}, s[0:1], 64")
        a(f"s_load_dwordx2 {sp(pDB)}, s[0:1], 136")
        a(f"s_mul_i32 s{sBW}, s{sW}, {PIECE}")
        L, R8, SL, F0, T0, T1, C, Q = 196, 197, 198, 199, 200, 201, 202, 203
        a(f"v_and_b32 v{L}, 63, v0")
        a(f"v_lshrrev_b32 v{R8}, 3, v{L}")
        a(f"v_and_b32 v{SL}, 7, v{L}")
        a(f"v_lshrrev_b32 v{F0}, 4, v{L}")
        a(f"v_xor_b32 v{F0}, v{F0}, v{SL}")
        a(f"v_lshlrev_b32 v{F0}, 4, v{F0}")
        a(f"v_lshrrev_b32 v{T0}, 5, v{L}")
        a(f"v_and_b32 v{T1}, 3, v{R8}")
        a(f"v_lshl_add_u32 v{T0}, v{T0}, 3, v{T1}")
        a(f"v_mul_u32_u24 v{T0}, 1280, v{T0}")
        a(f"v_xor_b32 v{T1}, 64, v{F0}")
        a(f"v_add_u32 v1, v{T0}, v{F0}")
        a(f"v_add_u32 v2, v{T0}, v{T1}")
        a(f"v_add_u32 v2, {16*1280-1024}, v2")
        a(f"v_add_u32 v3, {4*1280-2048}, v1")
        a(f"v_add_u32 v4, {4*1280-2048}, v2")
        a(f"s_lshr_b32 s{sT2}, s{sW}, 1")
        a(f"s_lshl_b32 s{sT3}, s{sT2}, 6")
        a(f"s_mul_i32 s{sT2}, s{sT2}, {8*1280}")
        a(f"v_mul_u32_u24 v{T0}, 1280, v{R8}")
        a(f"v_xor_b32 v{T1}, s{sT3}, v{F0}")
        a(f"v_add3_u32 v5, v{T0}, v{T1}, s{sT2}")
        for n in range(1, 5):
            a(f"v_add_u32 v{5+n}, {n*16*1280 - 1024*(n & 3)}, v5")
        a(f"v_and_b32 v{C}, 15, v{L}")
        a(f"v_lshrrev_b32 v{Q}, 4, v{L}")
        a(f"v_lshrrev_b32 v{T0}, 1, v{C}")
        a(f"v_xor_b32 v{T0}, v{T0}, v{Q}")
        a(f"v_lshlrev_b32 v{T0}, 4, v{T0}")
        a(f"v_lshl_add_u32 v{T1}, v{C}, 7, v{T0}")
        a(f"v_add_u32 v10, s{sBW}, v{T1}")
        a(f"v_xor_b32 v11, 64, v10")
        a(f"v_add_u32 v12, {2*SLOT}, v10")
        a(f"v_add_u32 v13, {2*SLOT}, v11")
        a(f"v_and_b32 v{T1}, 7, v{C}")
        a(f"v_lshl_add_u32 v{T0}, v{T1}, 7, v{T0}")
        a(f"v_lshrrev_b32 v{T1}, 3, v{C}")
        a(f"v_mul_u32_u24 v{T1}, {2*PIECE}, v{T1}")
        a(f"v_add_u32 v{T0}, 4096, v{T0}")
        a(f"v_add_u32 v14, v{T0}, v{T1}")
        a(f"v_xor_b32 v15, 64, v14")
        a(f"v_add_u32 v16, {2*SLOT}, v14")
        a(f"v_add_u32 v17, {2*SLOT}, v15")
        a(f"s_and_b32 s{sT2}, s{sCG}, 7")
        a(f"s_mul_i32 s{sT2}, s{sT2}, 80")
        a(f"s_mul_i32 s{sT3}, s{sW}, 20")
        a(f"v_min_u32 v{T0}, 19, v{L}")
        a(f"v_add_u32 v{T0}, s{sT3}, v{T0}")
        a(f"v_lshlrev_b32 v204, 3, v{T0}")
        a(f"v_add_u32 v204, {TAB}, v204")
        a(f"v_add_u32 v{T0}, s{sT2}, v{T0}")
        a(f"v_lshlrev_b32 v{T0}, 1, v{T0}")
        a(f"s_mul_i32 s{sT3}, s{sT2}, 1280")
        a(f"s_lshl_b32 s{sT0}, s{sTC}, 2")
        a(f"s_add_u32 s{sT0}, s{sT0}, s{sW}")
        a(f"s_mul_i32 s{sT0}, s{sT0}, {32*1280}")
        a("s_waitcnt lgkmcnt(0)")
        self.stamp("karg")
        a(f"global_load_ushort v206, v{T0}, {sp(pL)}", tag="par")
        a(f"global_load_ushort v207, v{T0}, {sp(pL+2)}", tag="par")
        a(f"global_load_ushort v208, v{T0}, {sp(pDT)}", tag="par")
        a(f"s_load_dword s{sTAG}, {sp(pWS)}, {WS_EPOCH}")
        a(f"s_add_u32 s{SX}, s{pX}, s{sT0}")
        a(f"s_addc_u32 s{SX+1}, s{pX+1}, 0")
        a(f"s_sub_u32 s{SX+2}, 2621440, s{sT0}")
        a(f"s_mov_b32 s{SX+3}, 0x20000")
        a(f"s_bitcmp1_b32 s{sW}, 0")
        a(f"s_cselect_b32 s{SB}, s{pB+2}, s{pB}")
        a(f"s_cselect_b32 s{SB+1}, s{pB+3}, s{pB+1}")
        a(f"s_add_u32 s{SB}, s{SB}, s{sT3}")
        a(f"s_addc_u32 s{SB+1}, s{SB+1}, 0")
        a(f"s_sub_u32 s{SB+2}, 819200, s{sT3}")
        a(f"s_mov_b32 s{SB+3}, 0x20000")
        a(f"s_mov_b32 s{sK}, 0")
        for s in range(4):
            for it in self.dma_stage(s):
                it()
        self.stamp("dma_issued")
        a(f"s_mul_i32 s{sT0}, s{sDG}, {80*1280}")
        a(f"s_and_b32 s{sT1}, s{sW}, 1")
        a(f"s_mul_i32 s{sT1}, s{sT1}, 640")
        a(f"s_add_u32 s{sT0}, s{sT0}, s{sT1}")
        a(f"s_add_u32 s{SCR}, s{pC}, s{sT0}")
        a(f"s_addc_u32 s{SCR+1}, s{pC+1}, 0")
        a(f"s_sub_u32 s{SCR+2}, 819200, s{sT0}")
        a(f"s_mov_b32 s{SCR+3}, 0x20000")
        a(f"s_add_u32 s{SCI}, s{pC+2}, s{sT0}")
        a(f"s_addc_u32 s{SCI+1}, s{pC+3}, 0")
        a(f"s_sub_u32 s{SCI}, s{SCI}, 2048")
        a(f"s_subb_u32 s{SCI+1}, s{SCI+1}, 0")
        a(f"s_sub_u32 s{SCI+2}, {819200+2048}, s{sT0}")
        a(f"s_mov_b32 s{SCI+3}, 0x20000")
        a(f"s_mov_b32 s{SWS}, s{pWS}")
        a(f"s_mov_b32 s{SWS+1}, s{pWS+1}")
        a(f"s_mov_b32 s{SWS+2}, {WS_USED}")
        a(f"s_mov_b32 s{SWS+3}, 0x20000")
        a(f"s_mov_b32 s{SOUT}, s{pOUT}")
        a(f"s_mov_b32 s{SOUT+1}, s{pOUT+1}")
        a(f"s_mov_b32 s{SOUT+2}, 5242880")
        a(f"s_mov_b32 s{SOUT+3}, 0x20000")
        a(f"s_lshl_b32 s{sT0}, s{sTC}, 7")
        a(f"s_lshr_b32 s{sT1}, s{sW}, 1")
        a(f"s_lshl_b32 s{sT1}, s{sT1}, 6")
        a(f"s_add_u32 s{sT0}, s{sT0}, s{sT1}")
        a(f"s_lshl_b32 s{sT1}, s{sCG}, 2")
        a(f"s_add_u32 s{sT0}, s{sT0}, s{sT1}")
        a(f"s_and_b32 s{sT1}, s{sW}, 1")
        a(f"s_lshl_b32 s{sT1}, s{sT1}, 1")
        a(f"s_add_u32 s{sT0}, s{sT0}, s{sT1}")
        a(f"v_lshrrev_b32 v{T0}, 5, v{L}")
        a(f"v_add_u32 v{T0}, s{sT0}, v{T0}")
        a(f"v_mul_u32_u24 v{T0}, 1280, v{T0}")
        a(f"v_and_b32 v{T1}, 31, v{L}")
        a(f"v_lshlrev_b32 v209, 4, v{T1}")
        a(f"v_lshlrev_b32 v210, 3, v{T1}")
        a(f"v_add_u32 v211, v{T0}, v209")
        a(f"v_add_u32 v212, v{T0}, v210")
        GX, GW = self.GX, self.GW
        a(f"global_load_dwordx4 {v4(GX)}, v211, {sp(pX)}", tag="gate")
        a(f"global_load_dwordx4 {v4(GX+4)}, v211, {sp(pX)} offset:512", tag="gate")
        a(f"global_load_dwordx2 {v2(GX+8)}, v212, {sp(pX)} offset:1024", tag="gate")
        a(f"global_load_dwordx4 {v4(GW)}, v209, {sp(pGW)}", tag="gate")
        a(f"global_load_dwordx4 {v4(GW+4)}, v209, {sp(pGW)} offset:512", tag="gate")
        a(f"global_load_dwordx2 {v2(GW+8)}, v210, {sp(pGW)} offset:1024", tag="gate")
        self.params()
        a("s_waitcnt lgkmcnt(0)")
        a(f"s_mul_i32 s{sTAG}, s{sTAG}, 0x9E3779B1")
        a(f"s_add_u32 s{sTAG}, s{sTAG}, 0x7F4A7C15")

    GX, GW = 232, 242

    def params(self):
        a = self.a
        a.wait(vm="par")
        a("s_mov_b64 exec, 0xfffff")
        LR, LI, DT, T0, T1, T2 = 206, 207, 208, 209, 210, 211
        P = lambda k: 100 + 2 * k
        a(f"v_lshlrev_b32 v{DT}, 16, v{DT}")
        a(f"v_lshlrev_b32 v{LR}, 16, v{LR}")
        a(f"v_mul_f32 v{DT}, 0x3fb8aa3b, v{DT}")
        a(f"v_exp_f32 v{DT}, v{DT}")
        a(f"v_lshlrev_b32 v{LI}, 16, v{LI}")
        a(f"v_cvt_pk_bf16_f32 v{DT}, v{DT}, v{DT}")
        a(f"v_lshlrev_b32 v{DT}, 16, v{DT}")
        a(f"v_mul_f32 v{T0}, v{DT}, v{LR}")
        a(f"v_mul_f32 v{T1}, v{DT}, v{LI}")
        a(f"v_mul_f32 v{T0}, 0x3fb8aa3b, v{T0}")
        a(f"v_mul_f32 v{T1}, 0x3e22f983, v{T1}")
        a(f"v_exp_f32 v{T0}, v{T0}")
        a(f"v_rndne_f32 v{T2}, v{T1}")
        a(f"v_sub_f32 v{T1}, v{T1}, v{T2}")
        a(f"v_cos_f32 v{T2}, v{T1}")
        a(f"v_sin_f32 v{T1}, v{T1}")
        a(f"v_mov_b32 v{P(0)}, 1.0")
        a(f"v_mov_b32 v{P(0)+1}, 0")
        a(f"v_mul_f32 v{P(1)}, v{T0}, v{T2}")
        a(f"v_mul_f32 v{P(1)+1}, v{T0}, v{T1}")
        a(f"v_mul_f32 v{T0}, v{LR}, v{LR}")
        a(f"v_fmac_f32 v{T0}, v{LI}, v{LI}")
        a(f"v_rcp_f32 v{T0}, v{T0}")
        a(f"v_add_f32 v{T1}, -1.0, v{P(1)}")
        a(f"v_mul_f32 v{P(3)}, v{T1}, v{LR}")
        a(f"v_mul_f32 v{P(3)+1}, v{P(1)+1}, v{LR}")
        a(f"v_add_f32 v{T0}, v{T0}, v{T0}")
        a(f"v_fmac_f32 v{P(3)}, v{P(1)+1}, v{LI}")
        a(f"v_fma_f32 v{P(3)+1}, -v{T1}, v{LI}, v{P(3)+1}")
        a(f"v_mul_f32 v{P(3)}, v{P(3)}, v{T0}")
        a(f"v_mul_f32 v{P(3)+1}, v{P(3)+1}, v{T0}")
        self.cmul(P(2), P(1), P(1))
        self.cmul(P(16), P(2), P(2))
        self.cmul(P(4), P(16), P(16))
        for base in (4, 7, 10, 13):
            self.cmul(P(base + 1), P(base), P(base))
            self.cmul(P(base + 2), P(base + 1), P(base))
            if base < 13:
                self.cmul(P(base + 3), P(base + 1), P(base + 1))
        for e in range(16):
            a(f"ds_write_b64 v204, {v2(P(e))} offset:{e*640}", tag="tab")
        a("s_mov_b64 exec, -1")

    def dma_stage(self, s):
        a = self.a
        base = (s % 4) * SLOT
        out = []

        def mk(m0off, vreg, sr, off, last=False):
            def f():
                if m0off is not None:
                    a(f"s_add_u32 m0, s{sBW}, {base + m0off}")
                a(f"buffer_load_dwordx4 v{vreg}, {srd(sr)}, s{sK} offen offset:{off} lds", tag=f"st{s}")
                if last:
                    a(f"s_add_u32 s{sK}, s{sK}, 128")
            return f
        for j in range(4):
            out.append(mk(0 if j == 0 else None, 1 + j, SX, 1024 * j))
        for n in range(4):
            out.append(mk(4096 if n == 0 else None, 5 + n, SB, 1024 * n))
        out.append(mk(8192, 9, SB, 0, last=True))
        return out

    R1 = [(1, 2), (1, 3), (1, 4), (2, 0), (2, 1), (2, 2), (2, 3), (2, 4)]
    R2 = [(3, 0), (3, 1), (3, 2), (3, 3), (3, 4), (4, 0), (4, 1), (4, 2)]
    R3 = [(0, 0), (0, 1), (0, 2), (0, 3), (0, 4), (1, 0), (1, 1), (4, 3)]
    VC0, VC1 = 18, 19
    CV = 20

    def c_home(self, kq, nt):
        if (kq, nt) in self.R1:
            return "a", 16 * self.R1.index((kq, nt))
        if (kq, nt) in self.R2:
            return "a", 128 + 16 * self.R2.index((kq, nt))
        if (kq, nt) == (4, 3):
            return "v", self.CV
        if (kq, nt) == (4, 4):
            return "v", self.CV + 16
        return "v", self.CV + 16 * self.R3.index((kq, nt))

    def c_addr_setup(self):
        a = self.a
        L, R8, T0, T1 = 252, 253, 18, 19
        a(f"v_and_b32 v{L}, 63, v0")
        a(f"v_lshrrev_b32 v{R8}, 3, v{L}")
        a(f"v_lshrrev_b32 v{T0}, 4, v{L}")
        a(f"v_and_b32 v{L}, 7, v{L}")
        a(f"v_xor_b32 v{T0}, v{T0}, v{L}")
        a(f"v_lshlrev_b32 v{T0}, 4, v{T0}")
        a(f"v_mul_u32_u24 v{R8}, 1280, v{R8}")
        a(f"v_xor_b32 v{T1}, 64, v{T0}")
        a(f"v_add_u32 v{self.VC0}, v{R8}, v{T0}")
        a(f"v_add_u32 v{self.VC1}, v{R8}, v{T1}")
        a(f"v_add_u32 v{self.VC1}, {8*1280-1024}, v{self.VC1}")

    def dma_unit(self, kq, nt, slot, tag):
        a = self.a
        out = []

        def mk(part, half):
            def f():
                off = part * 2048 + half * 1024
                if slot == "odd":
                    a(f"s_add_u32 m0, s{sBW}, {(part*2+half)*SLOT + 8192 - off}")
                elif off == 0:
                    a(f"s_add_u32 m0, s{sBW}, {(slot >> 1)*SLOT + (slot & 1)*4096}")
                if off == 0:
                    a(f"s_mov_b32 s{sK}, {nt*16*1280 + kq*128}")
                a(f"buffer_load_dwordx4 v{self.VC1 if half else self.VC0}, {srd(SCI if part else SCR)}, s{sK} offen offset:{off} lds", tag=tag)
            return f
        for part in range(2):
            for half in range(2):
                out.append(mk(part, half))
        return out

    VCR = 10

    def c_read_setup(self):
        a = self.a
        T0, T1, T2 = 252, 253, 254
        a(f"v_and_b32 v{T0}, 15, v0")
        a(f"v_bfe_u32 v{T1}, v0, 4, 1")
        a(f"v_lshrrev_b32 v{T2}, 1, v{T0}")
        a(f"v_xor_b32 v{T1}, v{T1}, v{T2}")
        a(f"v_lshlrev_b32 v{T1}, 4, v{T1}")
        a(f"v_lshl_add_u32 v{T1}, v{T0}, 7, v{T1}")
        a(f"v_bfe_u32 v{T2}, v0, 5, 1")
        a(f"v_lshl_add_u32 v{T1}, v{T2}, 11, v{T1}")
        a(f"v_add_u32 v{self.VCR}, s{sBW}, v{T1}")
        for k in range(1, 4):
            a(f"v_xor_b32 v{self.VCR+k}, {32*k}, v{self.VCR}")
        for k in range(4):
            a(f"v_add_u32 v{self.VCR+4+k}, {2*SLOT}, v{self.VCR+k}")

    def drain_unit(self, kq, nt, slot, tag):
        a = self.a
        f, r = self.c_home(kq, nt)
        out = []
        for ksl in range(4):
            def g(ksl=ksl):
                p = slot >> 1
                a(f"ds_read_b128 {v4(r+4*ksl, f)}, v{self.VCR + 4*(p >> 1) + ksl} offset:{(p & 1)*SLOT + (slot & 1)*4096}", tag=tag)
            out.append(g)
        return out

    ACC = 20

    def acc(self, m, n, part):
        return self.ACC + (n * 2 + part) * 8 + 4 * m

    def frag_reads(self, h):
        a = self.a
        s, u = h >> 1, h & 1
        slot = s % 4
        F = 100 + 48 * (h & 1)
        va = 10 + 2 * (slot >> 1) + u
        vb = 14 + 2 * (slot >> 1) + u
        so = (slot & 1) * SLOT
        out = []

        def rd(dst, vr, off):
            return lambda: a(f"ds_read_b128 {v4(dst)}, v{vr} offset:{off}", tag=f"fr{h}")
        out.append(rd(F, va, so))
        out.append(rd(F + 8, vb, so))
        out.append(rd(F + 4, va, so + 2048))
        for k in range(1, 10):
            n, part = k >> 1, k & 1
            out.append(rd(F + 8 + 4 * k, vb, so + part * PIECE + n * 1024))
        return out

    def gemm1(self):
        a, cfg = self.a, self.cfg
        a.wait(vm="st0")
        a("s_barrier")
        self.stamp("st0")
        for it in self.frag_reads(0):
            it()
        self.c_addr_setup()
        for h in range(20):
            s, u = h >> 1, h & 1
            fill = []
            if u == 1:
                if s < 9:
                    a.wait(vm=f"st{s+1}", lgkm=0)
                else:
                    a.wait(lgkm=0)
                a("s_barrier")
            else:
                a.wait(lgkm=0)
            rds = self.frag_reads(h + 1) if h < 19 else self.tab_reads1()
            for k, it in enumerate(rds):
                fill.append((k if h < 19 else k, it))
            dm = []
            if u == 1:
                if s + 4 <= 9:
                    dm = self.dma_stage(s + 4)
                else:
                    sl = s % 4
                    k0 = 2 * (s - 6)
                    dm = self.dma_unit(*self.R1[k0], 2 * sl, "r1") + self.dma_unit(*self.R1[k0 + 1], 2 * sl + 1, "r1")
                self.pending_dma = dm
            pend = getattr(self, "pending_dma", [])
            take = len(pend) if (u == 0 or h == 19) else (len(pend) + 1) // 2
            if cfg.dma_burst:
                take = len(pend)
            now, self.pending_dma = pend[:take], pend[take:]
            if now:
                if cfg.dma_burst:
                    for k, it in enumerate(now):
                        fill.append((k, it))
                else:
                    step = 20.0 / len(now)
                    for k, it in enumerate(now):
                        fill.append((int(k * step + step / 2), it))
            F = 100 + 48 * (h & 1)
            g = 0
            for k in range(10):
                n, part = k >> 1, k & 1
                for m in range(2):
                    d = self.acc(m, n, part)
                    c = "0" if h == 0 else v4(d)
                    a(f"v_mfma_f32_16x16x32_bf16 {v4(d)}, {v4(F+4*m)}, {v4(F+8+4*k)}, {c}")
                    for gi, it in fill:
                        if gi == g:
                            it()
                    g += 1
        for it in self.dma_unit(4, 4, "odd", "r1"):
            it()
        self.stamp("gemm1")

    L1, L2, WQ = 196, 206, 216
    VP = 226
    VQ = 227
    U = 100

    def tab_reads1(self):
        a = self.a
        out = []

        def setup():
            a(f"v_and_b32 v{self.VP}, 15, v0")
            a(f"v_bfe_u32 v228, v0, 4, 2")
            a(f"v_lshlrev_b32 v{self.VP}, 3, v{self.VP}")
            a(f"v_add_u32 v{self.VP}, {TAB}, v{self.VP}")
        out.append(setup)

        def setup2():
            a(f"v_sub_u32 v229, 6, v228")
            a(f"v_cmp_eq_u32 vcc, 3, v228")
            a(f"v_mul_u32_u24 v229, 640, v229")
            a(f"v_cndmask_b32 v229, v229, 0, vcc".replace("v229, 0, vcc", "v229, v230, vcc"))
            a(f"v_add_u32 v{self.VQ}, v{self.VP}, v229")
        out.append(lambda: a("v_mov_b32 v230, 0"))
        out.append(setup2)
        for n in range(5):
            out.append(lambda n=n: a(f"ds_read_b64 {v2(self.L2+2*n)}, v{self.VP} offset:{2*640+128*n}", tag="t1"))
        for n in range(5):
            out.append(lambda n=n: a(f"ds_read_b64 {v2(self.L1+2*n)}, v{self.VP} offset:{1*640+128*n}", tag="t1"))
        for n in range(5):
            out.append(lambda n=n: a(f"ds_read_b64 {v2(self.WQ+2*n)}, v{self.VQ} offset:{128*n}", tag="t1"))
        return out

    def swap_reduce(self, Z, part_base, vaddr):
        a = self.a
        for n in range(5):
            a(f"v_permlane32_swap_b32 v{Z+2*n}, v{Z+2*n+1}")
        for n in range(5):
            a(f"v_add_f32 v{Z+2*n}, v{Z+2*n}, v{Z+2*n+1}")
        a(f"v_mov_b32 v{Z+9}, v{Z+8}")
        a(f"v_permlane16_swap_b32 v{Z}, v{Z+2}")
        a(f"v_permlane16_swap_b32 v{Z+4}, v{Z+6}")
        a(f"v_permlane16_swap_b32 v{Z+8}, v{Z+9}")
        a(f"v_add_f32 v{Z}, v{Z}, v{Z+2}")
        a(f"v_add_f32 v{Z+4}, v{Z+4}, v{Z+6}")
        a(f"v_add_f32 v{Z+8}, v{Z+8}, v{Z+9}")
        a(f"ds_write_b32 v{vaddr}, v{Z} offset:{part_base}", tag="pw")
        a(f"ds_write_b32 v{vaddr}, v{Z+4} offset:{part_base+1024}", tag="pw")
        a(f"ds_write_b32 v{vaddr+1}, v{Z+8} offset:{part_base+2048}", tag="pw")

    def scan(self):
        a, cfg = self.a, self.cfg
        L1, L2, WQ, VP, U = self.L1, self.L2, self.WQ, self.VP, self.U
        E = 180
        Z = 100
        TA, TB = 110, 114
        VPW = 190
        Q = 228
        a(f"s_lshr_b32 s{sT0}, s{sW}, 1")
        a(f"s_lshl_b32 s{sT0}, s{sT0}, 8")
        a(f"s_and_b32 s{sT1}, s{sW}, 1")
        a(f"s_lshl_b32 s{sT1}, s{sT1}, 3")
        a(f"s_add_u32 s{sT0}, s{sT0}, s{sT1}")
        a(f"s_add_u32 s{sT0}, s{sT0}, {PART1}")
        a(f"v_and_b32 v192, 15, v0")
        a(f"v_lshlrev_b32 v192, 4, v192")
        a(f"v_lshrrev_b32 v193, 1, v{Q}")
        a(f"v_lshl_add_u32 v{VPW+1}, v193, 2, v192")
        a(f"v_add_u32 v{VPW+1}, s{sT0}, v{VPW+1}")
        a(f"v_and_b32 v193, 1, v{Q}")
        a(f"v_lshl_add_u32 v{VPW}, v193, 9, v{VPW+1}")
        a(f"v_add_u32 v192, {PART1}, v192")
        a.wait(lgkm="t1")
        for n in range(5):
            ur, ui = self.acc(0, n, 0), self.acc(0, n, 1)
            er, ei = ur, ui
            for k in range(1, 4):
                T = TA if k & 1 else TB
                a(f"v_pk_fma_f32 {v2(T)}, {v2(er)}, {v2(L2+2*n)}, {v2(ur+2*k)} op_sel_hi:[1,0,1]")
                a(f"v_pk_fma_f32 {v2(T+2)}, {v2(ei)}, {v2(L2+2*n)}, {v2(ui+2*k)} op_sel_hi:[1,0,1]")
                a(f"v_pk_fma_f32 {v2(T)}, {v2(ei)}, {v2(L2+2*n)}, {v2(T)} op_sel:[0,1,0] op_sel_hi:[1,1,1] neg_lo:[1,0,0] neg_hi:[1,0,0]")
                a(f"v_pk_fma_f32 {v2(T+2)}, {v2(er)}, {v2(L2+2*n)}, {v2(T+2)} op_sel:[0,1,0] op_sel_hi:[1,1,1]")
                er, ei = T, T + 2
            a(f"v_fma_f32 v{E+2*n}, v{L1+2*n}, v{er}, v{er+1}")
            a(f"v_fma_f32 v{E+2*n+1}, v{L1+2*n}, v{ei}, v{ei+1}")
            a(f"v_fma_f32 v{E+2*n}, -v{L1+2*n+1}, v{ei}, v{E+2*n}")
            a(f"v_fma_f32 v{E+2*n+1}, v{L1+2*n+1}, v{er}, v{E+2*n+1}")
            self.cmul(Z + 2 * n, E + 2 * n, WQ + 2 * n)
        self.swap_reduce(Z, 0, VPW)
        PN, PA, PL, PG = 110, 111, 112, 114
        a(f"v_lshl_add_u32 v{PN}, v{Q}, 2, s{sW}")
        a(f"v_min_u32 v{PA}, 4, v{PN}")
        a(f"v_lshl_add_u32 v{PL}, v{PA}, 7, v{VP}")
        a(f"ds_read_b64 {v2(PL)}, v{PL} offset:{7*640}", tag="p32")
        a(f"v_lshl_add_u32 v{PA}, v{PA}, 9, v192")
        a(f"s_lshl_b32 s{sT0}, s{sCG}, 4")
        a(f"s_add_u32 s{sT0}, s{sT0}, s{sTC}")
        a(f"s_mul_i32 s{sT0}, s{sT0}, 1280")
        a(f"s_add_u32 s{sT0}, s{sT0}, {WS_CARRY}")
        a(f"v_and_b32 v193, 15, v0")
        a(f"v_lshlrev_b32 v193, 4, v193")
        a(f"v_lshl_add_u32 v194, v{PN}, 8, v193")
        a(f"v_cmp_gt_u32 vcc, 5, v{PN}")
        a.wait(lgkm=0)
        a("s_barrier")
        a(f"ds_read_b128 {v4(120)}, v{PA}", tag="pr")
        a(f"ds_read_b128 {v4(124)}, v{PA} offset:256", tag="pr")
        a(f"v_mov_b32 v{PG+1}, s{sTAG}")
        a(f"v_mov_b32 v{PG+3}, s{sTAG}")
        a(f"s_and_saveexec_b64 {sp(sT2)}, vcc")
        a.wait(lgkm="pr")
        self.cfma(128, 120, PL, 122)
        self.cfma(130, 128, PL, 124)
        self.cfma(128, 130, PL, 126)
        a(f"v_mov_b32 v{PG}, v128")
        a(f"v_mov_b32 v{PG+2}, v129")
        a(f"buffer_store_dwordx4 {v4(PG)}, v194, {srd(SWS)}, s{sT0} offen sc1", tag="pub")
        a(f"s_mov_b64 exec, -1")
        self.stamp("pub")

        self.c_read_setup()
        a.wait(vm="r1")
        for i, (kq, nt) in enumerate(self.R1):
            sl = 2 * ((6 + i // 2) % 4) + (i & 1)
            for it in self.drain_unit(kq, nt, sl, "dr1"):
                it()
        CF, L8, MU, L8Q, L32 = L2, WQ, 118, 128, 138
        CF, L8 = L2, WQ
        for n in range(5):
            a(f"ds_read_b64 {v2(CF+2*n)}, v{VP} offset:{3*640+128*n}", tag="t2")
        for n in range(5):
            a(f"ds_read_b64 {v2(L8+2*n)}, v{VP} offset:{4*640+128*n}", tag="t2")
        a.wait(lgkm="dr1")
        if cfg.r2_early:
            for i, (kq, nt) in enumerate(self.R2):
                for it in self.dma_unit(kq, nt, i, "r2"):
                    it()
        a.wait(lgkm="t2")
        for n in range(5):
            for j in range(8):
                ur, ui = self.acc(0, n, 0) + (j & ~1), self.acc(0, n, 1) + (j & ~1)
                o = j & 1
                d = U + 16 * n + 2 * j
                a(f"v_pk_mul_f32 {v2(d)}, {v2(CF+2*n)}, {v2(ur)} op_sel:[0,{o}] op_sel_hi:[1,{o}]")
                a(f"v_pk_fma_f32 {v2(d)}, {v2(CF+2*n)}, {v2(ui)}, {v2(d)} op_sel:[1,{o},0] op_sel_hi:[0,{o},1] neg_lo:[1,0,0]")
        A_, P_, C_, MU, L8Q, L32, X, WP = 20, 30, 40, 50, 60, 70, 80, 90
        SL, MC, V = 180, 216, 20
        a(f"v_and_b32 v90, 1, v{Q}")
        a(f"v_mul_u32_u24 v90, {4*640}, v90")
        a(f"v_add_u32 v90, v{VP}, v90")
        a(f"v_add_u32 v91, 3, v{Q}")
        a(f"v_cmp_eq_u32 vcc, 0, v{Q}")
        a(f"v_mul_u32_u24 v91, 640, v91")
        a(f"v_cndmask_b32 v91, v91, v230, vcc")
        a(f"v_add_u32 v91, v{VP}, v91")
        for n in range(5):
            a(f"ds_read_b64 {v2(MU+2*n)}, v90 offset:{128*n}", tag="t3")
        for n in range(5):
            a(f"ds_read_b64 {v2(L8Q+2*n)}, v91 offset:{128*n}", tag="t3")
        for n in range(5):
            a(f"ds_read_b64 {v2(L32+2*n)}, v{VP} offset:{7*640+128*n}", tag="t3")
        for n in range(5):
            a(f"v_mov_b64 {v2(A_+2*n)}, {v2(E+2*n)}")
        for n in range(5):
            a(f"v_permlane16_swap_b32 v{A_+2*n}, v{E+2*n}")
            a(f"v_permlane16_swap_b32 v{A_+2*n+1}, v{E+2*n+1}")
        for n in range(5):
            self.cfma(P_ + 2 * n, A_ + 2 * n, L8 + 2 * n, E + 2 * n)
        for n in range(5):
            a(f"v_mov_b64 {v2(C_+2*n)}, {v2(P_+2*n)}")
        for n in range(5):
            a(f"v_permlane32_swap_b32 v{C_+2*n}, v{P_+2*n}")
            a(f"v_permlane32_swap_b32 v{C_+2*n+1}, v{P_+2*n+1}")
        a("s_mov_b32 exec_hi, 0")
        for n in range(5):
            a(f"v_mov_b64 {v2(C_+2*n)}, 0")
        a("s_mov_b32 exec_lo, 0xffff")
        a("s_mov_b32 exec_hi, 0xffff")
        for n in range(5):
            a(f"v_mov_b64 {v2(A_+2*n)}, 0")
        a("s_mov_b64 exec, -1")
        a.wait(lgkm="t3")
        for n in range(5):
            self.cfma(P_ + 2 * n, C_ + 2 * n, MU + 2 * n, A_ + 2 * n)
        for n in range(5):
            a(f"ds_read_b64 {v2(X+2*n)}, v192 offset:{512*n}", tag="t4")
        for n in range(5):
            a(f"ds_read_b64 {v2(A_+2*n)}, v192 offset:{512*n+8}", tag="t4")
        for n in range(5):
            a(f"ds_read_b64 {v2(C_+2*n)}, v192 offset:{512*n+256}", tag="t4")
        a(f"s_add_u32 s{sT0}, s{sW}, 6")
        a(f"s_cmp_eq_u32 s{sW}, 0")
        a(f"s_cselect_b32 s{sT0}, 0, s{sT0}")
        a(f"s_mul_i32 s{sT0}, s{sT0}, 640")
        a(f"v_add_u32 v90, s{sT0}, v{VP}")
        for n in range(5):
            a(f"ds_read_b64 {v2(MU+2*n)}, v90 offset:{128*n}", tag="t4")
        a.wait(lgkm=0)
        a(f"s_cmp_lt_u32 s{sW}, 2")
        a("s_cbranch_scc1 L_x1")
        for n in range(5):
            self.cfma(A_ + 2 * n, X + 2 * n, L32 + 2 * n, A_ + 2 * n)
            a(f"v_mov_b64 {v2(X+2*n)}, {v2(A_+2*n)}")
        a(f"s_cmp_lt_u32 s{sW}, 3")
        a("s_cbranch_scc1 L_x1")
        for n in range(5):
            self.cfma(C_ + 2 * n, X + 2 * n, L32 + 2 * n, C_ + 2 * n)
            a(f"v_mov_b64 {v2(X+2*n)}, {v2(C_+2*n)}")
        a("L_x1:")
        a(f"s_cmp_lg_u32 s{sW}, 0")
        a("s_cbranch_scc1 L_x2")
        for n in range(5):
            a(f"v_mov_b64 {v2(X+2*n)}, 0")
        a("L_x2:")
        a(f"s_lshl_b32 s{sT0}, s{sW}, 2")
        a(f"s_sub_u32 s{sT1}, s{sTC}, s{sT0}")
        a(f"s_sub_u32 s{sT1}, s{sT1}, 1")
        a(f"v_sub_u32 v92, s{sT1}, v{Q}")
        a(f"v_max_i32 v93, 0, v92")
        a(f"v_and_b32 v90, 3, v93")
        a(f"v_lshrrev_b32 v91, 2, v93")
        a(f"v_cmp_eq_u32 vcc, 0, v90")
        a(f"v_add_u32 v90, 9, v90")
        a(f"v_mul_u32_u24 v90, 640, v90")
        a(f"v_cndmask_b32 v90, v90, v230, vcc")
        a(f"v_cmp_eq_u32 vcc, 0, v91")
        a(f"v_add_u32 v91, 12, v91")
        a(f"v_mul_u32_u24 v91, 640, v91")
        a(f"v_cndmask_b32 v91, v91, v230, vcc")
        a(f"v_add_u32 v90, v{VP}, v90")
        a(f"v_add_u32 v91, v{VP}, v91")
        for n in range(5):
            a(f"ds_read_b64 {v2(C_+2*n)}, v90 offset:{128*n}", tag="t5")
        for n in range(5):
            a(f"ds_read_b64 {v2(L32+2*n)}, v91 offset:{128*n}", tag="t5")
        for n in range(5):
            self.cfma(P_ + 2 * n, X + 2 * n, L8Q + 2 * n, P_ + 2 * n)
            self.cmul(SL + 2 * n, P_ + 2 * n, CF + 2 * n)
            self.cmul(X + 2 * n, L8Q + 2 * n, MU + 2 * n)
            self.cmul(MC + 2 * n, X + 2 * n, CF + 2 * n)
        a.wait(lgkm="t5")
        for n in range(5):
            self.cmul(V + 2 * n, C_ + 2 * n, L32 + 2 * n)
        self.gate()
        G = 40
        a(f"s_lshl_b32 s{sT1}, s{sCG}, 4")
        a(f"s_add_u32 s{sT1}, s{sT1}, s{sT0}")
        a(f"s_mul_i32 s{sT1}, s{sT1}, 1280")
        a(f"s_add_u32 s{sT1}, s{sT1}, {WS_CARRY}")
        a(f"v_mul_u32_u24 v90, 1280, v{Q}")
        a(f"v_add_u32 v90, v90, v193")
        for k in range(0, 20, 2):
            a(f"v_mov_b64 {v2(G+k)}, 0")
        a(f"v_cmp_le_i32 vcc, 0, v92")
        a(f"s_mov_b32 s{sSPIN}, {cfg.spin}")
        self.stamp("w1done")
        a.wait(vm=0)
        a(f"s_and_saveexec_b64 {sp(sT2)}, vcc")
        a("s_cbranch_execz L_got")
        a("L_poll1:")
        for n in range(5):
            a(f"buffer_load_dwordx4 {v4(G+4*n)}, v90, {srd(SWS)}, s{sT1} offen offset:{256*n} sc1", tag="g1")
        a(f"s_sub_u32 s{sSPIN}, s{sSPIN}, 1")
        a.wait(vm=0)
        a(f"v_min3_u32 v94, v{G+1}, v{G+3}, v{G+5}")
        a(f"v_max3_u32 v95, v{G+1}, v{G+3}, v{G+5}")
        for k in (7, 11, 15):
            a(f"v_min3_u32 v94, v94, v{G+k}, v{G+k+2}")
            a(f"v_max3_u32 v95, v95, v{G+k}, v{G+k+2}")
        a(f"v_min_u32 v94, v94, v{G+19}")
        a(f"v_max_u32 v95, v95, v{G+19}")
        a(f"v_cmp_ne_u32 vcc, s{sTAG}, v94")
        a(f"v_cmp_ne_u32 {sp(sT2)}, s{sTAG}, v95")
        a(f"s_or_b64 vcc, vcc, {sp(sT2)}")
        a(f"s_cmp_eq_u32 s{sSPIN}, 0")
        a("s_cbranch_scc1 L_got")
        a("s_cbranch_vccnz L_poll1")
        a("L_got:")
        a("s_mov_b64 exec, -1")
        self.stamp("got")
        Z2 = 60
        for n in range(5):
            a(f"v_pk_mul_f32 {v2(Z2+2*n)}, {v2(V+2*n)}, {v2(G+4*n)} op_sel_hi:[1,0]")
            a(f"v_pk_fma_f32 {v2(Z2+2*n)}, {v2(V+2*n)}, {v2(G+4*n+2)}, {v2(Z2+2*n)} op_sel:[1,0,0] op_sel_hi:[0,0,1] neg_lo:[1,0,0]")
        self.swap_reduce(Z2, 2560, VPW)
        a.wait(lgkm=0)
        a("s_barrier")
        for n in range(5):
            a(f"ds_read_b128 {v4(20+8*n)}, v192 offset:{2560+512*n}", tag=f"cr{n}")
            a(f"ds_read_b128 {v4(24+8*n)}, v192 offset:{2560+512*n+256}", tag=f"cr{n}")
        HS = 90
        a(f"s_lshl_b32 s{sT0}, s{sTC}, 1")
        a(f"s_lshr_b32 s{sT1}, s{sW}, 1")
        a(f"s_add_u32 s{sT0}, s{sT0}, s{sT1}")
        a(f"s_lshl_b32 s{sT0}, s{sT0}, 4")
        a(f"s_add_u32 s{sT0}, s{sT0}, s{sCG}")
        a(f"s_and_b32 s{sT1}, s{sW}, 1")
        a(f"s_lshl_b32 s{sT3}, s{sT0}, 1")
        a(f"s_add_u32 s{sT3}, s{sT3}, s{sT1}")
        a(f"s_lshl_b32 s{sT3}, s{sT3}, 7")
        a(f"s_add_u32 s{sT3}, s{sT3}, {WS_FLAG}")
        a(f"s_mul_i32 s{sT0}, s{sT0}, 20480")
        a(f"s_lshl_b32 s{sT1}, s{sT1}, 11")
        a(f"s_add_u32 s{sT0}, s{sT0}, s{sT1}")
        a(f"s_add_u32 s{sT0}, s{sT0}, {WS_H}")
        a(f"v_and_b32 v{HS}, 1, v{Q}")
        a(f"v_lshlrev_b32 v{HS}, 6, v{HS}")
        a(f"v_xor_b32 v{HS}, v{HS}, v193")
        a(f"v_lshl_add_u32 v{HS}, v{Q}, 8, v{HS}")
        PK = 60
        for n in range(5):
            w0 = 20 + 8 * n
            a.wait(lgkm=f"cr{n}")
            a(f"v_pk_add_f32 {v2(w0)}, {v2(w0)}, {v2(w0+2)}")
            a(f"v_pk_add_f32 {v2(w0+4)}, {v2(w0+4)}, {v2(w0+6)}")
            a(f"v_pk_add_f32 {v2(w0)}, {v2(w0)}, {v2(w0+4)}")
            self.cfma(SL + 2 * n, w0, MC + 2 * n, SL + 2 * n)
            prev = SL + 2 * n
            for j in range(8):
                d = U + 16 * n + 2 * j
                self.cfma(d, prev, L1 + 2 * n, d)
                prev = d
            pk = PK + 8 * (n & 1)
            for k in range(4):
                d = U + 16 * n + 4 * k
                a(f"v_cvt_pk_bf16_f32 v{pk+k}, v{d}, v{d+2}")
            a(f"buffer_store_dwordx4 {v4(pk)}, v{HS}, {srd(SWS)}, s{sT0} offen sc1", tag="hst")
            for k in range(4):
                d = U + 16 * n + 4 * k
                a(f"v_cvt_pk_bf16_f32 v{pk+4+k}, -v{d+1}, -v{d+3}")
            a(f"buffer_store_dwordx4 {v4(pk+4)}, v{HS}, {srd(SWS)}, s{sT0} offen offset:1024 sc1", tag="hst")
            if n < 4:
                a(f"s_add_u32 s{sT0}, s{sT0}, 4096")
        self.stamp("hst")
        if cfg.r2_early:
            for i, (kq, nt) in enumerate(self.R2):
                for it in self.drain_unit(kq, nt, i, "dr2"):
                    it()
        a(f"v_mov_b32 v{self.FG+1}, s{sTAG}")
        a(f"v_mov_b32 v{self.FG+3}, s{sTAG}")
        a(f"v_mov_b32 v94, 0")
        a.wait(vm="hst")
        a("s_mov_b64 exec, 1")
        a(f"buffer_store_dwordx4 {v4(self.FG)}, v94, {srd(SWS)}, s{sT3} offen sc1", tag="flag")
        a("s_mov_b64 exec, -1")
        self.stamp("flag")
        if not cfg.r2_early:
            for i, (kq, nt) in enumerate(self.R2):
                for it in self.dma_unit(kq, nt, i, "r2"):
                    it()
            a.wait(vm="r2")
            for i, (kq, nt) in enumerate(self.R2):
                for it in self.drain_unit(kq, nt, i, "dr2"):
                    it()
        a.wait(lgkm="dr2")
        for i, (kq, nt) in enumerate(self.R3):
            for it in self.dma_unit(kq, nt, i, "r3"):
                it()

    FG = 196 + 56

    def gate(self):
        a = self.a
        GX, GW, FG = self.GX, self.GW, self.FG
        T = 94
        a.wait(vm="gate")
        a(f"v_mov_b32 v{T}, 0")
        for k in range(10):
            a(f"v_dot2_f32_bf16 v{T}, v{GX+k}, v{GW+k}, v{T}")
        for r in (8, 4, 2, 1):
            a(f"v_add_f32_dpp v{T}, v{T}, v{T} row_ror:{r} row_mask:0xf bank_mask:0xf")
        a(f"v_mov_b32 v{T+1}, v{T}")
        a(f"v_permlane16_swap_b32 v{T}, v{T+1}")
        a(f"v_add_f32 v{T}, v{T}, v{T+1}")
        a(f"v_cvt_pk_bf16_f32 v{T}, v{T}, v{T}")
        a(f"v_lshlrev_b32 v{T}, 16, v{T}")
        a(f"v_mul_f32 v{T}, 0xbfb8aa3b, v{T}")
        a(f"v_exp_f32 v{T}, v{T}")
        a(f"v_add_f32 v{T}, 1.0, v{T}")
        a(f"v_rcp_f32 v{T}, v{T}")
        a(f"v_cvt_pk_bf16_f32 v{T}, v{T}, v{T}")
        a(f"v_lshlrev_b32 v{FG}, 16, v{T}")
        a(f"v_mov_b32 v{FG+2}, v{FG}")
        a(f"v_permlane32_swap_b32 v{FG}, v{FG+2}")

    ACC2 = 132
    HF = 212
    VT = 244
    VH = 248
    GG = 250

    def acc2(self, nt, mt):
        return self.ACC2 + 16 * nt + 4 * mt

    def h_dma(self, ks):
        a = self.a
        slot = ks % 7
        out = []
        for b in range(4):
            def f(b=b):
                if b == 0:
                    a(f"s_add_u32 m0, s{sBW}, {(slot >> 1)*SLOT + (slot & 1)*4096}")
                a(f"buffer_load_dwordx4 v{self.VH}, {srd(SWS)}, s{sK} offen offset:{1024*b} sc1 lds", tag=f"h{ks}")
                if b == 3:
                    a(f"s_add_u32 s{sK}, s{sK}, 4096")
            out.append(f)
        return out

    def h_reads(self, ks):
        a = self.a
        slot = ks % 7
        p = slot >> 1
        F = self.HF + 16 * (ks & 1)
        out = []
        for mt in range(4):
            for rho in range(2):
                def f(mt=mt, rho=rho):
                    off = (p & 1) * SLOT + (slot & 1) * 4096 + (mt >> 1) * 2048 + (mt & 1) * 512
                    a(f"ds_read_b64_tr_b16 {v2(F+4*mt+2*rho)}, v{self.VT + 2*(p >> 1) + rho} offset:{off}", tag=f"hr{ks}")
                out.append(f)
        return out

    def gemm2(self):
        a, cfg = self.a, self.cfg
        VT, VH, GG = self.VT, self.VH, self.GG
        T0, T1, T2, T3 = 1, 2, 3, 4
        a(f"v_bfe_u32 v{T0}, v0, 2, 2")
        a(f"v_bfe_u32 v{T1}, v0, 4, 1")
        a(f"v_lshl_add_u32 v{T0}, v{T1}, 3, v{T0}")
        a(f"v_bfe_u32 v{T1}, v0, 1, 1")
        a(f"v_lshlrev_b32 v{T2}, 2, v{T1}")
        a(f"v_xor_b32 v{T0}, v{T0}, v{T2}")
        a(f"v_lshlrev_b32 v{T0}, 4, v{T0}")
        a(f"v_lshl_add_u32 v{T0}, v{T1}, 8, v{T0}")
        a(f"v_and_b32 v{T1}, 1, v0")
        a(f"v_lshl_add_u32 v{T0}, v{T1}, 3, v{T0}")
        a(f"v_bfe_u32 v{T1}, v0, 5, 1")
        a(f"v_lshl_add_u32 v{T0}, v{T1}, 10, v{T0}")
        a(f"v_add_u32 v{VT}, s{sBW}, v{T0}")
        a(f"v_xor_b32 v{VT+1}, 64, v{VT}")
        a(f"v_add_u32 v{VT+2}, {2*SLOT}, v{VT}")
        a(f"v_add_u32 v{VT+3}, {2*SLOT}, v{VT+1}")
        a(f"v_and_b32 v{VH}, 63, v0")
        a(f"v_lshrrev_b32 v{T3}, 3, v{VH}")
        a(f"v_lshlrev_b32 v{T3}, 7, v{T3}")
        a(f"v_lshlrev_b32 v{VH}, 4, v{VH}")
        a(f"s_lshl_b32 s{sT0}, s{sRT}, 2")
        a(f"s_add_u32 s{sT0}, s{sT0}, s{sW}")
        a(f"s_lshl_b32 s{sT1}, s{sT0}, 10")
        a(f"s_add_u32 s{sT1}, s{sT1}, {WS_FLAG}")
        a(f"s_mul_i32 s{sT0}, s{sT0}, 81920")
        a(f"s_add_u32 s{sT0}, s{sT0}, {WS_H}")
        a.wait(vm="r3")
        for i, (kq, nt) in enumerate(self.R3[:7]):
            for it in self.drain_unit(kq, nt, i, "dr3"):
                it()
        a(f"s_mov_b32 s{sK}, s{sT0}")
        a(f"s_mov_b32 s{sSPIN}, {cfg.spin}")
        self.stamp("w3done")
        PV = 6
        a("L_poll2:")
        a(f"buffer_load_dwordx4 {v4(PV)}, v{T3}, {srd(SWS)}, s{sT1} offen sc1", tag="g2")
        a(f"s_sub_u32 s{sSPIN}, s{sSPIN}, 1")
        a.wait(vm=0)
        a(f"v_cmp_ne_u32 vcc, s{sTAG}, v{PV+1}")
        a(f"v_cmp_ne_u32 {sp(sT2)}, s{sTAG}, v{PV+3}")
        a(f"s_or_b64 vcc, vcc, {sp(sT2)}")
        a(f"s_cmp_eq_u32 s{sSPIN}, 0")
        a("s_cbranch_scc1 L_got2")
        a("s_cbranch_vccnz L_poll2")
        a("L_got2:")
        a.wait(lgkm=0)
        self.stamp("got2")
        for ks in range(7):
            for it in self.h_dma(ks):
                it()
        a(f"v_and_b32 v{T0}, 4, v0")
        a(f"v_cmp_ne_u32 vcc, 0, v{T0}")
        a(f"v_cndmask_b32 v{GG}, v{PV}, v{PV+2}, vcc")
        a(f"v_sub_f32 v{GG+1}, 1.0, v{GG}")
        a(f"v_cvt_pk_bf16_f32 v{GG+1}, v{GG+1}, v{GG+1}")
        a(f"v_lshlrev_b32 v{GG+1}, 16, v{GG+1}")
        XO, DO, OO, EW, ER, OD = 1, 2, 3, 4, 5, 249
        a(f"v_bfe_u32 v6, v0, 2, 4")
        a(f"v_and_b32 v7, 3, v0")
        a(f"s_lshl_b32 s{sT0}, s{sRT}, 2")
        a(f"s_add_u32 s{sT0}, s{sT0}, s{sW}")
        a(f"s_lshl_b32 s{sT0}, s{sT0}, 4")
        a(f"s_mul_i32 s{sT1}, s{sDG}, 80")
        a(f"v_add_u32 v8, s{sT0}, v6")
        a(f"v_mul_u32_u24 v8, 640, v8")
        a(f"v_lshl_add_u32 v9, v7, 2, s{sT1}")
        a(f"v_add_u32 v8, v8, v9")
        a(f"v_lshlrev_b32 v{XO}, 1, v8")
        a(f"v_lshlrev_b32 v{OO}, 2, v8")
        a(f"v_lshlrev_b32 v{DO}, 1, v9")
        a(f"v_bfe_u32 v8, v6, 1, 2")
        a(f"v_xor_b32 v8, v8, v7")
        a(f"v_lshlrev_b32 v8, 4, v8")
        a(f"v_mul_u32_u24 v9, 320, v6")
        a(f"s_mul_i32 s{sT1}, s{sW}, {SLOT}")
        a(f"v_add3_u32 v{ER}, v8, v9, s{sT1}")
        a(f"v_and_b32 v6, 15, v0")
        a(f"v_bfe_u32 v7, v0, 4, 2")
        a(f"v_bfe_u32 v8, v6, 1, 2")
        a(f"v_xor_b32 v8, v8, v7")
        a(f"v_lshlrev_b32 v8, 4, v8")
        a(f"v_mul_u32_u24 v9, 320, v6")
        a(f"v_add3_u32 v{EW}, v8, v9, s{sBW}")
        a(f"v_bfe_u32 v7, v0, 5, 1")
        a(f"v_lshrrev_b32 v8, 3, v6")
        a(f"v_lshl_add_u32 v7, v7, 1, v8")
        a(f"v_mul_u32_u24 v7, {SLOT}, v7")
        a(f"v_and_b32 v8, 0x3ff, v{self.VCR}".replace(f"v{self.VCR}", f"v{self.VCR}"))
        a(f"v_add3_u32 v{OD}, v7, v8, s{sBW}")
        a(f"v_add_u32 v{OD}, 8192, v{OD}")
        a.wait(vm="h0")
        for it in self.h_reads(0):
            it()
        XS, DA, DB, SK = 52, 62, 72, 82
        skip_ops = []
        for i in range(5):
            x0, da, db, sk = XS + 2 * i, DA + 2 * i, DB + 2 * i, 6
            t = 10
            o = []
            o.append(f"v_lshlrev_b32 v{t}, 16, v{x0}")
            o.append(f"v_and_b32 v{t+1}, 0xffff0000, v{x0}")
            o.append(f"v_lshlrev_b32 v{t+2}, 16, v{x0+1}")
            o.append(f"v_and_b32 v{t+3}, 0xffff0000, v{x0+1}")
            for (dsk, gq, first) in ((da, GG, True), (db, GG + 1, False)):
                o.append(f"v_lshlrev_b32 v{t+4}, 16, v{dsk}")
                o.append(f"v_and_b32 v{t+5}, 0xffff0000, v{dsk}")
                o.append(f"v_lshlrev_b32 v{t+6}, 16, v{dsk+1}")
                o.append(f"v_and_b32 v{t+7}, 0xffff0000, v{dsk+1}")
                for e in range(4):
                    o.append(f"v_mul_f32 v{t+4+e}, v{t+e}, v{t+4+e}")
                o.append(f"v_cvt_pk_bf16_f32 v{t+4}, v{t+4}, v{t+5}")
                o.append(f"v_cvt_pk_bf16_f32 v{t+6}, v{t+6}, v{t+7}")
                o.append(f"v_and_b32 v{t+5}, 0xffff0000, v{t+4}")
                o.append(f"v_lshlrev_b32 v{t+4}, 16, v{t+4}")
                o.append(f"v_and_b32 v{t+7}, 0xffff0000, v{t+6}")
                o.append(f"v_lshlrev_b32 v{t+6}, 16, v{t+6}")
                for e in range(4):
                    dst = self.skreg(i) + e
                    if first:
                        o.append(f"v_mul_f32 v{dst}, v{gq}, v{t+4+e}")
                    else:
                        o.append(f"v_fmac_f32 v{dst}, v{gq}, v{t+4+e}")
            skip_ops += o
        for ks in range(20):
            kq, ksl = ks >> 2, ks & 3
            fill = []
            if ks < 19:
                a.wait(vm=f"h{ks+1}", lgkm=0)
                for k, it in enumerate(self.h_reads(ks + 1)):
                    fill.append((k, it))
            else:
                a.wait(lgkm=0)
            if ks + 7 < 20:
                for k, it in enumerate(self.h_dma(ks + 7)):
                    fill.append((2 + 5 * k, it))
            if ks == 12:
                def ld():
                    for i in range(5):
                        a(f"global_load_dwordx2 {v2(XS+2*i)}, v{XO}, {sp(pX)} offset:{32*i}", tag="ep")
                    for i in range(5):
                        a(f"global_load_dwordx2 {v2(DA+2*i)}, v{DO}, {sp(pDA)} offset:{32*i}", tag="ep")
                    for i in range(5):
                        a(f"global_load_dwordx2 {v2(DB+2*i)}, v{DO}, {sp(pDB)} offset:{32*i}", tag="ep")
                fill.append((19, ld))
            if ks == 5:
                for k, it in enumerate(self.drain_unit(4, 3, 7, "late")):
                    fill.append((9 + k, it))
                for k in range(4):
                    def g(k=k):
                        if k:
                            a(f"v_xor_b32 v9, {32*k}, v{OD}")
                        a(f"ds_read_b128 {v4(self.CV+16+4*k)}, v{9 if k else OD}", tag="late")
                    fill.append((13 + k, g))
            F = self.HF + 16 * (ks & 1)
            g = 0
            for nt in range(5):
                f, r = self.c_home(kq, nt)
                for mt in range(4):
                    d = self.acc2(nt, mt)
                    c = "0" if ks == 0 else v4(d)
                    a(f"v_mfma_f32_16x16x32_bf16 {v4(d)}, {v4(r+4*ksl, f)}, {v4(F+4*mt)}, {c}")
                    for gi, it in fill:
                        if gi == g:
                            it()
                    g += 1
        self.stamp("gemm2")
        a(f"v_add_u32 v9, {2*SLOT}, v{EW}")
        for nt in range(5):
            for mt in range(4):
                a(f"ds_write_b128 v{9 if mt >> 1 else EW}, {v4(self.acc2(nt, mt))} offset:{(mt & 1)*SLOT + 64*nt}", tag="ew")
        a.wait(vm="ep")
        for o in skip_ops:
            a(o)
        a.wait(lgkm=0)
        a("s_barrier")
        RB = 132
        for i in range(5):
            for wp in range(4):
                a(f"ds_read_b128 {v4(RB+16*i+4*wp)}, v{ER} offset:{wp*PIECE + 64*i}", tag=f"er{i}")
        for i in range(5):
            b = RB + 16 * i
            sk = self.skreg(i)
            a.wait(lgkm=f"er{i}")
            for hlf in range(2):
                a(f"v_pk_add_f32 {v2(b+2*hlf)}, {v2(b+2*hlf)}, {v2(b+4+2*hlf)}")
                a(f"v_pk_add_f32 {v2(b+8+2*hlf)}, {v2(b+8+2*hlf)}, {v2(b+12+2*hlf)}")
            for hlf in range(2):
                a(f"v_pk_fma_f32 {v2(sk+2*hlf)}, {v2(b+2*hlf)}, {v2(GG)}, {v2(sk+2*hlf)} op_sel_hi:[1,0,1]")
                a(f"v_pk_fma_f32 {v2(sk+2*hlf)}, {v2(b+8+2*hlf)}, {v2(GG)}, {v2(sk+2*hlf)} op_sel:[0,1,0] op_sel_hi:[1,1,1]")
            a(f"buffer_store_dwordx4 {v4(sk)}, v{OO}, {srd(SOUT)}, 0 offen offset:{64*i}", tag="out")
        self.stamp("outst")
        a(f"s_cmp_lg_u32 s{sRT}, 31")
        a("s_cbranch_scc1 L_noep")
        a(f"s_or_b32 s{sT0}, s{sDG}, s{sW}")
        a(f"s_cmp_lg_u32 s{sT0}, 0")
        a("s_cbranch_scc1 L_noep")
        a(f"v_mov_b32 v6, s{sTAG}")
        a(f"v_mov_b32 v7, 0")
        a("s_mov_b64 exec, 1")
        a(f"buffer_store_dword v6, v7, {srd(SWS)}, 0 offen offset:{WS_EPOCH}", counted=False)
        a("s_mov_b64 exec, -1")
        a("L_noep:")

    def skreg(self, i):
        return 100 + 4 * i

    def finish(self):
        a = self.a
        if self.cfg.prof:
            a.wait(vm=0)
            self.stamp("end")
            self.stamp("rt1")
            a("s_waitcnt lgkmcnt(0)")
            a(f"s_lshl_b32 s{sT0}, s2, 2")
            a(f"s_add_u32 s{sT0}, s{sT0}, s{sW}")
            a(f"s_lshl_b32 s{sT0}, s{sT0}, 7")
            a(f"s_add_u32 s{sT0}, s{sT0}, {WS_PROF}")
            a("v_mov_b32 v6, 0")
            a("s_mov_b64 exec, 1")
            for k in range(self.nstamp):
                a(f"v_mov_b32 v7, s{STAMP_REGS[k]}")
                a(f"buffer_store_dword v7, v6, {srd(SWS)}, s{sT0} offen offset:{4*k}")
            a(f"s_getreg_b32 s{sT1}, hwreg(HW_REG_XCC_ID)")
            a(f"v_mov_b32 v7, s{sT1}")
            a(f"buffer_store_dword v7, v6, {srd(SWS)}, s{sT0} offen offset:124")
        a("L_end:")
        a("s_endpgm")

    def build(self):
        self.prologue()
        self.gemm1()
        self.scan()
        self.gemm2()
        self.finish()
        n = self.a.fix_hazards(verbose=self.cfg.verbose)
        errs = self.a.check_waits()
        for e in errs:
            print("WAIT ERROR:", e, file=sys.stderr)
        assert not errs
        print("wait states inserted:", n, " instructions:", len(self.a.ins), file=sys.stderr)
        ref = open(os.path.join(os.path.dirname(os.path.abspath(__file__)), "..", "cdna_kernels", NAME + ".s.ref")).read()
        head = []
        for line in ref.split("\n"):
            if line.startswith("; @launch"):
                break
            head.append(line)
        txt = "\n".join(head) + f"\n; @launch grid=(256,1,1) block=(256,1,1) lds={LDS_BYTES}\n"
        txt += f""".amdgcn_target "amdgcn-amd-amdhsa--gfx950"
.text
.globl {NAME}_kernel
.p2align 8
.type {NAME}_kernel,@function
{NAME}_kernel:
"""
        txt += self.a.text()
        txt += f""".section .rodata,"a"
.p2align 6
.amdhsa_kernel {NAME}_kernel
  .amdhsa_next_free_vgpr 512
  .amdhsa_next_free_sgpr 102
  .amdhsa_accum_offset 256
  .amdhsa_group_segment_fixed_size 0
  .amdhsa_kernarg_size 176
  .amdhsa_user_sgpr_count 2
  .amdhsa_user_sgpr_kernarg_segment_ptr 1
  .amdhsa_system_sgpr_workgroup_id_x 1
  .amdhsa_float_denorm_mode_32 3
.end_amdhsa_kernel
"""
        return txt


def main():
    p = argparse.ArgumentParser()
    p.add_argument("-o", default=None)
    p.add_argument("--prof", type=int, default=0)
    p.add_argument("--place", type=int, default=2)
    p.add_argument("--pf2", type=int, default=0)
    p.add_argument("--dma_burst", type=int, default=0)
    p.add_argument("--r2_early", type=int, default=1)
    p.add_argument("--spin", type=int, default=20000)
    p.add_argument("--verbose", type=int, default=0)
    cfg = p.parse_args()
    g = Gen(cfg)
    txt = g.build()
    out = cfg.o or os.path.join(os.path.dirname(os.path.abspath(__file__)), "..", "cdna_kernels", NAME + ".s")
    open(out, "w").write(txt)
    if cfg.prof:
        open(out + ".stamps", "w").write("\n".join(g.stamp_names))


if __name__ == "__main__":
    main()
```

```python
import re

REG_RE = re.compile(r"(?<![\w.])(-?)(?:abs\()?([vas])(?:(\d+)|\[(\d+):(\d+)\])")


def regs_of(tok):
    out = set()
    t = tok.strip()
    if t in ("vcc", "vcc_lo", "vcc_hi"):
        return {("s", "vcc")}
    if t in ("exec", "exec_lo", "exec_hi"):
        return {("s", "exec")}
    if t == "m0":
        return {("s", "m0")}
    m = REG_RE.match(t)
    if m:
        f = m.group(2)
        if m.group(3) is not None:
            out.add((f, int(m.group(3))))
        else:
            for i in range(int(m.group(4)), int(m.group(5)) + 1):
                out.add((f, i))
    return out


TRANS = ("v_exp_f32", "v_log_f32", "v_rcp_f32", "v_rsq_f32", "v_sqrt_f32", "v_sin_f32", "v_cos_f32")


class Ins:
    __slots__ = ("text", "op", "kind", "rd", "wr", "srcc", "srcab", "tag", "label", "target", "states",
                 "dpp", "lds_dma", "wide_store", "sgpr_rd_vmem", "passes", "counted", "waits")

    def __init__(self, text, tag=None, counted=True):
        self.text = text
        self.tag = tag
        self.counted = counted
        self.label = None
        self.target = None
        self.rd = set()
        self.wr = set()
        self.srcc = set()
        self.srcab = set()
        self.states = 1
        self.dpp = False
        self.lds_dma = False
        self.wide_store = set()
        self.passes = 0
        self.waits = {}
        t = text.split(";")[0].strip()
        if t.endswith(":"):
            self.label = t[:-1]
            self.kind = "label"
            self.op = ""
            self.states = 0
            return
        if t.startswith(".") or not t:
            self.kind = "dir"
            self.op = ""
            self.states = 0
            return
        parts = t.split(None, 1)
        op = parts[0]
        self.op = op
        rest = parts[1] if len(parts) > 1 else ""
        ops = []
        cur = ""
        depth = 0
        for ch in rest:
            if ch in "[(":
                depth += 1
            if ch in "])":
                depth -= 1
            if ch == "," and depth == 0:
                ops.append(cur.strip())
                cur = ""
            else:
                cur += ch
        if cur.strip():
            ops.append(cur.strip())
        mods = ""
        if ops:
            sp = ops[-1].split(None, 1)
            ops[-1] = sp[0]
            mods = sp[1] if len(sp) > 1 else ""
        R = [regs_of(o) for o in ops]

        def u(lst):
            s = set()
            for x in lst:
                s |= x
            return s

        if op.startswith("v_mfma"):
            self.kind = "mfma"
            self.wr = R[0]
            self.srcab = R[1] | R[2]
            self.srcc = R[3]
            self.rd = self.srcab | self.srcc
            self.passes = 8 if "32x32x16" in op else 4
        elif op.startswith("v_cmp"):
            self.kind = "valu"
            self.wr = R[0]
            self.rd = u(R[1:])
        elif op.startswith("v_permlane"):
            self.kind = "valu"
            self.wr = R[0] | R[1]
            self.rd = R[0] | R[1]
        elif op.startswith("v_"):
            self.kind = "valu"
            self.wr = R[0]
            self.rd = u(R[1:])
            if op.startswith(("v_fmac", "v_dot2c", "v_writelane")) or "_dpp" in op:
                self.rd |= R[0]
            if op.startswith(("v_add_co", "v_sub_co", "v_addc_co", "v_div_scale")):
                self.wr = R[0] | R[1]
                self.rd = u(R[2:])
            if op.startswith("v_cndmask") and len(ops) == 3:
                self.rd |= {("s", "vcc")}
            if "_dpp" in op or "row_" in mods or "quad_perm" in mods:
                self.dpp = True
        elif op.startswith("ds_"):
            self.kind = "ds"
            if op.startswith("ds_read") or "permute" in op or "swizzle" in op:
                self.wr = R[0]
                self.rd = u(R[1:])
            else:
                self.rd = u(R)
        elif op.startswith(("buffer_", "global_")):
            self.kind = "vmem"
            is_lds = re.search(r"\blds\b", mods) is not None
            if "load" in op:
                if is_lds:
                    self.lds_dma = True
                    self.rd = u(R) | {("s", "m0")}
                else:
                    self.wr = R[0]
                    self.rd = u(R[1:])
                    if "d16" in op:
                        self.rd |= R[0]
            elif "store" in op:
                self.rd = u(R)
                data = R[0] if op.startswith("buffer_") else R[1]
                if op.endswith(("x3", "x4")):
                    self.wide_store = data
            elif "atomic" in op:
                self.rd = u(R)
                if "sc0" in mods:
                    self.wr = R[0]
            else:
                self.rd = u(R)
        elif op.startswith(("s_load", "s_memtime", "s_memrealtime", "s_buffer_load")):
            self.kind = "smem"
            self.wr = R[0]
            self.rd = u(R[1:])
        elif op == "s_waitcnt":
            self.kind = "wait"
            for k, n in re.findall(r"(vmcnt|lgkmcnt)\((\d+)\)", rest):
                self.waits[k] = int(n)
        elif op == "s_nop":
            self.kind = "nop"
            self.states = int(ops[0], 0) + 1
        elif op.startswith(("s_branch", "s_cbranch")):
            self.kind = "branch"
            self.target = ops[0]
            if "vcc" in op:
                self.rd = {("s", "vcc")}
        elif op in ("s_barrier", "s_endpgm", "s_sleep", "s_setprio"):
            self.kind = "misc"
        elif op.startswith("s_"):
            self.kind = "salu"
            if op.startswith("s_cmp") or op.startswith("s_bitcmp"):
                self.rd = u(R)
            else:
                self.wr = R[0]
                self.rd = u(R[1:])
                if "saveexec" in op:
                    self.wr |= {("s", "exec")}
                    self.rd |= {("s", "exec")}
                if op.startswith(("s_addk", "s_mulk")):
                    self.rd |= R[0]
        else:
            raise ValueError("unknown instruction: " + text)


def vg(s):
    return {r for r in s if r[0] in "va"}


def sg(s):
    return {r for r in s if r[0] == "s"}


def need(p, c):
    n = 0
    if p.kind == "valu":
        pv = vg(p.wr)
        ps = sg(p.wr)
        if c.kind == "mfma" and pv & c.rd:
            n = max(n, 2)
        if c.kind == "valu":
            if pv & c.rd:
                if c.dpp or c.op.startswith("v_permlane"):
                    n = max(n, 2)
                if c.op.startswith(("v_readlane", "v_readfirstlane")):
                    n = max(n, 1)
                if p.op.startswith(TRANS) and not c.op.startswith(TRANS):
                    n = max(n, 1)
            if p.op.startswith("v_dot2") and (pv & (c.rd | c.wr)):
                if not (c.op == p.op):
                    n = max(n, 3)
            if ps & c.rd:
                n = max(n, 4 if c.op.startswith(("v_readlane", "v_writelane")) else 2)
        if c.kind == "vmem" and ps & c.rd:
            n = max(n, 5)
        if p.op.startswith("v_dot2") and c.kind in ("vmem", "ds", "mfma") and pv & c.rd:
            n = max(n, 3)
    if p.kind == "mfma":
        big = 8 if p.passes == 4 else 12
        if c.kind == "mfma":
            if p.wr & c.srcab:
                n = max(n, big)
            if p.wr & c.srcc and not (p.wr == c.srcc and p.passes == c.passes):
                n = max(n, big - 2)
            if p.wr & c.wr and not (p.wr == c.srcc and p.passes == c.passes):
                n = max(n, big)
        elif c.kind in ("valu", "vmem", "ds"):
            if p.wr & (c.rd | c.wr):
                n = max(n, big)
            if p.srcc & c.wr:
                n = max(n, 3 if p.passes == 4 else 7)
    if p.kind == "vmem" and p.wide_store:
        if p.wide_store & c.wr:
            n = max(n, 2)
    if p.kind == "salu" and ("s", "m0") in p.wr and c.lds_dma:
        n = max(n, 1)
    return n


class Asm:
    def __init__(self):
        self.ins = []
        self.bgq = []
        self.bg_period = 0
        self.bg_acc = 0
        self._in_bg = False

    def __call__(self, text, tag=None, counted=True):
        for line in text.split("\n"):
            if line.strip():
                i = Ins(line.strip(), tag, counted)
                self.ins.append(i)
                if self.bg_period and not self._in_bg and i.kind in ("valu", "ds"):
                    self.bg_acc += 1
                    if self.bg_acc >= self.bg_period and self.bgq:
                        self.bg_acc = 0
                        self.bg_step()

    def bg_step(self, n=1):
        self._in_bg = True
        for _ in range(n):
            if self.bgq:
                self.bgq.pop(0)()
        self._in_bg = False

    def bg(self, items, period):
        self.bgq += items
        self.bg_period = period

    def bg_pause(self):
        p, self.bg_period = self.bg_period, 0
        return p

    def bg_flush(self):
        self.bg_period = 0
        self.bg_step(len(self.bgq))

    def _count_after(self, kind, tag):
        key = "vmcnt" if kind == "vmem" else "lgkmcnt"
        n = 0
        total = 0
        waits = []
        for i in reversed(self.ins):
            if i.kind == "wait" and key in i.waits:
                waits.append((n, i.waits[key]))
            if i.kind == kind:
                if i.tag == tag:
                    for after, cnt in waits:
                        if n - after >= cnt:
                            return None
                    return n
                if i.counted:
                    n += 1
        raise KeyError("no %s op tagged %r" % (kind, tag))

    def wait(self, vm=None, lgkm=None):
        parts = []
        if vm is not None:
            n = vm if isinstance(vm, int) else self._count_after("vmem", vm)
            if n is not None:
                assert n <= 63, n
                parts.append("vmcnt(%d)" % n)
        if lgkm is not None:
            n = lgkm if isinstance(lgkm, int) else self._count_after("ds", lgkm)
            if n is not None:
                parts.append("lgkmcnt(%d)" % min(n, 15))
        if parts:
            self("s_waitcnt " + " ".join(parts))

    def fix_hazards(self, verbose=False):
        total = 0
        while True:
            ins = self.ins
            labels = {x.label: k for k, x in enumerate(ins) if x.label}
            preds = {}
            for k, x in enumerate(ins):
                if x.kind == "branch":
                    preds.setdefault(labels[x.target], []).append(k)
            changed = False
            out = []
            for k, c in enumerate(ins):
                if c.kind in ("valu", "mfma", "vmem", "ds", "salu", "smem"):
                    worst = 0
                    stack = [(k - 1, 0)]
                    seen = set()
                    while stack:
                        j, dist = stack.pop()
                        while j >= 0 and dist < 20:
                            if (j, dist) in seen:
                                break
                            seen.add((j, dist))
                            p = ins[j]
                            if p.label:
                                for b in preds.get(j, ()):
                                    stack.append((b, dist))
                            r = need(p, c)
                            if r > dist:
                                worst = max(worst, r - dist)
                            dist += p.states
                            j -= 1
                    if worst:
                        out.append(Ins("s_nop %d" % (worst - 1)))
                        total += worst
                        changed = True
                        if verbose:
                            print("nop", worst, "before", c.text)
                        out.extend(ins[k:])
                        break
                out.append(c)
            self.ins = out
            if not changed:
                return total

    def check_waits(self):
        vq, lq = [], []
        errs = []
        smem = set()
        for k, x in enumerate(self.ins):
            if x.kind == "wait":
                if "vmcnt" in x.waits:
                    n = x.waits["vmcnt"]
                    vq = vq[len(vq) - n:] if n < len(vq) and n > 0 else ([] if n == 0 else vq)
                if "lgkmcnt" in x.waits:
                    n = x.waits["lgkmcnt"]
                    lq = lq[len(lq) - n:] if n < len(lq) and n > 0 else ([] if n == 0 else lq)
                    if n == 0:
                        smem = set()
                continue
            touched = x.rd | x.wr
            for q in (vq, lq):
                for p in q:
                    if p.wr & touched:
                        errs.append("line %d: %s touches %s of un-waited %s" % (k, x.text, sorted(p.wr & touched)[:2], p.text))
            if smem & touched:
                errs.append("line %d: %s touches un-waited scalar load %s" % (k, x.text, sorted(smem & touched)[:2]))
            if x.kind == "vmem":
                vq.append(x)
                if len(vq) > 63:
                    errs.append("line %d: more than 63 vmem ops outstanding" % k)
            elif x.kind == "ds":
                lq.append(x)
            elif x.kind == "smem" and not x.op.startswith("s_mem"):
                smem |= x.wr
        return errs

    def text(self):
        out = []
        for x in self.ins:
            out.append(x.text if x.label else "    " + x.text)
        return "\n".join(out) + "\n"
```

```python
import sys, os, argparse
sys.path.insert(0, os.path.dirname(os.path.abspath(__file__)))
from asmlib import Asm

NAME = "gated_mix__ssm_conv_s5__ssm_conv_s5__prompt"

WS_EPOCH = 0
WS_FLAG = 4096
WS_CARRY = 135168
WS_H = 524288
WS_PROF = WS_H + 10485760
WS_USED = WS_PROF + 1024 * 128

SLOT = 36864
PIECE = 9216
TOP = 4 * SLOT
TAB = TOP
PART1 = TOP + 10240
PART2 = PART1 + 2560
LDS_BYTES = 163840

sTC, sCG, sRT, sDG, sW, sBW, sTAG, sK = 4, 5, 6, 7, 8, 9, 10, 11
sT0, sT1, sT2, sT3 = 12, 13, 14, 15
SX, SB, SCR, SCI, SWS, SOUT = 16, 20, 24, 28, 32, 36
KA = 40
pX, pLre, pLim, pBre, pBim, pCre, pCim, pDT, pDA = 40, 42, 44, 46, 48, 50, 52, 54, 56
pDB, pGW, pOUT, pWS = 74, 76, 78, 80
sHB, sHE = 58, 59
sKQ = 82
STAMP_REGS = list(range(88, 102, 2)) + [42, 44, 46, 48, 50, 52, 54, 60, 62, 64, 66, 68, 70, 72]
sSPIN = 3


def srd(b):
    return "s[%d:%d]" % (b, b + 3)


def sp(b):
    return "s[%d:%d]" % (b, b + 1)


def v2(b):
    return "v[%d:%d]" % (b, b + 1)


def v4(b, f="v"):
    return "%s[%d:%d]" % (f, b, b + 3)


class Gen:
    def __init__(self, cfg):
        self.cfg = cfg
        self.a = Asm()
        self.nstamp = 0
        self.stamp_names = []

    def stamp(self, name):
        if not self.cfg.prof:
            return
        op = "s_memrealtime" if name.startswith("rt") else "s_memtime"
        self.a("%s %s" % (op, sp(STAMP_REGS[self.nstamp])))
        self.stamp_names.append(name)
        self.nstamp += 1

    def cmul(self, d, x, y):
        a = self.a
        a(f"v_pk_mul_f32 {v2(d)}, {v2(x)}, {v2(y)} op_sel_hi:[1,0]")
        a(f"v_pk_fma_f32 {v2(d)}, {v2(x)}, {v2(y)}, {v2(d)} op_sel:[1,1,0] op_sel_hi:[0,1,1] neg_lo:[1,0,0]")

    def cfma1(self, d, x, y, c):
        self.a(f"v_pk_fma_f32 {v2(d)}, {v2(x)}, {v2(y)}, {v2(c)} op_sel_hi:[1,0,1]")

    def cfma2(self, d, x, y):
        self.a(f"v_pk_fma_f32 {v2(d)}, {v2(x)}, {v2(y)}, {v2(d)} op_sel:[1,1,0] op_sel_hi:[0,1,1] neg_lo:[1,0,0]")

    def cfma(self, d, x, y, c):
        self.cfma1(d, x, y, c)
        self.cfma2(d, x, y)

    def prologue(self):
        a, cfg = self.a, self.cfg
        a(f"s_load_dwordx16 s[{KA}:{KA+15}], s[0:1], 0")
        a(f"s_load_dwordx16 s[{KA+16}:{KA+31}], s[0:1], 64")
        a(f"s_load_dwordx8 s[{KA+32}:{KA+39}], s[0:1], 128")
        a(f"s_load_dwordx2 {sp(pWS)}, s[0:1], 168")
        a("s_cmp_ge_u32 s2, 0x100")
        a("s_cbranch_scc1 L_end")
        a(f"s_getpc_b64 {sp(sT0)}")
        a("L_pc:")
        a("v_lshlrev_b32 v18, 7, v0")
        a("v_min_u32 v19, L_end-L_pc, v18")
        a(f"global_load_dword v255, v19, {sp(sT0)}", tag="pf")
        self.stamp("rt0")
        self.stamp("start")
        a("v_lshrrev_b32 v18, 6, v0")
        a(f"s_and_b32 s{sT2}, s2, 7")
        a(f"s_lshr_b32 s{sT3}, s2, 3")
        a(f"v_readfirstlane_b32 s{sW}, v18")
        L, R8, SL, F0, T0, T1, C, Q = 196, 197, 198, 199, 200, 201, 202, 203
        ta, tb = {1: (1, 4), 2: (2, 3), 3: (3, 2)}[cfg.place]
        a(f"s_lshr_b32 s{sTC}, s{sT2}, {4 - tb}")
        a(f"s_lshl_b32 s{sTC}, s{sTC}, {ta}")
        a(f"s_lshr_b32 s{sT0}, s{sT3}, {tb}")
        a(f"s_add_u32 s{sTC}, s{sTC}, s{sT0}")
        a(f"s_and_b32 s{sCG}, s{sT2}, {(16 >> tb) - 1}")
        a(f"s_lshl_b32 s{sCG}, s{sCG}, {tb}")
        a(f"s_and_b32 s{sT1}, s{sT3}, {(1 << tb) - 1}")
        a(f"s_add_u32 s{sCG}, s{sCG}, s{sT1}")
        if cfg.rot:
            a(f"s_mul_i32 s{sT0}, s{sT0}, {160 >> ta}")
            a(f"s_mul_i32 s{sT1}, s{sT1}, {160 >> tb}")
            a(f"s_add_u32 s{sK}, s{sT0}, s{sT1}")
            a(f"s_lshr_b32 s{sK}, s{sK}, 4")
            a(f"s_sub_u32 s{sT0}, s{sK}, 10")
            a(f"s_cselect_b32 s{sK}, s{sK}, s{sT0}")
            a(f"s_lshl_b32 s{sK}, s{sK}, 7")
        else:
            a(f"s_mov_b32 s{sK}, 0")
        a(f"v_and_b32 v{L}, 63, v0")
        a(f"v_lshrrev_b32 v{R8}, 3, v{L}")
        a(f"v_and_b32 v{SL}, 7, v{L}")
        a(f"v_lshrrev_b32 v{Q}, 4, v{L}")
        a(f"v_xor_b32 v{F0}, v{Q}, v{SL}")
        a(f"v_lshlrev_b32 v{F0}, 4, v{F0}")
        a(f"v_lshrrev_b32 v{T0}, 5, v{L}")
        a(f"v_and_b32 v{T1}, 3, v{R8}")
        a(f"v_lshl_add_u32 v{T0}, v{T0}, 3, v{T1}")
        a(f"v_mul_u32_u24 v{T0}, 1280, v{T0}")
        a(f"v_xor_b32 v{T1}, 64, v{F0}")
        a(f"v_add_u32 v1, v{T0}, v{F0}")
        a(f"v_add_u32 v2, v{T0}, v{T1}")
        a(f"v_add_u32 v2, {16*1280-1024}, v2")
        a(f"v_add_u32 v3, {4*1280-2048}, v1")
        a(f"v_add_u32 v4, {4*1280-2048}, v2")
        a(f"s_mul_i32 s{sBW}, s{sW}, {PIECE}")
        a(f"s_lshr_b32 s{sT0}, s{sW}, 1")
        a(f"s_lshl_b32 s{sT1}, s{sT0}, 6")
        a(f"s_mul_i32 s{sT0}, s{sT0}, {8*1280}")
        a(f"v_mul_u32_u24 v{T0}, 1280, v{R8}")
        a(f"v_xor_b32 v{T1}, s{sT1}, v{F0}")
        a(f"v_add3_u32 v5, v{T0}, v{T1}, s{sT0}")
        for n in range(1, 5):
            a(f"v_add_u32 v{5+n}, {n*16*1280 - 1024*(n & 3)}, v5")
        a(f"s_and_b32 s{sT1}, s{sCG}, 7")
        a(f"s_mul_i32 s{sT1}, s{sT1}, 80")
        a(f"s_mul_i32 s{sT0}, s{sW}, 20")
        a(f"v_min_u32 v{T0}, 19, v{L}")
        a(f"v_add_u32 v204, s{sT0}, v{T0}")
        a(f"v_add_lshl_u32 v{T0}, v204, s{sT1}, 1")
        a(f"s_mul_i32 s{sT1}, s{sT1}, 1280")
        a(f"s_lshl_b32 s{sT0}, s{sTC}, 2")
        a(f"s_add_u32 s{sT0}, s{sT0}, s{sW}")
        a(f"s_mul_i32 s{sT0}, s{sT0}, {32*1280}")
        a(f"s_mov_b32 s{SX+3}, 0x20000")
        a(f"s_mov_b32 s{SB+3}, 0x20000")
        a(f"s_sub_u32 s{SX+2}, 2621440, s{sT0}")
        a(f"s_sub_u32 s{SB+2}, 819200, s{sT1}")
        a("s_waitcnt lgkmcnt(0)")
        self.stamp("karg")
        a(f"s_add_u32 s{SX}, s{pX}, s{sT0}")
        a(f"s_addc_u32 s{SX+1}, s{pX+1}, 0")
        a(f"s_bitcmp1_b32 s{sW}, 0")
        a(f"s_cselect_b64 {sp(SB)}, {sp(pBim)}, {sp(pBre)}")
        a(f"s_cselect_b64 {sp(SCR)}, {sp(pBim+18)}, {sp(pBre+18)}")
        a(f"s_bitcmp1_b32 s{sCG}, 3")
        a(f"s_cselect_b64 {sp(SB)}, {sp(SCR)}, {sp(SB)}")
        a(f"s_cselect_b64 {sp(pLre)}, {sp(pLre+18)}, {sp(pLre)}")
        a(f"s_cselect_b64 {sp(pLim)}, {sp(pLim+18)}, {sp(pLim)}")
        a(f"s_cselect_b64 {sp(pDT)}, {sp(pDT+18)}, {sp(pDT)}")
        a(f"s_add_u32 s{SB}, s{SB}, s{sT1}")
        a(f"s_addc_u32 s{SB+1}, s{SB+1}, 0")
        st0 = self.dma_stage(0)
        for it in st0[:cfg.par_after]:
            it()
        a(f"global_load_ushort v206, v{T0}, {sp(pLre)}", tag="par")
        a(f"global_load_ushort v207, v{T0}, {sp(pLim)}", tag="par")
        a(f"global_load_ushort v208, v{T0}, {sp(pDT)}", tag="par")
        for it in st0[cfg.par_after:]:
            it()
        a(f"s_load_dword s{sTAG}, {sp(pWS)}, {WS_EPOCH}")
        self.stamp("dma0")
        ra, rb = {1: (2, 3), 2: (3, 2)}[cfg.place2]
        a(f"s_lshr_b32 s{sRT}, s{sT2}, {3 - rb}")
        a(f"s_lshl_b32 s{sRT}, s{sRT}, {ra}")
        a(f"s_lshr_b32 s{sT0}, s{sT3}, {rb}")
        a(f"s_add_u32 s{sRT}, s{sRT}, s{sT0}")
        a(f"s_and_b32 s{sDG}, s{sT2}, {(8 >> rb) - 1}")
        a(f"s_lshl_b32 s{sDG}, s{sDG}, {rb}")
        a(f"s_and_b32 s{sT1}, s{sT3}, {(1 << rb) - 1}")
        a(f"s_add_u32 s{sDG}, s{sDG}, s{sT1}")
        if cfg.rot2:
            a(f"s_add_u32 s{sT0}, s{sT0}, s{sT1}")
            for _ in range(2):
                a(f"s_sub_u32 s{sT1}, s{sT0}, 5")
                a(f"s_cselect_b32 s{sT0}, s{sT0}, s{sT1}")
        else:
            a(f"s_mov_b32 s{sT0}, 0")
        a(f"s_lshl_b32 s{sKQ}, s{sT0}, 7")
        for k in range(1, 5):
            a(f"s_add_u32 s{sKQ+k}, s{sKQ+k-1}, 128")
            a(f"s_cmp_eq_u32 s{sKQ+k}, 640")
            a(f"s_cselect_b32 s{sKQ+k}, 0, s{sKQ+k}")
        a(f"v_lshlrev_b32 v204, 3, v204")
        a(f"v_add_u32 v204, {TAB}, v204")
        a(f"v_and_b32 v{C}, 15, v{L}")
        a(f"v_lshrrev_b32 v{T0}, 1, v{C}")
        a(f"v_xor_b32 v{T0}, v{T0}, v{Q}")
        a(f"v_lshlrev_b32 v{T0}, 4, v{T0}")
        a(f"v_lshl_add_u32 v{T1}, v{C}, 7, v{T0}")
        a(f"v_add_u32 v10, s{sBW}, v{T1}")
        a(f"v_xor_b32 v11, 64, v10")
        a(f"v_add_u32 v12, {2*SLOT}, v10")
        a(f"v_add_u32 v13, {2*SLOT}, v11")
        a(f"v_and_b32 v{T1}, 7, v{C}")
        a(f"v_lshl_add_u32 v{T0}, v{T1}, 7, v{T0}")
        a(f"v_lshrrev_b32 v{T1}, 3, v{C}")
        a(f"v_mul_u32_u24 v{T1}, {2*PIECE}, v{T1}")
        a(f"v_add_u32 v{T0}, 4096, v{T0}")
        a(f"v_add_u32 v14, v{T0}, v{T1}")
        a(f"v_xor_b32 v15, 64, v14")
        a(f"v_add_u32 v16, {2*SLOT}, v14")
        a(f"v_add_u32 v17, {2*SLOT}, v15")
        a(f"s_bitcmp1_b32 s{sW}, 1")
        a(f"s_cselect_b64 {sp(SCR)}, {sp(pCre+18)}, {sp(pCre)}")
        a(f"s_cselect_b64 {sp(SCI)}, {sp(pCim+18)}, {sp(pCim)}")
        a(f"s_mul_i32 s{sT0}, s{sDG}, {80*1280}")
        a(f"s_and_b32 s{sT1}, s{sW}, 1")
        a(f"s_mul_i32 s{sT1}, s{sT1}, 640")
        a(f"s_add_u32 s{sT0}, s{sT0}, s{sT1}")
        a(f"s_add_u32 s{SCR}, s{SCR}, s{sT0}")
        a(f"s_addc_u32 s{SCR+1}, s{SCR+1}, 0")
        a(f"s_sub_u32 s{SCR+2}, 819200, s{sT0}")
        a(f"s_mov_b32 s{SCR+3}, 0x20000")
        a(f"s_add_u32 s{SCI}, s{SCI}, s{sT0}")
        a(f"s_addc_u32 s{SCI+1}, s{SCI+1}, 0")
        a(f"s_sub_u32 s{SCI}, s{SCI}, 2048")
        a(f"s_subb_u32 s{SCI+1}, s{SCI+1}, 0")
        a(f"s_sub_u32 s{SCI+2}, {819200+2048}, s{sT0}")
        a(f"s_mov_b32 s{SCI+3}, 0x20000")
        a(f"s_mov_b32 s{SWS}, s{pWS}")
        a(f"s_mov_b32 s{SWS+1}, s{pWS+1}")
        a(f"s_mov_b32 s{SWS+2}, {WS_USED}")
        a(f"s_mov_b32 s{SWS+3}, 0x20000")
        a(f"s_mov_b32 s{SOUT}, s{pOUT}")
        a(f"s_mov_b32 s{SOUT+1}, s{pOUT+1}")
        a(f"s_mov_b32 s{SOUT+2}, 5242880")
        a(f"s_mov_b32 s{SOUT+3}, 0x20000")
        self.c_addr_setup()
        a(f"s_lshl_b32 s{sT0}, s{sTC}, 7")
        a(f"s_lshr_b32 s{sT1}, s{sW}, 1")
        a(f"s_lshl_b32 s{sT1}, s{sT1}, 6")
        a(f"s_add_u32 s{sT0}, s{sT0}, s{sT1}")
        a(f"s_lshl_b32 s{sT1}, s{sCG}, 2")
        a(f"s_add_u32 s{sT0}, s{sT0}, s{sT1}")
        a(f"s_and_b32 s{sT1}, s{sW}, 1")
        a(f"s_lshl_b32 s{sT1}, s{sT1}, 1")
        a(f"s_add_u32 s{sT0}, s{sT0}, s{sT1}")
        a(f"v_lshrrev_b32 v{T0}, 5, v{L}")
        a(f"v_add_u32 v{T0}, s{sT0}, v{T0}")
        a(f"v_mul_u32_u24 v{T0}, 1280, v{T0}")
        a(f"v_and_b32 v{T1}, 31, v{L}")
        a(f"v_lshlrev_b32 v222, 4, v{T1}")
        a(f"v_lshlrev_b32 v223, 3, v{T1}")
        a(f"v_add_u32 v224, v{T0}, v222")
        a(f"v_add_u32 v225, v{T0}, v223")
        if cfg.st1_first:
            for it in self.dma_stage(1):
                it()
        self.params()
        if not cfg.st1_first:
            for it in self.dma_stage(1):
                it()
        a("s_waitcnt lgkmcnt(0)")
        a(f"s_mul_i32 s{sTAG}, s{sTAG}, 0x9E3779B1")
        a(f"s_add_u32 s{sTAG}, s{sTAG}, 0x7F4A7C15")
        self.stamp("dma1")

    def gate_loads(self):
        a = self.a
        GX, GW = self.GX, self.GW
        return [
            lambda: a(f"global_load_dwordx4 {v4(GX)}, v224, {sp(pX)}", tag="gate"),
            lambda: a(f"global_load_dwordx4 {v4(GX+4)}, v224, {sp(pX)} offset:512", tag="gate"),
            lambda: a(f"global_load_dwordx2 {v2(GX+8)}, v225, {sp(pX)} offset:1024", tag="gate"),
            lambda: a(f"global_load_dwordx4 {v4(GW)}, v222, {sp(pGW)}", tag="gate"),
            lambda: a(f"global_load_dwordx4 {v4(GW+4)}, v222, {sp(pGW)} offset:512", tag="gate"),
            lambda: a(f"global_load_dwordx2 {v2(GW+8)}, v223, {sp(pGW)} offset:1024", tag="gate")]

    GX, GW = 232, 242

    def params(self):
        a = self.a
        a.wait(vm="par")
        a("s_mov_b64 exec, 0xfffff")
        LR, LI, DT, T0, T1, T2 = 206, 207, 208, 209, 210, 211
        P = lambda k: 100 + 2 * k
        a(f"v_lshlrev_b32 v{DT}, 16, v{DT}")
        a(f"v_lshlrev_b32 v{LR}, 16, v{LR}")
        a(f"v_mul_f32 v{DT}, 0x3fb8aa3b, v{DT}")
        a(f"v_exp_f32 v{DT}, v{DT}")
        a(f"v_lshlrev_b32 v{LI}, 16, v{LI}")
        a(f"v_cvt_pk_bf16_f32 v{DT}, v{DT}, v{DT}")
        a(f"v_lshlrev_b32 v{DT}, 16, v{DT}")
        a(f"v_mul_f32 v{T0}, v{DT}, v{LR}")
        a(f"v_mul_f32 v{T1}, v{DT}, v{LI}")
        a(f"v_mul_f32 v{T0}, 0x3fb8aa3b, v{T0}")
        a(f"v_mul_f32 v{T1}, 0x3e22f983, v{T1}")
        a(f"v_exp_f32 v{T0}, v{T0}")
        a(f"v_rndne_f32 v{T2}, v{T1}")
        a(f"v_sub_f32 v{T1}, v{T1}, v{T2}")
        a(f"v_cos_f32 v{T2}, v{T1}")
        a(f"v_sin_f32 v{T1}, v{T1}")
        a(f"v_mov_b32 v{P(0)}, 1.0")
        a(f"v_mov_b32 v{P(0)+1}, 0")
        a(f"v_mul_f32 v{P(1)}, v{T0}, v{T2}")
        a(f"v_mul_f32 v{P(1)+1}, v{T0}, v{T1}")
        a(f"v_mul_f32 v{T0}, v{LR}, v{LR}")
        a(f"v_fmac_f32 v{T0}, v{LI}, v{LI}")
        a(f"v_rcp_f32 v{T0}, v{T0}")
        a(f"v_add_f32 v{T1}, -1.0, v{P(1)}")
        a(f"v_mul_f32 v{P(3)}, v{T1}, v{LR}")
        a(f"v_mul_f32 v{P(3)+1}, v{P(1)+1}, v{LR}")
        a(f"v_add_f32 v{T0}, v{T0}, v{T0}")
        a(f"v_fmac_f32 v{P(3)}, v{P(1)+1}, v{LI}")
        a(f"v_fma_f32 v{P(3)+1}, -v{T1}, v{LI}, v{P(3)+1}")
        a(f"v_mul_f32 v{P(3)}, v{P(3)}, v{T0}")
        a(f"v_mul_f32 v{P(3)+1}, v{P(3)+1}, v{T0}")
        self.cmul(P(2), P(1), P(1))
        self.cmul(P(16), P(2), P(2))
        self.cmul(P(4), P(16), P(16))
        for base in (4, 7, 10, 13):
            self.cmul(P(base + 1), P(base), P(base))
            self.cmul(P(base + 2), P(base + 1), P(base))
            if base < 13:
                self.cmul(P(base + 3), P(base + 1), P(base + 1))
        for e in range(16):
            a(f"ds_write_b64 v204, {v2(P(e))} offset:{e*640}", tag="tab")
        a("s_mov_b64 exec, -1")

    def dma_stage(self, s):
        a = self.a
        base = (s % 4) * SLOT
        out = []

        def mk(m0off, vreg, sr, off, last=False):
            def f():
                if m0off is not None:
                    a(f"s_add_u32 m0, s{sBW}, {base + m0off}")
                pol = self.cfg.xpol if sr == SX else self.cfg.bpol
                a(f"buffer_load_dwordx4 v{vreg}, {srd(sr)}, s{sK} offen offset:{off} {pol} lds", tag=f"st{s}")
                if last and s < 9:
                    a(f"s_add_u32 s{sK}, s{sK}, 128")
                    if self.cfg.rot:
                        a(f"s_cmp_eq_u32 s{sK}, 1280")
                        a(f"s_cselect_b32 s{sK}, 0, s{sK}")
            return f
        for j in range(4):
            out.append(mk(0 if j == 0 else None, 1 + j, SX, 1024 * j))
        for n in range(4):
            out.append(mk(4096 if n == 0 else None, 5 + n, SB, 1024 * n))
        out.append(mk(8192, 9, SB, 0, last=True))
        return out

    R1 = [(1, 2), (1, 3), (1, 4), (2, 0), (2, 1), (2, 2), (2, 3), (2, 4)]
    R2 = [(3, 0), (3, 1), (3, 2), (3, 3), (3, 4), (4, 0), (4, 1), (4, 2)]
    R3 = [(0, 0), (0, 1), (0, 2), (4, 3), (0, 3), (0, 4), (1, 0), (1, 1)]
    VHOME = [(0, 0), (0, 1), (0, 2), (0, 3), (0, 4), (1, 0), (1, 1)]
    RSLOT = [4, 5, 6, 7, 0, 1, 2, 3]
    VC0, VC1 = 18, 19
    CV = 20

    def c_home(self, kq, nt):
        if (kq, nt) in self.R1:
            return "a", 16 * self.R1.index((kq, nt))
        if (kq, nt) in self.R2:
            return "a", 128 + 16 * self.R2.index((kq, nt))
        if (kq, nt) == (4, 3):
            return "v", self.CV
        if (kq, nt) == (4, 4):
            return "v", self.CV + 16
        return "v", self.CV + 16 * self.VHOME.index((kq, nt))

    def c_addr_setup(self):
        a = self.a
        L, R8, T0, T1 = 252, 253, 18, 19
        a(f"v_and_b32 v{L}, 63, v0")
        a(f"v_lshrrev_b32 v{R8}, 3, v{L}")
        a(f"v_lshrrev_b32 v{T0}, 4, v{L}")
        a(f"v_and_b32 v{L}, 7, v{L}")
        a(f"v_xor_b32 v{T0}, v{T0}, v{L}")
        a(f"v_lshlrev_b32 v{T0}, 4, v{T0}")
        a(f"v_mul_u32_u24 v{R8}, 1280, v{R8}")
        a(f"v_xor_b32 v{T1}, 64, v{T0}")
        a(f"v_add_u32 v{self.VC0}, v{R8}, v{T0}")
        a(f"v_add_u32 v{self.VC1}, v{R8}, v{T1}")
        a(f"v_add_u32 v{self.VC1}, {8*1280-1024}, v{self.VC1}")

    def dma_unit(self, kq, nt, slot, tag):
        a = self.a
        out = []

        def mk(part, half):
            def f():
                off = part * 2048 + half * 1024
                if slot == "odd":
                    a(f"s_add_u32 m0, s{sBW}, {(part*2+half)*SLOT + 8192 - off}")
                elif off == 0:
                    a(f"s_add_u32 m0, s{sBW}, {(slot >> 1)*SLOT + (slot & 1)*4096}")
                if off == 0:
                    a(f"s_add_u32 s{sK}, s{sKQ+kq}, {nt*16*1280}")
                a(f"buffer_load_dwordx4 v{self.VC1 if half else self.VC0}, {srd(SCI if part else SCR)}, s{sK} offen offset:{off} {self.cfg.cpol} lds", tag=tag)
            return f
        for part in range(2):
            for half in range(2):
                out.append(mk(part, half))
        return out

    VCR = 10

    def c_read_setup(self):
        a = self.a
        T0, T1, T2 = 252, 253, 254
        a(f"v_and_b32 v{T0}, 15, v0")
        a(f"v_bfe_u32 v{T1}, v0, 4, 1")
        a(f"v_lshrrev_b32 v{T2}, 1, v{T0}")
        a(f"v_xor_b32 v{T1}, v{T1}, v{T2}")
        a(f"v_lshlrev_b32 v{T1}, 4, v{T1}")
        a(f"v_lshl_add_u32 v{T1}, v{T0}, 7, v{T1}")
        a(f"v_bfe_u32 v{T2}, v0, 5, 1")
        a(f"v_lshl_add_u32 v{T1}, v{T2}, 11, v{T1}")
        a(f"v_add_u32 v{self.VCR}, s{sBW}, v{T1}")
        for k in range(1, 4):
            a(f"v_xor_b32 v{self.VCR+k}, {32*k}, v{self.VCR}")
        for k in range(4):
            a(f"v_add_u32 v{self.VCR+4+k}, {2*SLOT}, v{self.VCR+k}")

    def drain_unit(self, kq, nt, slot, tag):
        a = self.a
        f, r = self.c_home(kq, nt)
        out = []
        for ksl in range(4):
            def g(ksl=ksl):
                p = slot >> 1
                a(f"ds_read_b128 {v4(r+4*ksl, f)}, v{self.VCR + 4*(p >> 1) + ksl} offset:{(p & 1)*SLOT + (slot & 1)*4096}", tag=tag)
            out.append(g)
        return out

    def bg_dma(self, rnd, i):
        a = self.a
        it = self.dma_unit(*(self.R2 if rnd == 2 else self.R3)[i], self.RSLOT[i], f"r{rnd}_{i}")
        first = it[0]

        def f():
            a.wait(lgkm=f"dr{rnd-1}_{i}")
            first()
        return [f] + it[1:]

    def bg_drain(self, rnd, i):
        a = self.a
        it = self.drain_unit(*(self.R1, self.R2, self.R3)[rnd - 1][i], self.RSLOT[i], f"dr{rnd}_{i}")
        first = it[0]

        def f():
            a.wait(vm=f"r{rnd}_{i}")
            first()
        return [f] + it[1:]

    ACC = 20

    def acc(self, m, n, part):
        return self.ACC + (n * 2 + part) * 8 + 4 * m

    def frag_reads(self, h):
        a = self.a
        s, u = h >> 1, h & 1
        slot = s % 4
        F = 100 + 48 * (h & 1)
        va = 10 + 2 * (slot >> 1) + u
        vb = 14 + 2 * (slot >> 1) + u
        so = (slot & 1) * SLOT
        out = []

        def rd(dst, vr, off):
            return lambda: a(f"ds_read_b128 {v4(dst)}, v{vr} offset:{off}", tag=f"fr{h}")
        out.append(rd(F, va, so))
        out.append(rd(F + 8, vb, so))
        out.append(rd(F + 4, va, so + 2048))
        for k in range(1, 10):
            n, part = k >> 1, k & 1
            out.append(rd(F + 8 + 4 * k, vb, so + part * PIECE + n * 1024))
        return out

    def gemm1(self):
        a, cfg = self.a, self.cfg
        a.wait(vm="st0")
        a("s_barrier")
        self.stamp("st0")
        for it in self.frag_reads(0):
            it()
        queue = self.dma_stage(2) + self.dma_stage(3)
        for h in range(20):
            s, u = h >> 1, h & 1
            fill = []
            if u == 1:
                if s < 9:
                    a.wait(vm=f"st{s+1}", lgkm=0)
                else:
                    a.wait(lgkm=0)
                a("s_barrier")
            else:
                a.wait(lgkm=0)
            rds = self.frag_reads(h + 1) if h < 19 else self.tab_reads1()
            for k, it in enumerate(rds):
                fill.append((k, it))
            if u == 1:
                if s + 4 <= 9:
                    queue += self.dma_stage(s + 4)
                    if s + 4 == 9:
                        queue += self.gate_loads()
                else:
                    sl = s % 4
                    k0 = 2 * (s - 6)
                    queue += self.dma_unit(*self.R1[k0], 2 * sl, f"r1_{k0}") + self.dma_unit(*self.R1[k0 + 1], 2 * sl + 1, f"r1_{k0+1}")
            take = min(len(queue), cfg.pace)
            if h >= 12:
                take = min(len(queue), cfg.pace_c)
            now, queue = queue[:take], queue[take:]
            if now:
                step = min(20.0 / len(now), cfg.maxstep)
                for k, it in enumerate(now):
                    fill.append((min(19, int(k * step + cfg.dma_phase)), it))
            F = 100 + 48 * (h & 1)
            g = 0
            for k in range(10):
                n, part = k >> 1, k & 1
                for m in range(2):
                    d = self.acc(m, n, part)
                    c = "0" if h == 0 else v4(d)
                    a(f"v_mfma_f32_16x16x32_bf16 {v4(d)}, {v4(F+4*m)}, {v4(F+8+4*k)}, {c}")
                    for gi, it in fill:
                        if gi == g:
                            it()
                    g += 1
        self.r1_rest = queue + self.dma_unit(4, 4, "odd", "r1_odd")
        self.stamp("gemm1")

    L1, L2, WQ = 196, 206, 216
    VP = 226
    VQ = 227
    U = 100

    def tab_reads1(self):
        a = self.a
        out = []

        def setup():
            a(f"v_and_b32 v{self.VP}, 15, v0")
            a(f"v_bfe_u32 v228, v0, 4, 2")
            a(f"v_lshlrev_b32 v{self.VP}, 3, v{self.VP}")
            a(f"v_add_u32 v{self.VP}, {TAB}, v{self.VP}")
        out.append(setup)

        def setup2():
            a(f"v_sub_u32 v229, 6, v228")
            a(f"v_cmp_eq_u32 vcc, 3, v228")
            a(f"v_mul_u32_u24 v229, 640, v229")
            a(f"v_cndmask_b32 v229, v229, 0, vcc".replace("v229, 0, vcc", "v229, v230, vcc"))
            a(f"v_add_u32 v{self.VQ}, v{self.VP}, v229")
        out.append(lambda: a("v_mov_b32 v230, 0"))
        out.append(setup2)
        for n in range(5):
            out.append(lambda n=n: a(f"ds_read_b64 {v2(self.L2+2*n)}, v{self.VP} offset:{2*640+128*n}", tag="t1"))
        for n in range(5):
            out.append(lambda n=n: a(f"ds_read_b64 {v2(self.L1+2*n)}, v{self.VP} offset:{1*640+128*n}", tag="t1"))
        for n in range(5):
            out.append(lambda n=n: a(f"ds_read_b64 {v2(self.WQ+2*n)}, v{self.VQ} offset:{128*n}", tag="t1"))
        out.append(self.c_read_setup)
        out.append(self.part_addr_setup)
        return out

    def part_addr_setup(self):
        a = self.a
        VPW, Q = 230 - 40, 228
        a(f"s_lshr_b32 s{sT0}, s{sW}, 1")
        a(f"s_lshl_b32 s{sT0}, s{sT0}, 8")
        a(f"s_and_b32 s{sT1}, s{sW}, 1")
        a(f"s_lshl_b32 s{sT1}, s{sT1}, 3")
        a(f"s_add_u32 s{sT0}, s{sT0}, s{sT1}")
        a(f"s_add_u32 s{sT0}, s{sT0}, {PART1}")
        a(f"v_and_b32 v2, 15, v0")
        a(f"v_lshlrev_b32 v2, 4, v2")
        a(f"v_lshrrev_b32 v1, 1, v{Q}")
        a(f"v_lshl_add_u32 v4, v1, 2, v2")
        a(f"v_add_u32 v4, s{sT0}, v4")
        a(f"v_and_b32 v1, 1, v{Q}")
        a(f"v_lshl_add_u32 v3, v1, 9, v4")
        a(f"v_add_u32 v1, {PART1}, v2")

    def swap_reduce(self, Z, part_base, vaddr):
        a = self.a
        for n in range(5):
            a(f"v_permlane32_swap_b32 v{Z+2*n}, v{Z+2*n+1}")
        for n in range(5):
            a(f"v_add_f32 v{Z+2*n}, v{Z+2*n}, v{Z+2*n+1}")
        a(f"v_mov_b32 v{Z+9}, v{Z+8}")
        a(f"v_permlane16_swap_b32 v{Z}, v{Z+2}")
        a(f"v_permlane16_swap_b32 v{Z+4}, v{Z+6}")
        a(f"v_permlane16_swap_b32 v{Z+8}, v{Z+9}")
        a(f"v_add_f32 v{Z}, v{Z}, v{Z+2}")
        a(f"v_add_f32 v{Z+4}, v{Z+4}, v{Z+6}")
        a(f"v_add_f32 v{Z+8}, v{Z+8}, v{Z+9}")
        a(f"ds_write_b32 v{vaddr}, v{Z} offset:{part_base}", tag="pw")
        a(f"ds_write_b32 v{vaddr}, v{Z+4} offset:{part_base+1024}", tag="pw")
        a(f"ds_write_b32 v{vaddr+1}, v{Z+8} offset:{part_base+2048}", tag="pw")

    def scan(self):
        a, cfg = self.a, self.cfg
        L1, L2, WQ, VP, U = self.L1, self.L2, self.WQ, self.VP, self.U
        E = 180
        Z = 100
        TA, TB = 110, 114
        VPW = 3
        Q = 228
        a.wait(lgkm="t1")
        a.bg(self.r1_rest, cfg.p1)
        for n in range(5):
            ur, ui = self.acc(0, n, 0), self.acc(0, n, 1)
            er, ei = ur, ui
            for k in range(1, 4):
                T = TA if k & 1 else TB
                a(f"v_pk_fma_f32 {v2(T)}, {v2(er)}, {v2(L2+2*n)}, {v2(ur+2*k)} op_sel_hi:[1,0,1]")
                a(f"v_pk_fma_f32 {v2(T+2)}, {v2(ei)}, {v2(L2+2*n)}, {v2(ui+2*k)} op_sel_hi:[1,0,1]")
                a(f"v_pk_fma_f32 {v2(T)}, {v2(ei)}, {v2(L2+2*n)}, {v2(T)} op_sel:[0,1,0] op_sel_hi:[1,1,1] neg_lo:[1,0,0] neg_hi:[1,0,0]")
                a(f"v_pk_fma_f32 {v2(T+2)}, {v2(er)}, {v2(L2+2*n)}, {v2(T+2)} op_sel:[0,1,0] op_sel_hi:[1,1,1]")
                er, ei = T, T + 2
            a(f"v_fma_f32 v{E+2*n}, v{L1+2*n}, v{er}, v{er+1}")
            a(f"v_fma_f32 v{E+2*n+1}, v{L1+2*n}, v{ei}, v{ei+1}")
            a(f"v_fma_f32 v{E+2*n}, -v{L1+2*n+1}, v{ei}, v{E+2*n}")
            a(f"v_fma_f32 v{E+2*n+1}, v{L1+2*n+1}, v{er}, v{E+2*n+1}")
            self.cmul(Z + 2 * n, E + 2 * n, WQ + 2 * n)
        a.bg_pause()
        self.swap_reduce(Z, 0, VPW)
        PN, PA, PL, PG = 110, 111, 112, 114
        a(f"v_lshl_add_u32 v{PN}, v{Q}, 2, s{sW}")
        a(f"v_min_u32 v{PA}, 4, v{PN}")
        a(f"v_lshl_add_u32 v{PL}, v{PA}, 7, v{VP}")
        a(f"ds_read_b64 {v2(PL)}, v{PL} offset:{7*640}", tag="p32")
        a(f"v_lshl_add_u32 v{PA}, v{PA}, 9, v1")
        a(f"s_lshl_b32 s{sT0}, s{sCG}, 4")
        a(f"s_add_u32 s{sT0}, s{sT0}, s{sTC}")
        a(f"s_mul_i32 s{sT0}, s{sT0}, 1280")
        a(f"s_add_u32 s{sT0}, s{sT0}, {WS_CARRY}")
        a(f"v_lshl_add_u32 v194, v{PN}, 8, v2")
        a(f"v_cmp_gt_u32 vcc, 5, v{PN}")
        a.wait(lgkm=0)
        a("s_barrier")
        a(f"ds_read_b128 {v4(120)}, v{PA}", tag="pr")
        a(f"ds_read_b128 {v4(124)}, v{PA} offset:256", tag="pr")
        a(f"v_mov_b32 v{PG+1}, s{sTAG}")
        a(f"v_mov_b32 v{PG+3}, s{sTAG}")
        a(f"s_and_saveexec_b64 {sp(sT2)}, vcc")
        a.wait(lgkm="pr")
        self.cfma(128, 120, PL, 122)
        self.cfma(130, 128, PL, 124)
        self.cfma(128, 130, PL, 126)
        a(f"v_mov_b32 v{PG}, v128")
        a(f"v_mov_b32 v{PG+2}, v129")
        a(f"buffer_store_dwordx4 {v4(PG)}, v194, {srd(SWS)}, s{sT0} offen sc1", tag="pub")
        a(f"s_mov_b64 exec, -1")
        self.stamp("pub")

        CF, L8 = L2, WQ
        for n in range(5):
            a(f"ds_read_b64 {v2(CF+2*n)}, v{VP} offset:{3*640+128*n}", tag="t2")
        for n in range(5):
            a(f"ds_read_b64 {v2(L8+2*n)}, v{VP} offset:{4*640+128*n}", tag="t2")
        a.bg_flush()
        items = []
        for i in range(8):
            items += self.bg_drain(1, i)
            if 0 <= i - 1 < cfg.n2:
                items += self.bg_dma(2, i - 1)
        if cfg.n2 == 8:
            items += self.bg_dma(2, 7)
        a.wait(lgkm="t2")
        a.bg(items, cfg.p2)
        for n in range(5):
            for j in range(8):
                ur, ui = self.acc(0, n, 0) + (j & ~1), self.acc(0, n, 1) + (j & ~1)
                o = j & 1
                d = U + 16 * n + 2 * j
                a(f"v_pk_mul_f32 {v2(d)}, {v2(CF+2*n)}, {v2(ur)} op_sel:[0,{o}] op_sel_hi:[1,{o}]")
                a(f"v_pk_fma_f32 {v2(d)}, {v2(CF+2*n)}, {v2(ui)}, {v2(d)} op_sel:[1,{o},0] op_sel_hi:[0,{o},1] neg_lo:[1,0,0]")
        A_, P_, C_, MU, L8Q, L32, X, WP = 20, 30, 40, 50, 60, 70, 80, 90
        SL, MC, V = 180, 216, 20
        a(f"v_and_b32 v90, 1, v{Q}")
        a(f"v_mul_u32_u24 v90, {4*640}, v90")
        a(f"v_add_u32 v90, v{VP}, v90")
        a(f"v_add_u32 v91, 3, v{Q}")
        a(f"v_cmp_eq_u32 vcc, 0, v{Q}")
        a(f"v_mul_u32_u24 v91, 640, v91")
        a(f"v_cndmask_b32 v91, v91, v230, vcc")
        a(f"v_add_u32 v91, v{VP}, v91")
        for n in range(5):
            a(f"ds_read_b64 {v2(MU+2*n)}, v90 offset:{128*n}", tag="t3")
        for n in range(5):
            a(f"ds_read_b64 {v2(L8Q+2*n)}, v91 offset:{128*n}", tag="t3")
        for n in range(5):
            a(f"ds_read_b64 {v2(L32+2*n)}, v{VP} offset:{7*640+128*n}", tag="t3")
        for n in range(5):
            a(f"v_mov_b64 {v2(A_+2*n)}, {v2(E+2*n)}")
        for n in range(5):
            a(f"v_permlane16_swap_b32 v{A_+2*n}, v{E+2*n}")
            a(f"v_permlane16_swap_b32 v{A_+2*n+1}, v{E+2*n+1}")
        for n in range(5):
            self.cfma(P_ + 2 * n, A_ + 2 * n, L8 + 2 * n, E + 2 * n)
        for n in range(5):
            a(f"v_mov_b64 {v2(C_+2*n)}, {v2(P_+2*n)}")
        for n in range(5):
            a(f"v_permlane32_swap_b32 v{C_+2*n}, v{P_+2*n}")
            a(f"v_permlane32_swap_b32 v{C_+2*n+1}, v{P_+2*n+1}")
        per = a.bg_pause()
        a("s_mov_b32 exec_hi, 0")
        for n in range(5):
            a(f"v_mov_b64 {v2(C_+2*n)}, 0")
        a("s_mov_b32 exec_lo, 0xffff")
        a("s_mov_b32 exec_hi, 0xffff")
        for n in range(5):
            a(f"v_mov_b64 {v2(A_+2*n)}, 0")
        a("s_mov_b64 exec, -1")
        a.bg_period = per
        a.wait(lgkm="t3")
        for n in range(5):
            self.cfma(P_ + 2 * n, C_ + 2 * n, MU + 2 * n, A_ + 2 * n)
        for n in range(5):
            a(f"ds_read_b64 {v2(X+2*n)}, v1 offset:{512*n}", tag="t4")
        for n in range(5):
            a(f"ds_read_b64 {v2(A_+2*n)}, v1 offset:{512*n+8}", tag="t4")
        for n in range(5):
            a(f"ds_read_b64 {v2(C_+2*n)}, v1 offset:{512*n+256}", tag="t4")
        a.bg_pause()
        a(f"s_add_u32 s{sT0}, s{sW}, 6")
        a(f"s_cmp_eq_u32 s{sW}, 0")
        a(f"s_cselect_b32 s{sT0}, 0, s{sT0}")
        a(f"s_mul_i32 s{sT0}, s{sT0}, 640")
        a(f"v_add_u32 v90, s{sT0}, v{VP}")
        for n in range(5):
            a(f"ds_read_b64 {v2(MU+2*n)}, v90 offset:{128*n}", tag="t4")
        a.wait(lgkm=0)
        a(f"s_cmp_lt_u32 s{sW}, 2")
        a("s_cbranch_scc1 L_x1")
        for n in range(5):
            self.cfma(A_ + 2 * n, X + 2 * n, L32 + 2 * n, A_ + 2 * n)
            a(f"v_mov_b64 {v2(X+2*n)}, {v2(A_+2*n)}")
        a(f"s_cmp_lt_u32 s{sW}, 3")
        a("s_cbranch_scc1 L_x1")
        for n in range(5):
            self.cfma(C_ + 2 * n, X + 2 * n, L32 + 2 * n, C_ + 2 * n)
            a(f"v_mov_b64 {v2(X+2*n)}, {v2(C_+2*n)}")
        a("L_x1:")
        a(f"s_cmp_lg_u32 s{sW}, 0")
        a("s_cbranch_scc1 L_x2")
        for n in range(5):
            a(f"v_mov_b64 {v2(X+2*n)}, 0")
        a("L_x2:")
        a.bg_period = per
        a(f"s_lshl_b32 s{sT0}, s{sW}, 2")
        a(f"s_sub_u32 s{sT1}, s{sTC}, s{sT0}")
        a(f"s_sub_u32 s{sT1}, s{sT1}, 1")
        a(f"v_sub_u32 v92, s{sT1}, v{Q}")
        a(f"v_max_i32 v93, 0, v92")
        a(f"v_and_b32 v90, 3, v93")
        a(f"v_lshrrev_b32 v91, 2, v93")
        a(f"v_cmp_eq_u32 vcc, 0, v90")
        a(f"v_add_u32 v90, 9, v90")
        a(f"v_mul_u32_u24 v90, 640, v90")
        a(f"v_cndmask_b32 v90, v90, v230, vcc")
        a(f"v_cmp_eq_u32 vcc, 0, v91")
        a(f"v_add_u32 v91, 12, v91")
        a(f"v_mul_u32_u24 v91, 640, v91")
        a(f"v_cndmask_b32 v91, v91, v230, vcc")
        a(f"v_add_u32 v90, v{VP}, v90")
        a(f"v_add_u32 v91, v{VP}, v91")
        for n in range(5):
            a(f"ds_read_b64 {v2(C_+2*n)}, v90 offset:{128*n}", tag="t5")
        for n in range(5):
            a(f"ds_read_b64 {v2(L32+2*n)}, v91 offset:{128*n}", tag="t5")
        for n in range(5):
            self.cfma(P_ + 2 * n, X + 2 * n, L8Q + 2 * n, P_ + 2 * n)
            self.cmul(SL + 2 * n, P_ + 2 * n, CF + 2 * n)
            self.cmul(X + 2 * n, L8Q + 2 * n, MU + 2 * n)
            self.cmul(MC + 2 * n, X + 2 * n, CF + 2 * n)
        a.wait(lgkm="t5")
        for n in range(5):
            self.cmul(V + 2 * n, C_ + 2 * n, L32 + 2 * n)
        self.gate()
        G = 40
        a(f"s_lshl_b32 s{sT1}, s{sCG}, 4")
        a(f"s_add_u32 s{sT1}, s{sT1}, s{sT0}")
        a(f"s_mul_i32 s{sT1}, s{sT1}, 1280")
        a(f"s_add_u32 s{sT1}, s{sT1}, {WS_CARRY}")
        a(f"v_mul_u32_u24 v90, 1280, v{Q}")
        a(f"v_add_u32 v90, v90, v2")
        for k in range(0, 20, 2):
            a(f"v_mov_b64 {v2(G+k)}, 0")
        a(f"v_cmp_le_i32 vcc, 0, v92")
        a.bg_flush()
        a(f"s_mov_b32 s{sSPIN}, {cfg.spin}")
        self.stamp("w1done")
        a.wait(vm=0)
        a(f"s_and_saveexec_b64 {sp(sT2)}, vcc")
        a("s_cbranch_execz L_got")
        a("L_poll1:")
        for n in range(5):
            a(f"buffer_load_dwordx4 {v4(G+4*n)}, v90, {srd(SWS)}, s{sT1} offen offset:{256*n} sc1", tag="g1")
        a(f"s_sub_u32 s{sSPIN}, s{sSPIN}, 1")
        a.wait(vm=0)
        a(f"v_min3_u32 v94, v{G+1}, v{G+3}, v{G+5}")
        a(f"v_max3_u32 v95, v{G+1}, v{G+3}, v{G+5}")
        for k in (7, 11, 15):
            a(f"v_min3_u32 v94, v94, v{G+k}, v{G+k+2}")
            a(f"v_max3_u32 v95, v95, v{G+k}, v{G+k+2}")
        a(f"v_min_u32 v94, v94, v{G+19}")
        a(f"v_max_u32 v95, v95, v{G+19}")
        a(f"v_cmp_ne_u32 vcc, s{sTAG}, v94")
        a(f"v_cmp_ne_u32 {sp(sT2)}, s{sTAG}, v95")
        a(f"s_or_b64 vcc, vcc, {sp(sT2)}")
        a(f"s_cmp_eq_u32 s{sSPIN}, 0")
        a("s_cbranch_scc1 L_got")
        a("s_cbranch_vccnz L_poll1")
        a("L_got:")
        a("s_mov_b64 exec, -1")
        self.stamp("got")
        Z2 = 60
        for n in range(5):
            a(f"v_pk_mul_f32 {v2(Z2+2*n)}, {v2(V+2*n)}, {v2(G+4*n)} op_sel_hi:[1,0]")
            a(f"v_pk_fma_f32 {v2(Z2+2*n)}, {v2(V+2*n)}, {v2(G+4*n+2)}, {v2(Z2+2*n)} op_sel:[1,0,0] op_sel_hi:[0,0,1] neg_lo:[1,0,0]")
        self.swap_reduce(Z2, 2560, VPW)
        a.wait(lgkm=0)
        a("s_barrier")
        for n in range(5):
            a(f"ds_read_b128 {v4(20+8*n)}, v1 offset:{2560+512*n}", tag=f"cr{n}")
            a(f"ds_read_b128 {v4(24+8*n)}, v1 offset:{2560+512*n+256}", tag=f"cr{n}")
        HS = 90
        a(f"s_lshl_b32 s{sT0}, s{sTC}, 1")
        a(f"s_lshr_b32 s{sT1}, s{sW}, 1")
        a(f"s_add_u32 s{sT0}, s{sT0}, s{sT1}")
        a(f"s_lshl_b32 s{sT0}, s{sT0}, 4")
        a(f"s_add_u32 s{sT0}, s{sT0}, s{sCG}")
        a(f"s_and_b32 s{sT1}, s{sW}, 1")
        a(f"s_lshl_b32 s{sT3}, s{sT0}, 1")
        a(f"s_add_u32 s{sT3}, s{sT3}, s{sT1}")
        a(f"s_lshl_b32 s{sT3}, s{sT3}, 7")
        a(f"s_add_u32 s{sT3}, s{sT3}, {WS_FLAG}")
        a(f"s_mul_i32 s{sT0}, s{sT0}, 20480")
        a(f"s_lshl_b32 s{sT1}, s{sT1}, 11")
        a(f"s_add_u32 s{sT0}, s{sT0}, s{sT1}")
        a(f"s_add_u32 s{sT0}, s{sT0}, {WS_H}")
        a(f"v_and_b32 v{HS}, 1, v{Q}")
        a(f"v_lshlrev_b32 v{HS}, 6, v{HS}")
        a(f"v_xor_b32 v{HS}, v{HS}, v2")
        a(f"v_lshl_add_u32 v{HS}, v{Q}, 8, v{HS}")
        items = []
        for i in range(cfg.d4):
            items += self.bg_drain(2, i)
        for i in range(cfg.n2, cfg.n2 + cfg.n4):
            items += self.bg_dma(2, i)
        a.bg(items, cfg.p4)
        PK = 60
        for n in range(5):
            w0 = 20 + 8 * n
            a.wait(lgkm=f"cr{n}")
            a(f"v_pk_add_f32 {v2(w0)}, {v2(w0)}, {v2(w0+2)}")
            a(f"v_pk_add_f32 {v2(w0+4)}, {v2(w0+4)}, {v2(w0+6)}")
            a(f"v_pk_add_f32 {v2(w0)}, {v2(w0)}, {v2(w0+4)}")
            self.cfma(SL + 2 * n, w0, MC + 2 * n, SL + 2 * n)
            prev = SL + 2 * n
            for j in range(8):
                d = U + 16 * n + 2 * j
                self.cfma(d, prev, L1 + 2 * n, d)
                prev = d
            pk = PK + 8 * (n & 1)
            for k in range(4):
                d = U + 16 * n + 4 * k
                a(f"v_cvt_pk_bf16_f32 v{pk+k}, v{d}, v{d+2}")
            a(f"buffer_store_dwordx4 {v4(pk)}, v{HS}, {srd(SWS)}, s{sT0} offen sc1", tag="hst")
            for k in range(4):
                d = U + 16 * n + 4 * k
                a(f"v_cvt_pk_bf16_f32 v{pk+4+k}, -v{d+1}, -v{d+3}")
            a(f"buffer_store_dwordx4 {v4(pk+4)}, v{HS}, {srd(SWS)}, s{sT0} offen offset:1024 sc1", tag="hst")
            if n < 4:
                a(f"s_add_u32 s{sT0}, s{sT0}, 4096")
        self.stamp("hst")
        a.bg_pause()
        items = list(a.bgq)
        a.bgq = []
        for i in range(cfg.n2 + cfg.n4, 8):
            items += self.bg_dma(2, i)
        for i in range(8):
            if i >= cfg.d4:
                items += self.bg_drain(2, i)
            items += self.bg_dma(3, i)
        a(f"v_mov_b32 v{self.FG+1}, s{sTAG}")
        a(f"v_mov_b32 v{self.FG+3}, s{sTAG}")
        a(f"v_mov_b32 v94, 0")
        for it in items[:cfg.n5]:
            it()
        a.wait(vm="hst")
        a("s_mov_b64 exec, 1")
        a(f"buffer_store_dwordx4 {v4(self.FG)}, v94, {srd(SWS)}, s{sT3} offen sc1", tag="flag")
        a("s_mov_b64 exec, -1")
        self.stamp("flag")
        for it in items[cfg.n5:]:
            it()

    FG = 196 + 56

    def gate(self):
        a = self.a
        GX, GW, FG = self.GX, self.GW, self.FG
        T = 94
        a.wait(vm="gate")
        a(f"v_mov_b32 v{T}, 0")
        for k in range(10):
            a(f"v_dot2_f32_bf16 v{T}, v{GX+k}, v{GW+k}, v{T}")
        for r in (8, 4, 2, 1):
            a(f"v_add_f32_dpp v{T}, v{T}, v{T} row_ror:{r} row_mask:0xf bank_mask:0xf")
        a(f"v_mov_b32 v{T+1}, v{T}")
        a(f"v_permlane16_swap_b32 v{T}, v{T+1}")
        a(f"v_add_f32 v{T}, v{T}, v{T+1}")
        a(f"v_cvt_pk_bf16_f32 v{T}, v{T}, v{T}")
        a(f"v_lshlrev_b32 v{T}, 16, v{T}")
        a(f"v_mul_f32 v{T}, 0xbfb8aa3b, v{T}")
        a(f"v_exp_f32 v{T}, v{T}")
        a(f"v_add_f32 v{T}, 1.0, v{T}")
        a(f"v_rcp_f32 v{T}, v{T}")
        a(f"v_cvt_pk_bf16_f32 v{T}, v{T}, v{T}")
        a(f"v_lshlrev_b32 v{FG}, 16, v{T}")
        a(f"v_mov_b32 v{FG+2}, v{FG}")
        a(f"v_permlane32_swap_b32 v{FG}, v{FG+2}")

    ACC2 = 132
    HF = 212
    VT = 244
    VH = 248
    GG = 250

    def acc2(self, nt, mt):
        return self.ACC2 + 16 * nt + 4 * mt

    def h_dma(self, ks):
        a = self.a
        slot = ks % 7
        out = []
        for b in range(4):
            def f(b=b):
                if b == 0:
                    a(f"s_add_u32 m0, s{sBW}, {(slot >> 1)*SLOT + (slot & 1)*4096}")
                a(f"buffer_load_dwordx4 v{self.VH}, {srd(SWS)}, s{sK} offen offset:{1024*b} {self.cfg.hpol} lds", tag=f"h{ks}")
                if b == 3:
                    a(f"s_add_u32 s{sK}, s{sK}, 4096")
                    if self.cfg.rot2 and (ks & 3) == 3:
                        a(f"s_cmp_eq_u32 s{sK}, s{sHE}")
                        a(f"s_cselect_b32 s{sK}, s{sHB}, s{sK}")
            out.append(f)
        return out

    def h_reads(self, ks):
        a = self.a
        slot = ks % 7
        p = slot >> 1
        F = self.HF + 16 * (ks & 1)
        out = []
        for mt in range(4):
            for rho in range(2):
                def f(mt=mt, rho=rho):
                    off = (p & 1) * SLOT + (slot & 1) * 4096 + (mt >> 1) * 2048 + (mt & 1) * 512
                    a(f"ds_read_b64_tr_b16 {v2(F+4*mt+2*rho)}, v{self.VT + 2*(p >> 1) + rho} offset:{off}", tag=f"hr{ks}")
                out.append(f)
        return out

    def gemm2(self):
        a, cfg = self.a, self.cfg
        VT, VH, GG = self.VT, self.VH, self.GG
        T0, T1, T2, T3 = 1, 2, 3, 4
        a(f"v_bfe_u32 v{T0}, v0, 2, 2")
        a(f"v_bfe_u32 v{T1}, v0, 4, 1")
        a(f"v_lshl_add_u32 v{T0}, v{T1}, 3, v{T0}")
        a(f"v_bfe_u32 v{T1}, v0, 1, 1")
        a(f"v_lshlrev_b32 v{T2}, 2, v{T1}")
        a(f"v_xor_b32 v{T0}, v{T0}, v{T2}")
        a(f"v_lshlrev_b32 v{T0}, 4, v{T0}")
        a(f"v_lshl_add_u32 v{T0}, v{T1}, 8, v{T0}")
        a(f"v_and_b32 v{T1}, 1, v0")
        a(f"v_lshl_add_u32 v{T0}, v{T1}, 3, v{T0}")
        a(f"v_bfe_u32 v{T1}, v0, 5, 1")
        a(f"v_lshl_add_u32 v{T0}, v{T1}, 10, v{T0}")
        a(f"v_add_u32 v{VT}, s{sBW}, v{T0}")
        a(f"v_xor_b32 v{VT+1}, 64, v{VT}")
        a(f"v_add_u32 v{VT+2}, {2*SLOT}, v{VT}")
        a(f"v_add_u32 v{VT+3}, {2*SLOT}, v{VT+1}")
        a(f"v_and_b32 v{VH}, 63, v0")
        a(f"v_lshrrev_b32 v{T3}, 3, v{VH}")
        a(f"v_lshlrev_b32 v{T3}, 7, v{T3}")
        a(f"v_lshlrev_b32 v{VH}, 4, v{VH}")
        a(f"s_lshl_b32 s{sT0}, s{sRT}, 2")
        a(f"s_add_u32 s{sT0}, s{sT0}, s{sW}")
        a(f"s_lshl_b32 s{sT1}, s{sT0}, 10")
        a(f"s_add_u32 s{sT1}, s{sT1}, {WS_FLAG}")
        a(f"s_mul_i32 s{sT0}, s{sT0}, 81920")
        a(f"s_add_u32 s{sT0}, s{sT0}, {WS_H}")
        for i in range(8):
            if self.R3[i] != (4, 3):
                for it in self.bg_drain(3, i):
                    it()
        a(f"s_mov_b32 s{sHB}, s{sT0}")
        a(f"s_add_u32 s{sHE}, s{sT0}, 81920")
        a(f"s_lshl_b32 s{sK}, s{sKQ}, 7")
        a(f"s_add_u32 s{sK}, s{sK}, s{sT0}")
        a(f"s_mov_b32 s{sSPIN}, {cfg.spin}")
        self.stamp("w3done")
        PV = 6
        a("L_poll2:")
        a(f"buffer_load_dwordx4 {v4(PV)}, v{T3}, {srd(SWS)}, s{sT1} offen sc1", tag="g2")
        a(f"s_sub_u32 s{sSPIN}, s{sSPIN}, 1")
        a.wait(vm=0)
        a(f"v_cmp_ne_u32 vcc, s{sTAG}, v{PV+1}")
        a(f"v_cmp_ne_u32 {sp(sT2)}, s{sTAG}, v{PV+3}")
        a(f"s_or_b64 vcc, vcc, {sp(sT2)}")
        a(f"s_cmp_eq_u32 s{sSPIN}, 0")
        a("s_cbranch_scc1 L_got2")
        a("s_cbranch_vccnz L_poll2")
        a("L_got2:")
        a.wait(lgkm=0)
        self.stamp("got2")
        for ks in range(7):
            for it in self.h_dma(ks):
                it()
        a(f"v_and_b32 v{T0}, 4, v0")
        a(f"v_cmp_ne_u32 vcc, 0, v{T0}")
        a(f"v_cndmask_b32 v{GG}, v{PV}, v{PV+2}, vcc")
        a(f"v_sub_f32 v{GG+1}, 1.0, v{GG}")
        a(f"v_cvt_pk_bf16_f32 v{GG+1}, v{GG+1}, v{GG+1}")
        a(f"v_lshlrev_b32 v{GG+1}, 16, v{GG+1}")
        XO, DO, OO, EW, ER, OD = 1, 2, 3, 4, 5, 249
        a(f"v_bfe_u32 v6, v0, 2, 4")
        a(f"v_and_b32 v7, 3, v0")
        a(f"s_lshl_b32 s{sT0}, s{sRT}, 2")
        a(f"s_add_u32 s{sT0}, s{sT0}, s{sW}")
        a(f"s_lshl_b32 s{sT0}, s{sT0}, 4")
        a(f"s_mul_i32 s{sT1}, s{sDG}, 80")
        a(f"v_add_u32 v8, s{sT0}, v6")
        a(f"v_mul_u32_u24 v8, 640, v8")
        a(f"v_lshl_add_u32 v9, v7, 2, s{sT1}")
        a(f"v_add_u32 v8, v8, v9")
        a(f"v_lshlrev_b32 v{XO}, 1, v8")
        a(f"v_lshlrev_b32 v{OO}, 2, v8")
        a(f"v_lshlrev_b32 v{DO}, 1, v9")
        a(f"v_bfe_u32 v8, v6, 1, 2")
        a(f"v_xor_b32 v8, v8, v7")
        a(f"v_lshlrev_b32 v8, 4, v8")
        a(f"v_mul_u32_u24 v9, 320, v6")
        a(f"s_mul_i32 s{sT1}, s{sW}, {SLOT}")
        a(f"v_add3_u32 v{ER}, v8, v9, s{sT1}")
        a(f"v_and_b32 v6, 15, v0")
        a(f"v_bfe_u32 v7, v0, 4, 2")
        a(f"v_bfe_u32 v8, v6, 1, 2")
        a(f"v_xor_b32 v8, v8, v7")
        a(f"v_lshlrev_b32 v8, 4, v8")
        a(f"v_mul_u32_u24 v9, 320, v6")
        a(f"v_add3_u32 v{EW}, v8, v9, s{sBW}")
        a(f"v_bfe_u32 v7, v0, 5, 1")
        a(f"v_lshrrev_b32 v8, 3, v6")
        a(f"v_lshl_add_u32 v7, v7, 1, v8")
        a(f"v_mul_u32_u24 v7, {SLOT}, v7")
        a(f"v_and_b32 v8, 0x3ff, v{self.VCR}".replace(f"v{self.VCR}", f"v{self.VCR}"))
        a(f"v_add3_u32 v{OD}, v7, v8, s{sBW}")
        a(f"v_add_u32 v{OD}, 8192, v{OD}")
        a.wait(vm="h0")
        for it in self.h_reads(0):
            it()
        XS, DA, DB, SK = 52, 62, 72, 82
        skip_ops = []
        for i in range(5):
            x0, da, db, sk = XS + 2 * i, DA + 2 * i, DB + 2 * i, 6
            t = 10
            o = []
            o.append(f"v_lshlrev_b32 v{t}, 16, v{x0}")
            o.append(f"v_and_b32 v{t+1}, 0xffff0000, v{x0}")
            o.append(f"v_lshlrev_b32 v{t+2}, 16, v{x0+1}")
            o.append(f"v_and_b32 v{t+3}, 0xffff0000, v{x0+1}")
            for (dsk, gq, first) in ((da, GG, True), (db, GG + 1, False)):
                o.append(f"v_lshlrev_b32 v{t+4}, 16, v{dsk}")
                o.append(f"v_and_b32 v{t+5}, 0xffff0000, v{dsk}")
                o.append(f"v_lshlrev_b32 v{t+6}, 16, v{dsk+1}")
                o.append(f"v_and_b32 v{t+7}, 0xffff0000, v{dsk+1}")
                for e in range(4):
                    o.append(f"v_mul_f32 v{t+4+e}, v{t+e}, v{t+4+e}")
                o.append(f"v_cvt_pk_bf16_f32 v{t+4}, v{t+4}, v{t+5}")
                o.append(f"v_cvt_pk_bf16_f32 v{t+6}, v{t+6}, v{t+7}")
                o.append(f"v_and_b32 v{t+5}, 0xffff0000, v{t+4}")
                o.append(f"v_lshlrev_b32 v{t+4}, 16, v{t+4}")
                o.append(f"v_and_b32 v{t+7}, 0xffff0000, v{t+6}")
                o.append(f"v_lshlrev_b32 v{t+6}, 16, v{t+6}")
                for e in range(4):
                    dst = self.skreg(i) + e
                    if first:
                        o.append(f"v_mul_f32 v{dst}, v{gq}, v{t+4+e}")
                    else:
                        o.append(f"v_fmac_f32 v{dst}, v{gq}, v{t+4+e}")
            skip_ops += o
        for ks in range(20):
            kq, ksl = ks >> 2, ks & 3
            fill = []
            if ks < 19:
                a.wait(vm=f"h{ks+1}", lgkm=0)
                for k, it in enumerate(self.h_reads(ks + 1)):
                    fill.append((k, it))
            else:
                a.wait(lgkm=0)
            if ks + 7 < 20:
                for k, it in enumerate(self.h_dma(ks + 7)):
                    fill.append((2 + 5 * k, it))
            if ks == 12:
                def ld():
                    for i in range(5):
                        a(f"global_load_dwordx2 {v2(XS+2*i)}, v{XO}, {sp(pX)} offset:{32*i}", tag="ep")
                    for i in range(5):
                        a(f"global_load_dwordx2 {v2(DA+2*i)}, v{DO}, {sp(pDA)} offset:{32*i}", tag="ep")
                    for i in range(5):
                        a(f"global_load_dwordx2 {v2(DB+2*i)}, v{DO}, {sp(pDB)} offset:{32*i}", tag="ep")
                fill.append((19, ld))
            if ks == 5:
                for k, it in enumerate(self.drain_unit(4, 3, 7, "late")):
                    fill.append((9 + k, it))
                for k in range(4):
                    def g(k=k):
                        if k:
                            a(f"v_xor_b32 v9, {32*k}, v{OD}")
                        a(f"ds_read_b128 {v4(self.CV+16+4*k)}, v{9 if k else OD}", tag="late")
                    fill.append((13 + k, g))
            F = self.HF + 16 * (ks & 1)
            g = 0
            for nt in range(5):
                f, r = self.c_home(kq, nt)
                for mt in range(4):
                    d = self.acc2(nt, mt)
                    c = "0" if ks == 0 else v4(d)
                    a(f"v_mfma_f32_16x16x32_bf16 {v4(d)}, {v4(r+4*ksl, f)}, {v4(F+4*mt)}, {c}")
                    for gi, it in fill:
                        if gi == g:
                            it()
                    g += 1
        self.stamp("gemm2")
        a(f"v_add_u32 v9, {2*SLOT}, v{EW}")
        for nt in range(5):
            for mt in range(4):
                a(f"ds_write_b128 v{9 if mt >> 1 else EW}, {v4(self.acc2(nt, mt))} offset:{(mt & 1)*SLOT + 64*nt}", tag="ew")
        a.wait(vm="ep")
        for o in skip_ops:
            a(o)
        a.wait(lgkm=0)
        a("s_barrier")
        RB = 132
        for i in range(5):
            for wp in range(4):
                a(f"ds_read_b128 {v4(RB+16*i+4*wp)}, v{ER} offset:{wp*PIECE + 64*i}", tag=f"er{i}")
        for i in range(5):
            b = RB + 16 * i
            sk = self.skreg(i)
            a.wait(lgkm=f"er{i}")
            for hlf in range(2):
                a(f"v_pk_add_f32 {v2(b+2*hlf)}, {v2(b+2*hlf)}, {v2(b+4+2*hlf)}")
                a(f"v_pk_add_f32 {v2(b+8+2*hlf)}, {v2(b+8+2*hlf)}, {v2(b+12+2*hlf)}")
            for hlf in range(2):
                a(f"v_pk_fma_f32 {v2(sk+2*hlf)}, {v2(b+2*hlf)}, {v2(GG)}, {v2(sk+2*hlf)} op_sel_hi:[1,0,1]")
                a(f"v_pk_fma_f32 {v2(sk+2*hlf)}, {v2(b+8+2*hlf)}, {v2(GG)}, {v2(sk+2*hlf)} op_sel:[0,1,0] op_sel_hi:[1,1,1]")
            a(f"buffer_store_dwordx4 {v4(sk)}, v{OO}, {srd(SOUT)}, 0 offen offset:{64*i}", tag="out")
        self.stamp("outst")
        a(f"s_cmp_lg_u32 s{sRT}, 31")
        a("s_cbranch_scc1 L_noep")
        a(f"s_or_b32 s{sT0}, s{sDG}, s{sW}")
        a(f"s_cmp_lg_u32 s{sT0}, 0")
        a("s_cbranch_scc1 L_noep")
        a(f"v_mov_b32 v6, s{sTAG}")
        a(f"v_mov_b32 v7, 0")
        a("s_mov_b64 exec, 1")
        a(f"buffer_store_dword v6, v7, {srd(SWS)}, 0 offen offset:{WS_EPOCH}", counted=False)
        a("s_mov_b64 exec, -1")
        a("L_noep:")

    def skreg(self, i):
        return 100 + 4 * i

    def finish(self):
        a = self.a
        if self.cfg.prof:
            a.wait(vm=0)
            self.stamp("end")
            self.stamp("rt1")
            a("s_waitcnt lgkmcnt(0)")
            a(f"s_lshl_b32 s{sT0}, s2, 2")
            a(f"s_add_u32 s{sT0}, s{sT0}, s{sW}")
            a(f"s_lshl_b32 s{sT0}, s{sT0}, 7")
            a(f"s_add_u32 s{sT0}, s{sT0}, {WS_PROF}")
            a("v_mov_b32 v6, 0")
            a("s_mov_b64 exec, 1")
            for k in range(self.nstamp):
                a(f"v_mov_b32 v7, s{STAMP_REGS[k]}")
                a(f"buffer_store_dword v7, v6, {srd(SWS)}, s{sT0} offen offset:{4*k}")
            a(f"s_getreg_b32 s{sT1}, hwreg(HW_REG_XCC_ID)")
            a(f"v_mov_b32 v7, s{sT1}")
            a(f"buffer_store_dword v7, v6, {srd(SWS)}, s{sT0} offen offset:124")
        a("L_end:")
        a("s_endpgm")

    def build(self):
        self.prologue()
        self.gemm1()
        self.scan()
        self.gemm2()
        self.finish()
        n = self.a.fix_hazards(verbose=self.cfg.verbose)
        errs = self.a.check_waits()
        for e in errs:
            print("WAIT ERROR:", e, file=sys.stderr)
        assert not errs
        print("wait states inserted:", n, " instructions:", len(self.a.ins), file=sys.stderr)
        ref = open(os.path.join(os.path.dirname(os.path.abspath(__file__)), "..", "cdna_kernels", NAME + ".s.ref")).read()
        head = []
        for line in ref.split("\n"):
            if line.startswith("; @launch"):
                break
            head.append(line)
        txt = "\n".join(head) + f"\n; @launch grid=(256,1,1) block=(256,1,1) lds={LDS_BYTES}\n"
        txt += f""".amdgcn_target "amdgcn-amd-amdhsa--gfx950"
.text
.globl {NAME}_kernel
.p2align 8
.type {NAME}_kernel,@function
{NAME}_kernel:
"""
        txt += self.a.text()
        txt += f""".section .rodata,"a"
.p2align 6
.amdhsa_kernel {NAME}_kernel
  .amdhsa_next_free_vgpr 512
  .amdhsa_next_free_sgpr 102
  .amdhsa_accum_offset 256
  .amdhsa_group_segment_fixed_size 0
  .amdhsa_kernarg_size 176
  .amdhsa_user_sgpr_count 2
  .amdhsa_user_sgpr_kernarg_segment_ptr 1
  .amdhsa_system_sgpr_workgroup_id_x 1
  .amdhsa_float_denorm_mode_32 3
.end_amdhsa_kernel
"""
        return txt


def main():
    p = argparse.ArgumentParser()
    p.add_argument("-o", default=None)
    p.add_argument("--prof", type=int, default=0)
    p.add_argument("--place", type=int, default=3)
    p.add_argument("--place2", type=int, default=2)
    p.add_argument("--rot", type=int, default=1)
    p.add_argument("--rot2", type=int, default=1)
    p.add_argument("--xpol", default="")
    p.add_argument("--bpol", default="")
    p.add_argument("--cpol", default="")
    p.add_argument("--hpol", default="sc1")
    p.add_argument("--par_after", type=int, default=0)
    p.add_argument("--st1_first", type=int, default=0)
    p.add_argument("--pace", type=int, default=9)
    p.add_argument("--pace_c", type=int, default=4)
    p.add_argument("--maxstep", type=float, default=20)
    p.add_argument("--dma_phase", type=float, default=1)
    p.add_argument("--p1", type=int, default=0)
    p.add_argument("--n2", type=int, default=5)
    p.add_argument("--p2", type=int, default=5)
    p.add_argument("--n4", type=int, default=0)
    p.add_argument("--d4", type=int, default=4)
    p.add_argument("--p4", type=int, default=6)
    p.add_argument("--n5", type=int, default=20)
    p.add_argument("--spin", type=int, default=20000)
    p.add_argument("--verbose", type=int, default=0)
    cfg = p.parse_args()
    g = Gen(cfg)
    txt = g.build()
    out = cfg.o or os.path.join(os.path.dirname(os.path.abspath(__file__)), "..", "cdna_kernels", NAME + ".s")
    open(out, "w").write(txt)
    if cfg.prof:
        open(out + ".stamps", "w").write("\n".join(g.stamp_names))


if __name__ == "__main__":
    main()
```

```python
import sys, os, argparse
sys.path.insert(0, os.path.dirname(os.path.abspath(__file__)))
from asmlib import Asm

NAME = "gated_mix__ssm_conv_s5__ssm_conv_s5__prompt"

WS_EPOCH = 0
WS_FLAG = 4096
WS_CARRY = 135168
WS_H = 524288
WS_PROF = WS_H + 10485760
WS_USED = WS_PROF + 1024 * 128

SLOT = 36864
PIECE = 9216
TOP = 4 * SLOT
TAB = TOP
PART1 = TOP + 10240
PART2 = PART1 + 2560
LDS_BYTES = 163840

sTC, sCG, sRT, sDG, sW, sBW, sTAG, sK = 4, 5, 6, 7, 8, 9, 10, 11
sT0, sT1, sT2, sT3 = 12, 13, 14, 15
SX, SB, SCR, SCI, SWS, SOUT = 16, 20, 24, 28, 32, 36
KA = 40
pX, pLre, pLim, pBre, pBim, pCre, pCim, pDT, pDA = 40, 42, 44, 46, 48, 50, 52, 54, 56
pDB, pGW, pOUT, pWS = 74, 76, 78, 80
sHB, sHE = 58, 59
sKQ = 82
STAMP_REGS = list(range(88, 102, 2)) + [42, 44, 46, 48, 50, 52, 54, 60, 62, 64, 66, 68, 70, 72]
sSPIN = 3


def srd(b):
    return "s[%d:%d]" % (b, b + 3)


def sp(b):
    return "s[%d:%d]" % (b, b + 1)


def v2(b):
    return "v[%d:%d]" % (b, b + 1)


def v4(b, f="v"):
    return "%s[%d:%d]" % (f, b, b + 3)


class Gen:
    def __init__(self, cfg):
        self.cfg = cfg
        self.a = Asm()
        self.nstamp = 0
        self.stamp_names = []

    def stamp(self, name):
        if not self.cfg.prof:
            return
        op = "s_memrealtime" if name.startswith("rt") else "s_memtime"
        self.a("%s %s" % (op, sp(STAMP_REGS[self.nstamp])))
        self.stamp_names.append(name)
        self.nstamp += 1

    def cmul(self, d, x, y):
        a = self.a
        a(f"v_pk_mul_f32 {v2(d)}, {v2(x)}, {v2(y)} op_sel_hi:[1,0]")
        a(f"v_pk_fma_f32 {v2(d)}, {v2(x)}, {v2(y)}, {v2(d)} op_sel:[1,1,0] op_sel_hi:[0,1,1] neg_lo:[1,0,0]")

    def cfma1(self, d, x, y, c):
        self.a(f"v_pk_fma_f32 {v2(d)}, {v2(x)}, {v2(y)}, {v2(c)} op_sel_hi:[1,0,1]")

    def cfma2(self, d, x, y):
        self.a(f"v_pk_fma_f32 {v2(d)}, {v2(x)}, {v2(y)}, {v2(d)} op_sel:[1,1,0] op_sel_hi:[0,1,1] neg_lo:[1,0,0]")

    def cfma(self, d, x, y, c):
        self.cfma1(d, x, y, c)
        self.cfma2(d, x, y)

    def prologue(self):
        a, cfg = self.a, self.cfg
        a(f"s_load_dwordx16 s[{KA}:{KA+15}], s[0:1], 0")
        a(f"s_load_dwordx16 s[{KA+16}:{KA+31}], s[0:1], 64")
        a(f"s_load_dwordx8 s[{KA+32}:{KA+39}], s[0:1], 128")
        a(f"s_load_dwordx2 {sp(pWS)}, s[0:1], 168")
        a("s_cmp_ge_u32 s2, 0x100")
        a("s_cbranch_scc1 L_end")
        a(f"s_getpc_b64 {sp(sT0)}")
        a("L_pc:")
        a("v_lshlrev_b32 v18, 7, v0")
        a("v_min_u32 v19, L_end-L_pc, v18")
        a(f"global_load_dword v255, v19, {sp(sT0)}", tag="pf")
        self.stamp("rt0")
        self.stamp("start")
        a("v_lshrrev_b32 v18, 6, v0")
        a(f"s_and_b32 s{sT2}, s2, 7")
        a(f"s_lshr_b32 s{sT3}, s2, 3")
        a(f"v_readfirstlane_b32 s{sW}, v18")
        L, R8, SL, F0, T0, T1, C, Q = 196, 197, 198, 199, 200, 201, 202, 203
        ta, tb = {1: (1, 4), 2: (2, 3), 3: (3, 2)}[cfg.place]
        a(f"s_lshr_b32 s{sTC}, s{sT2}, {4 - tb}")
        a(f"s_lshl_b32 s{sTC}, s{sTC}, {ta}")
        a(f"s_lshr_b32 s{sT0}, s{sT3}, {tb}")
        a(f"s_add_u32 s{sTC}, s{sTC}, s{sT0}")
        a(f"s_and_b32 s{sCG}, s{sT2}, {(16 >> tb) - 1}")
        a(f"s_lshl_b32 s{sCG}, s{sCG}, {tb}")
        a(f"s_and_b32 s{sT1}, s{sT3}, {(1 << tb) - 1}")
        a(f"s_add_u32 s{sCG}, s{sCG}, s{sT1}")
        if cfg.rot:
            a(f"s_mul_i32 s{sT0}, s{sT0}, {160 >> ta}")
            a(f"s_mul_i32 s{sT1}, s{sT1}, {160 >> tb}")
            a(f"s_add_u32 s{sK}, s{sT0}, s{sT1}")
            a(f"s_lshr_b32 s{sK}, s{sK}, 4")
            a(f"s_sub_u32 s{sT0}, s{sK}, 10")
            a(f"s_cselect_b32 s{sK}, s{sK}, s{sT0}")
            a(f"s_lshl_b32 s{sK}, s{sK}, 7")
        else:
            a(f"s_mov_b32 s{sK}, 0")
        a(f"v_and_b32 v{L}, 63, v0")
        a(f"v_lshrrev_b32 v{R8}, 3, v{L}")
        a(f"v_and_b32 v{SL}, 7, v{L}")
        a(f"v_lshrrev_b32 v{Q}, 4, v{L}")
        a(f"v_xor_b32 v{F0}, v{Q}, v{SL}")
        a(f"v_lshlrev_b32 v{F0}, 4, v{F0}")
        a(f"v_lshrrev_b32 v{T0}, 5, v{L}")
        a(f"v_and_b32 v{T1}, 3, v{R8}")
        a(f"v_lshl_add_u32 v{T0}, v{T0}, 3, v{T1}")
        a(f"v_mul_u32_u24 v{T0}, 1280, v{T0}")
        a(f"v_xor_b32 v{T1}, 64, v{F0}")
        a(f"v_add_u32 v1, v{T0}, v{F0}")
        a(f"v_add_u32 v2, v{T0}, v{T1}")
        a(f"v_add_u32 v2, {16*1280-1024}, v2")
        a(f"v_add_u32 v3, {4*1280-2048}, v1")
        a(f"v_add_u32 v4, {4*1280-2048}, v2")
        a(f"s_mul_i32 s{sBW}, s{sW}, {PIECE}")
        a(f"s_lshr_b32 s{sT0}, s{sW}, 1")
        a(f"s_lshl_b32 s{sT1}, s{sT0}, 6")
        a(f"s_mul_i32 s{sT0}, s{sT0}, {8*1280}")
        a(f"v_mul_u32_u24 v{T0}, 1280, v{R8}")
        a(f"v_xor_b32 v{T1}, s{sT1}, v{F0}")
        a(f"v_add3_u32 v5, v{T0}, v{T1}, s{sT0}")
        for n in range(1, 5):
            a(f"v_add_u32 v{5+n}, {n*16*1280 - 1024*(n & 3)}, v5")
        a(f"s_and_b32 s{sT1}, s{sCG}, 7")
        a(f"s_mul_i32 s{sT1}, s{sT1}, 80")
        a(f"s_mul_i32 s{sT0}, s{sW}, 20")
        a(f"v_min_u32 v{T0}, 19, v{L}")
        a(f"v_add_u32 v204, s{sT0}, v{T0}")
        a(f"v_add_lshl_u32 v{T0}, v204, s{sT1}, 1")
        a(f"s_mul_i32 s{sT1}, s{sT1}, 1280")
        a(f"s_lshl_b32 s{sT0}, s{sTC}, 2")
        a(f"s_add_u32 s{sT0}, s{sT0}, s{sW}")
        a(f"s_mul_i32 s{sT0}, s{sT0}, {32*1280}")
        a(f"s_mov_b32 s{SX+3}, 0x20000")
        a(f"s_mov_b32 s{SB+3}, 0x20000")
        a(f"s_sub_u32 s{SX+2}, 2621440, s{sT0}")
        a(f"s_sub_u32 s{SB+2}, 819200, s{sT1}")
        a("s_waitcnt lgkmcnt(0)")
        self.stamp("karg")
        if cfg.probe:
            ptr = {"bx": 58, "ws": pWS, "c": pCim + 18, "x": pX}[cfg.probe_src]
            a(f"s_mul_i32 s87, s2, {cfg.probe_stride}")
            a(f"v_mov_b32 v100, s87")
            if cfg.probe_src == "ws":
                a(f"v_add_u32 v100, {cfg.probe_off}, v100")
            for k in range(cfg.probe):
                a(f"global_load_dword v101, v100, {sp(ptr)}")
                a("s_waitcnt vmcnt(0)")
                a(f"v_and_b32 v101, 0, v101")
                a(f"v_add3_u32 v100, v100, v101, 64")
                a(f"v_add_u32 v100, 64, v100")
        a(f"s_add_u32 s{SX}, s{pX}, s{sT0}")
        a(f"s_addc_u32 s{SX+1}, s{pX+1}, 0")
        a(f"s_bitcmp1_b32 s{sW}, 0")
        a(f"s_cselect_b64 {sp(SB)}, {sp(pBim)}, {sp(pBre)}")
        a(f"s_cselect_b64 {sp(SCR)}, {sp(pBim+18)}, {sp(pBre+18)}")
        a(f"s_bitcmp1_b32 s{sCG}, 3")
        a(f"s_cselect_b64 {sp(SB)}, {sp(SCR)}, {sp(SB)}")
        a(f"s_cselect_b64 {sp(pLre)}, {sp(pLre+18)}, {sp(pLre)}")
        a(f"s_cselect_b64 {sp(pLim)}, {sp(pLim+18)}, {sp(pLim)}")
        a(f"s_cselect_b64 {sp(pDT)}, {sp(pDT+18)}, {sp(pDT)}")
        a(f"s_add_u32 s{SB}, s{SB}, s{sT1}")
        a(f"s_addc_u32 s{SB+1}, s{SB+1}, 0")
        st0 = self.dma_stage(0)
        for it in st0[:cfg.par_after]:
            it()
        a(f"global_load_ushort v206, v{T0}, {sp(pLre)}", tag="par")
        a(f"global_load_ushort v207, v{T0}, {sp(pLim)}", tag="par")
        a(f"global_load_ushort v208, v{T0}, {sp(pDT)}", tag="par")
        for it in st0[cfg.par_after:]:
            it()
        a(f"s_load_dword s{sTAG}, {sp(pWS)}, {WS_EPOCH}")
        self.stamp("dma0")
        ra, rb = {1: (2, 3), 2: (3, 2)}[cfg.place2]
        a(f"s_lshr_b32 s{sRT}, s{sT2}, {3 - rb}")
        a(f"s_lshl_b32 s{sRT}, s{sRT}, {ra}")
        a(f"s_lshr_b32 s{sT0}, s{sT3}, {rb}")
        a(f"s_add_u32 s{sRT}, s{sRT}, s{sT0}")
        a(f"s_and_b32 s{sDG}, s{sT2}, {(8 >> rb) - 1}")
        a(f"s_lshl_b32 s{sDG}, s{sDG}, {rb}")
        a(f"s_and_b32 s{sT1}, s{sT3}, {(1 << rb) - 1}")
        a(f"s_add_u32 s{sDG}, s{sDG}, s{sT1}")
        if cfg.rot2:
            a(f"s_add_u32 s{sT0}, s{sT0}, s{sT1}")
            for _ in range(2):
                a(f"s_sub_u32 s{sT1}, s{sT0}, 5")
                a(f"s_cselect_b32 s{sT0}, s{sT0}, s{sT1}")
        else:
            a(f"s_mov_b32 s{sT0}, 0")
        a(f"s_lshl_b32 s{sKQ}, s{sT0}, 7")
        for k in range(1, 5):
            a(f"s_add_u32 s{sKQ+k}, s{sKQ+k-1}, 128")
            a(f"s_cmp_eq_u32 s{sKQ+k}, 640")
            a(f"s_cselect_b32 s{sKQ+k}, 0, s{sKQ+k}")
        a(f"v_lshlrev_b32 v204, 3, v204")
        a(f"v_add_u32 v204, {TAB}, v204")
        a(f"v_and_b32 v{C}, 15, v{L}")
        a(f"v_lshrrev_b32 v{T0}, 1, v{C}")
        a(f"v_xor_b32 v{T0}, v{T0}, v{Q}")
        a(f"v_lshlrev_b32 v{T0}, 4, v{T0}")
        a(f"v_lshl_add_u32 v{T1}, v{C}, 7, v{T0}")
        a(f"v_add_u32 v10, s{sBW}, v{T1}")
        a(f"v_xor_b32 v11, 64, v10")
        a(f"v_add_u32 v12, {2*SLOT}, v10")
        a(f"v_add_u32 v13, {2*SLOT}, v11")
        a(f"v_and_b32 v{T1}, 7, v{C}")
        a(f"v_lshl_add_u32 v{T0}, v{T1}, 7, v{T0}")
        a(f"v_lshrrev_b32 v{T1}, 3, v{C}")
        a(f"v_mul_u32_u24 v{T1}, {2*PIECE}, v{T1}")
        a(f"v_add_u32 v{T0}, 4096, v{T0}")
        a(f"v_add_u32 v14, v{T0}, v{T1}")
        a(f"v_xor_b32 v15, 64, v14")
        a(f"v_add_u32 v16, {2*SLOT}, v14")
        a(f"v_add_u32 v17, {2*SLOT}, v15")
        a(f"s_bitcmp1_b32 s{sW}, 1")
        a(f"s_cselect_b64 {sp(SCR)}, {sp(pCre+18)}, {sp(pCre)}")
        a(f"s_cselect_b64 {sp(SCI)}, {sp(pCim+18)}, {sp(pCim)}")
        a(f"s_mul_i32 s{sT0}, s{sDG}, {80*1280}")
        a(f"s_and_b32 s{sT1}, s{sW}, 1")
        a(f"s_mul_i32 s{sT1}, s{sT1}, 640")
        a(f"s_add_u32 s{sT0}, s{sT0}, s{sT1}")
        a(f"s_add_u32 s{SCR}, s{SCR}, s{sT0}")
        a(f"s_addc_u32 s{SCR+1}, s{SCR+1}, 0")
        a(f"s_sub_u32 s{SCR+2}, 819200, s{sT0}")
        a(f"s_mov_b32 s{SCR+3}, 0x20000")
        a(f"s_add_u32 s{SCI}, s{SCI}, s{sT0}")
        a(f"s_addc_u32 s{SCI+1}, s{SCI+1}, 0")
        a(f"s_sub_u32 s{SCI}, s{SCI}, 2048")
        a(f"s_subb_u32 s{SCI+1}, s{SCI+1}, 0")
        a(f"s_sub_u32 s{SCI+2}, {819200+2048}, s{sT0}")
        a(f"s_mov_b32 s{SCI+3}, 0x20000")
        a(f"s_mov_b32 s{SWS}, s{pWS}")
        a(f"s_mov_b32 s{SWS+1}, s{pWS+1}")
        a(f"s_mov_b32 s{SWS+2}, {WS_USED}")
        a(f"s_mov_b32 s{SWS+3}, 0x20000")
        a(f"s_mov_b32 s{SOUT}, s{pOUT}")
        a(f"s_mov_b32 s{SOUT+1}, s{pOUT+1}")
        a(f"s_mov_b32 s{SOUT+2}, 5242880")
        a(f"s_mov_b32 s{SOUT+3}, 0x20000")
        self.c_addr_setup()
        a(f"s_lshl_b32 s{sT0}, s{sTC}, 7")
        a(f"s_lshr_b32 s{sT1}, s{sW}, 1")
        a(f"s_lshl_b32 s{sT1}, s{sT1}, 6")
        a(f"s_add_u32 s{sT0}, s{sT0}, s{sT1}")
        a(f"s_lshl_b32 s{sT1}, s{sCG}, 2")
        a(f"s_add_u32 s{sT0}, s{sT0}, s{sT1}")
        a(f"s_and_b32 s{sT1}, s{sW}, 1")
        a(f"s_lshl_b32 s{sT1}, s{sT1}, 1")
        a(f"s_add_u32 s{sT0}, s{sT0}, s{sT1}")
        a(f"v_lshrrev_b32 v{T0}, 5, v{L}")
        a(f"v_add_u32 v{T0}, s{sT0}, v{T0}")
        a(f"v_mul_u32_u24 v{T0}, 1280, v{T0}")
        a(f"v_and_b32 v{T1}, 31, v{L}")
        a(f"v_lshlrev_b32 v222, 4, v{T1}")
        a(f"v_lshlrev_b32 v223, 3, v{T1}")
        a(f"v_add_u32 v224, v{T0}, v222")
        a(f"v_add_u32 v225, v{T0}, v223")
        if cfg.st1_first:
            for it in self.dma_stage(1):
                it()
        self.params()
        if not cfg.st1_first:
            for it in self.dma_stage(1):
                it()
        a("s_waitcnt lgkmcnt(0)")
        a(f"s_mul_i32 s{sTAG}, s{sTAG}, 0x9E3779B1")
        a(f"s_add_u32 s{sTAG}, s{sTAG}, 0x7F4A7C15")
        self.stamp("dma1")

    def gate_loads(self):
        a = self.a
        GX, GW = self.GX, self.GW
        return [
            lambda: a(f"global_load_dwordx4 {v4(GX)}, v224, {sp(pX)}", tag="gate"),
            lambda: a(f"global_load_dwordx4 {v4(GX+4)}, v224, {sp(pX)} offset:512", tag="gate"),
            lambda: a(f"global_load_dwordx2 {v2(GX+8)}, v225, {sp(pX)} offset:1024", tag="gate"),
            lambda: a(f"global_load_dwordx4 {v4(GW)}, v222, {sp(pGW)}", tag="gate"),
            lambda: a(f"global_load_dwordx4 {v4(GW+4)}, v222, {sp(pGW)} offset:512", tag="gate"),
            lambda: a(f"global_load_dwordx2 {v2(GW+8)}, v223, {sp(pGW)} offset:1024", tag="gate")]

    GX, GW = 232, 242

    def params(self):
        a = self.a
        a.wait(vm="par")
        a("s_mov_b64 exec, 0xfffff")
        LR, LI, DT, T0, T1, T2 = 206, 207, 208, 209, 210, 211
        P = lambda k: 100 + 2 * k
        a(f"v_lshlrev_b32 v{DT}, 16, v{DT}")
        a(f"v_lshlrev_b32 v{LR}, 16, v{LR}")
        a(f"v_mul_f32 v{DT}, 0x3fb8aa3b, v{DT}")
        a(f"v_exp_f32 v{DT}, v{DT}")
        a(f"v_lshlrev_b32 v{LI}, 16, v{LI}")
        a(f"v_cvt_pk_bf16_f32 v{DT}, v{DT}, v{DT}")
        a(f"v_lshlrev_b32 v{DT}, 16, v{DT}")
        a(f"v_mul_f32 v{T0}, v{DT}, v{LR}")
        a(f"v_mul_f32 v{T1}, v{DT}, v{LI}")
        a(f"v_mul_f32 v{T0}, 0x3fb8aa3b, v{T0}")
        a(f"v_mul_f32 v{T1}, 0x3e22f983, v{T1}")
        a(f"v_exp_f32 v{T0}, v{T0}")
        a(f"v_rndne_f32 v{T2}, v{T1}")
        a(f"v_sub_f32 v{T1}, v{T1}, v{T2}")
        a(f"v_cos_f32 v{T2}, v{T1}")
        a(f"v_sin_f32 v{T1}, v{T1}")
        a(f"v_mov_b32 v{P(0)}, 1.0")
        a(f"v_mov_b32 v{P(0)+1}, 0")
        a(f"v_mul_f32 v{P(1)}, v{T0}, v{T2}")
        a(f"v_mul_f32 v{P(1)+1}, v{T0}, v{T1}")
        a(f"v_mul_f32 v{T0}, v{LR}, v{LR}")
        a(f"v_fmac_f32 v{T0}, v{LI}, v{LI}")
        a(f"v_rcp_f32 v{T0}, v{T0}")
        a(f"v_add_f32 v{T1}, -1.0, v{P(1)}")
        a(f"v_mul_f32 v{P(3)}, v{T1}, v{LR}")
        a(f"v_mul_f32 v{P(3)+1}, v{P(1)+1}, v{LR}")
        a(f"v_add_f32 v{T0}, v{T0}, v{T0}")
        a(f"v_fmac_f32 v{P(3)}, v{P(1)+1}, v{LI}")
        a(f"v_fma_f32 v{P(3)+1}, -v{T1}, v{LI}, v{P(3)+1}")
        a(f"v_mul_f32 v{P(3)}, v{P(3)}, v{T0}")
        a(f"v_mul_f32 v{P(3)+1}, v{P(3)+1}, v{T0}")
        self.cmul(P(2), P(1), P(1))
        self.cmul(P(16), P(2), P(2))
        self.cmul(P(4), P(16), P(16))
        for base in (4, 7, 10, 13):
            self.cmul(P(base + 1), P(base), P(base))
            self.cmul(P(base + 2), P(base + 1), P(base))
            if base < 13:
                self.cmul(P(base + 3), P(base + 1), P(base + 1))
        for e in range(16):
            a(f"ds_write_b64 v204, {v2(P(e))} offset:{e*640}", tag="tab")
        a("s_mov_b64 exec, -1")

    def dma_stage(self, s):
        a = self.a
        base = (s % 4) * SLOT
        out = []

        def mk(m0off, vreg, sr, off, last=False):
            def f():
                if m0off is not None:
                    a(f"s_add_u32 m0, s{sBW}, {base + m0off}")
                pol = self.cfg.xpol if sr == SX else self.cfg.bpol
                a(f"buffer_load_dwordx4 v{vreg}, {srd(sr)}, s{sK} offen offset:{off} {pol} lds", tag=f"st{s}")
                if last and s < 9:
                    a(f"s_add_u32 s{sK}, s{sK}, 128")
                    if self.cfg.rot:
                        a(f"s_cmp_eq_u32 s{sK}, 1280")
                        a(f"s_cselect_b32 s{sK}, 0, s{sK}")
            return f
        for j in range(4):
            out.append(mk(0 if j == 0 else None, 1 + j, SX, 1024 * j))
        for n in range(4):
            out.append(mk(4096 if n == 0 else None, 5 + n, SB, 1024 * n))
        out.append(mk(8192, 9, SB, 0, last=True))
        if self.cfg.abl == 2 and s >= 2:
            out = out[-1:]
        return out

    R1 = [(1, 2), (1, 3), (1, 4), (2, 0), (2, 1), (2, 2), (2, 3), (2, 4)]
    R2 = [(3, 0), (3, 1), (3, 2), (3, 3), (3, 4), (4, 0), (4, 1), (4, 2)]
    R3 = [(0, 0), (0, 1), (0, 2), (4, 3), (0, 3), (0, 4), (1, 0), (1, 1)]
    VHOME = [(0, 0), (0, 1), (0, 2), (0, 3), (0, 4), (1, 0), (1, 1)]
    RSLOT = [4, 5, 6, 7, 0, 1, 2, 3]
    VC0, VC1 = 18, 19
    CV = 20

    def c_home(self, kq, nt):
        if (kq, nt) in self.R1:
            return "a", 16 * self.R1.index((kq, nt))
        if (kq, nt) in self.R2:
            return "a", 128 + 16 * self.R2.index((kq, nt))
        if (kq, nt) == (4, 3):
            return "v", self.CV
        if (kq, nt) == (4, 4):
            return "v", self.CV + 16
        return "v", self.CV + 16 * self.VHOME.index((kq, nt))

    def c_addr_setup(self):
        a = self.a
        L, R8, T0, T1 = 252, 253, 18, 19
        a(f"v_and_b32 v{L}, 63, v0")
        a(f"v_lshrrev_b32 v{R8}, 3, v{L}")
        a(f"v_lshrrev_b32 v{T0}, 4, v{L}")
        a(f"v_and_b32 v{L}, 7, v{L}")
        a(f"v_xor_b32 v{T0}, v{T0}, v{L}")
        a(f"v_lshlrev_b32 v{T0}, 4, v{T0}")
        a(f"v_mul_u32_u24 v{R8}, 1280, v{R8}")
        a(f"v_xor_b32 v{T1}, 64, v{T0}")
        a(f"v_add_u32 v{self.VC0}, v{R8}, v{T0}")
        a(f"v_add_u32 v{self.VC1}, v{R8}, v{T1}")
        a(f"v_add_u32 v{self.VC1}, {8*1280-1024}, v{self.VC1}")

    def dma_unit(self, kq, nt, slot, tag):
        a = self.a
        out = []

        def mk(part, half):
            def f():
                off = part * 2048 + half * 1024
                if slot == "odd":
                    a(f"s_add_u32 m0, s{sBW}, {(part*2+half)*SLOT + 8192 - off}")
                elif off == 0:
                    a(f"s_add_u32 m0, s{sBW}, {(slot >> 1)*SLOT + (slot & 1)*4096}")
                if off == 0:
                    a(f"s_add_u32 s{sK}, s{sKQ+kq}, {nt*16*1280}")
                a(f"buffer_load_dwordx4 v{self.VC1 if half else self.VC0}, {srd(SCI if part else SCR)}, s{sK} offen offset:{off} {self.cfg.cpol} lds", tag=tag)
            return f
        for part in range(2):
            for half in range(2):
                out.append(mk(part, half))
        return out

    VCR = 10

    def c_read_setup(self):
        a = self.a
        T0, T1, T2 = 252, 253, 254
        a(f"v_and_b32 v{T0}, 15, v0")
        a(f"v_bfe_u32 v{T1}, v0, 4, 1")
        a(f"v_lshrrev_b32 v{T2}, 1, v{T0}")
        a(f"v_xor_b32 v{T1}, v{T1}, v{T2}")
        a(f"v_lshlrev_b32 v{T1}, 4, v{T1}")
        a(f"v_lshl_add_u32 v{T1}, v{T0}, 7, v{T1}")
        a(f"v_bfe_u32 v{T2}, v0, 5, 1")
        a(f"v_lshl_add_u32 v{T1}, v{T2}, 11, v{T1}")
        a(f"v_add_u32 v{self.VCR}, s{sBW}, v{T1}")
        for k in range(1, 4):
            a(f"v_xor_b32 v{self.VCR+k}, {32*k}, v{self.VCR}")
        for k in range(4):
            a(f"v_add_u32 v{self.VCR+4+k}, {2*SLOT}, v{self.VCR+k}")

    def drain_unit(self, kq, nt, slot, tag):
        a = self.a
        f, r = self.c_home(kq, nt)
        out = []
        for ksl in range(4):
            def g(ksl=ksl):
                p = slot >> 1
                a(f"ds_read_b128 {v4(r+4*ksl, f)}, v{self.VCR + 4*(p >> 1) + ksl} offset:{(p & 1)*SLOT + (slot & 1)*4096}", tag=tag)
            out.append(g)
        return out

    def bg_dma(self, rnd, i):
        a = self.a
        it = self.dma_unit(*(self.R2 if rnd == 2 else self.R3)[i], self.RSLOT[i], f"r{rnd}_{i}")
        first = it[0]

        def f():
            a.wait(lgkm=f"dr{rnd-1}_{i}")
            first()
        return [f] + it[1:]

    def bg_drain(self, rnd, i):
        a = self.a
        it = self.drain_unit(*(self.R1, self.R2, self.R3)[rnd - 1][i], self.RSLOT[i], f"dr{rnd}_{i}")
        first = it[0]

        def f():
            a.wait(vm=f"r{rnd}_{i}")
            first()
        return [f] + it[1:]

    ACC = 20

    def acc(self, m, n, part):
        return self.ACC + (n * 2 + part) * 8 + 4 * m

    def frag_reads(self, h):
        a = self.a
        s, u = h >> 1, h & 1
        slot = s % 4
        F = 100 + 48 * (h & 1)
        va = 10 + 2 * (slot >> 1) + u
        vb = 14 + 2 * (slot >> 1) + u
        so = (slot & 1) * SLOT
        out = []

        def rd(dst, vr, off):
            return lambda: a(f"ds_read_b128 {v4(dst)}, v{vr} offset:{off}", tag=f"fr{h}")
        out.append(rd(F, va, so))
        out.append(rd(F + 8, vb, so))
        out.append(rd(F + 4, va, so + 2048))
        for k in range(1, 10):
            n, part = k >> 1, k & 1
            out.append(rd(F + 8 + 4 * k, vb, so + part * PIECE + n * 1024))
        return out

    def gemm1(self):
        a, cfg = self.a, self.cfg
        a.wait(vm="st0")
        a("s_barrier")
        self.stamp("st0")
        for it in self.frag_reads(0):
            it()
        queue = self.dma_stage(2) + self.dma_stage(3)
        for h in range(20):
            s, u = h >> 1, h & 1
            fill = []
            if u == 1:
                if s < 9:
                    a.wait(vm=f"st{s+1}", lgkm=0)
                else:
                    a.wait(lgkm=0)
                a("s_barrier")
            else:
                a.wait(lgkm=0)
            rds = self.frag_reads(h + 1) if h < 19 else self.tab_reads1()
            if cfg.abl == 1 and h < 19:
                rds = rds[:1]
            if cfg.abl == 3 and h < 19:
                rds = rds[:6]
            for k, it in enumerate(rds):
                fill.append((k, it))
            if u == 1:
                if s + 4 <= 9:
                    queue += self.dma_stage(s + 4)
                    if s + 4 == 9:
                        queue += self.gate_loads()
                else:
                    sl = s % 4
                    k0 = 2 * (s - 6)
                    queue += self.dma_unit(*self.R1[k0], 2 * sl, f"r1_{k0}") + self.dma_unit(*self.R1[k0 + 1], 2 * sl + 1, f"r1_{k0+1}")
            take = min(len(queue), cfg.pace)
            if h >= 12:
                take = min(len(queue), cfg.pace_c)
            now, queue = queue[:take], queue[take:]
            if now:
                step = min(20.0 / len(now), cfg.maxstep)
                for k, it in enumerate(now):
                    fill.append((min(19, int(k * step + cfg.dma_phase)), it))
            F = 100 + 48 * (h & 1)
            g = 0
            for k in range(10):
                n, part = k >> 1, k & 1
                for m in range(2):
                    d = self.acc(m, n, part)
                    c = "0" if h == 0 else v4(d)
                    if cfg.abl != 4:
                        a(f"v_mfma_f32_16x16x32_bf16 {v4(d)}, {v4(F+4*m)}, {v4(F+8+4*k)}, {c}")
                    for gi, it in fill:
                        if gi == g:
                            it()
                    g += 1
        self.r1_rest = queue + self.dma_unit(4, 4, "odd", "r1_odd")
        self.stamp("gemm1")

    L1, L2, WQ = 196, 206, 216
    VP = 226
    VQ = 227
    U = 100

    def tab_reads1(self):
        a = self.a
        out = []

        def setup():
            a(f"v_and_b32 v{self.VP}, 15, v0")
            a(f"v_bfe_u32 v228, v0, 4, 2")
            a(f"v_lshlrev_b32 v{self.VP}, 3, v{self.VP}")
            a(f"v_add_u32 v{self.VP}, {TAB}, v{self.VP}")
        out.append(setup)

        def setup2():
            a(f"v_sub_u32 v229, 6, v228")
            a(f"v_cmp_eq_u32 vcc, 3, v228")
            a(f"v_mul_u32_u24 v229, 640, v229")
            a(f"v_cndmask_b32 v229, v229, 0, vcc".replace("v229, 0, vcc", "v229, v230, vcc"))
            a(f"v_add_u32 v{self.VQ}, v{self.VP}, v229")
        out.append(lambda: a("v_mov_b32 v230, 0"))
        out.append(setup2)
        for n in range(5):
            out.append(lambda n=n: a(f"ds_read_b64 {v2(self.L2+2*n)}, v{self.VP} offset:{2*640+128*n}", tag="t1"))
        for n in range(5):
            out.append(lambda n=n: a(f"ds_read_b64 {v2(self.L1+2*n)}, v{self.VP} offset:{1*640+128*n}", tag="t1"))
        for n in range(5):
            out.append(lambda n=n: a(f"ds_read_b64 {v2(self.WQ+2*n)}, v{self.VQ} offset:{128*n}", tag="t1"))
        out.append(self.c_read_setup)
        out.append(self.part_addr_setup)
        return out

    def part_addr_setup(self):
        a = self.a
        VPW, Q = 230 - 40, 228
        a(f"s_lshr_b32 s{sT0}, s{sW}, 1")
        a(f"s_lshl_b32 s{sT0}, s{sT0}, 8")
        a(f"s_and_b32 s{sT1}, s{sW}, 1")
        a(f"s_lshl_b32 s{sT1}, s{sT1}, 3")
        a(f"s_add_u32 s{sT0}, s{sT0}, s{sT1}")
        a(f"s_add_u32 s{sT0}, s{sT0}, {PART1}")
        a(f"v_and_b32 v2, 15, v0")
        a(f"v_lshlrev_b32 v2, 4, v2")
        a(f"v_lshrrev_b32 v1, 1, v{Q}")
        a(f"v_lshl_add_u32 v4, v1, 2, v2")
        a(f"v_add_u32 v4, s{sT0}, v4")
        a(f"v_and_b32 v1, 1, v{Q}")
        a(f"v_lshl_add_u32 v3, v1, 9, v4")
        a(f"v_add_u32 v1, {PART1}, v2")

    def swap_reduce(self, Z, part_base, vaddr):
        a = self.a
        for n in range(5):
            a(f"v_permlane32_swap_b32 v{Z+2*n}, v{Z+2*n+1}")
        for n in range(5):
            a(f"v_add_f32 v{Z+2*n}, v{Z+2*n}, v{Z+2*n+1}")
        a(f"v_mov_b32 v{Z+9}, v{Z+8}")
        a(f"v_permlane16_swap_b32 v{Z}, v{Z+2}")
        a(f"v_permlane16_swap_b32 v{Z+4}, v{Z+6}")
        a(f"v_permlane16_swap_b32 v{Z+8}, v{Z+9}")
        a(f"v_add_f32 v{Z}, v{Z}, v{Z+2}")
        a(f"v_add_f32 v{Z+4}, v{Z+4}, v{Z+6}")
        a(f"v_add_f32 v{Z+8}, v{Z+8}, v{Z+9}")
        a(f"ds_write_b32 v{vaddr}, v{Z} offset:{part_base}", tag="pw")
        a(f"ds_write_b32 v{vaddr}, v{Z+4} offset:{part_base+1024}", tag="pw")
        a(f"ds_write_b32 v{vaddr+1}, v{Z+8} offset:{part_base+2048}", tag="pw")

    def scan(self):
        a, cfg = self.a, self.cfg
        L1, L2, WQ, VP, U = self.L1, self.L2, self.WQ, self.VP, self.U
        E = 180
        Z = 100
        TA, TB = 110, 114
        VPW = 3
        Q = 228
        a.wait(lgkm="t1")
        a.bg(self.r1_rest, cfg.p1)
        for n in range(5):
            ur, ui = self.acc(0, n, 0), self.acc(0, n, 1)
            er, ei = ur, ui
            for k in range(1, 4):
                T = TA if k & 1 else TB
                a(f"v_pk_fma_f32 {v2(T)}, {v2(er)}, {v2(L2+2*n)}, {v2(ur+2*k)} op_sel_hi:[1,0,1]")
                a(f"v_pk_fma_f32 {v2(T+2)}, {v2(ei)}, {v2(L2+2*n)}, {v2(ui+2*k)} op_sel_hi:[1,0,1]")
                a(f"v_pk_fma_f32 {v2(T)}, {v2(ei)}, {v2(L2+2*n)}, {v2(T)} op_sel:[0,1,0] op_sel_hi:[1,1,1] neg_lo:[1,0,0] neg_hi:[1,0,0]")
                a(f"v_pk_fma_f32 {v2(T+2)}, {v2(er)}, {v2(L2+2*n)}, {v2(T+2)} op_sel:[0,1,0] op_sel_hi:[1,1,1]")
                er, ei = T, T + 2
            a(f"v_fma_f32 v{E+2*n}, v{L1+2*n}, v{er}, v{er+1}")
            a(f"v_fma_f32 v{E+2*n+1}, v{L1+2*n}, v{ei}, v{ei+1}")
            a(f"v_fma_f32 v{E+2*n}, -v{L1+2*n+1}, v{ei}, v{E+2*n}")
            a(f"v_fma_f32 v{E+2*n+1}, v{L1+2*n+1}, v{er}, v{E+2*n+1}")
            self.cmul(Z + 2 * n, E + 2 * n, WQ + 2 * n)
        a.bg_pause()
        self.swap_reduce(Z, 0, VPW)
        PN, PA, PL, PG = 110, 111, 112, 114
        a(f"v_lshl_add_u32 v{PN}, v{Q}, 2, s{sW}")
        a(f"v_min_u32 v{PA}, 4, v{PN}")
        a(f"v_lshl_add_u32 v{PL}, v{PA}, 7, v{VP}")
        a(f"ds_read_b64 {v2(PL)}, v{PL} offset:{7*640}", tag="p32")
        a(f"v_lshl_add_u32 v{PA}, v{PA}, 9, v1")
        a(f"s_lshl_b32 s{sT0}, s{sCG}, 4")
        a(f"s_add_u32 s{sT0}, s{sT0}, s{sTC}")
        a(f"s_mul_i32 s{sT0}, s{sT0}, 1280")
        a(f"s_add_u32 s{sT0}, s{sT0}, {WS_CARRY}")
        a(f"v_lshl_add_u32 v194, v{PN}, 8, v2")
        a(f"v_cmp_gt_u32 vcc, 5, v{PN}")
        a.wait(lgkm=0)
        a("s_barrier")
        a(f"ds_read_b128 {v4(120)}, v{PA}", tag="pr")
        a(f"ds_read_b128 {v4(124)}, v{PA} offset:256", tag="pr")
        a(f"v_mov_b32 v{PG+1}, s{sTAG}")
        a(f"v_mov_b32 v{PG+3}, s{sTAG}")
        a(f"s_and_saveexec_b64 {sp(sT2)}, vcc")
        a.wait(lgkm="pr")
        self.cfma(128, 120, PL, 122)
        self.cfma(130, 128, PL, 124)
        self.cfma(128, 130, PL, 126)
        a(f"v_mov_b32 v{PG}, v128")
        a(f"v_mov_b32 v{PG+2}, v129")
        a(f"buffer_store_dwordx4 {v4(PG)}, v194, {srd(SWS)}, s{sT0} offen sc1", tag="pub")
        a(f"s_mov_b64 exec, -1")
        self.stamp("pub")

        CF, L8 = L2, WQ
        for n in range(5):
            a(f"ds_read_b64 {v2(CF+2*n)}, v{VP} offset:{3*640+128*n}", tag="t2")
        for n in range(5):
            a(f"ds_read_b64 {v2(L8+2*n)}, v{VP} offset:{4*640+128*n}", tag="t2")
        a.bg_flush()
        items = []
        for i in range(8):
            items += self.bg_drain(1, i)
            if 0 <= i - 1 < cfg.n2:
                items += self.bg_dma(2, i - 1)
        if cfg.n2 == 8:
            items += self.bg_dma(2, 7)
        a.wait(lgkm="t2")
        a.bg(items, cfg.p2)
        for n in range(5):
            for j in range(8):
                ur, ui = self.acc(0, n, 0) + (j & ~1), self.acc(0, n, 1) + (j & ~1)
                o = j & 1
                d = U + 16 * n + 2 * j
                a(f"v_pk_mul_f32 {v2(d)}, {v2(CF+2*n)}, {v2(ur)} op_sel:[0,{o}] op_sel_hi:[1,{o}]")
                a(f"v_pk_fma_f32 {v2(d)}, {v2(CF+2*n)}, {v2(ui)}, {v2(d)} op_sel:[1,{o},0] op_sel_hi:[0,{o},1] neg_lo:[1,0,0]")
        A_, P_, C_, MU, L8Q, L32, X, WP = 20, 30, 40, 50, 60, 70, 80, 90
        SL, MC, V = 180, 216, 20
        a(f"v_and_b32 v90, 1, v{Q}")
        a(f"v_mul_u32_u24 v90, {4*640}, v90")
        a(f"v_add_u32 v90, v{VP}, v90")
        a(f"v_add_u32 v91, 3, v{Q}")
        a(f"v_cmp_eq_u32 vcc, 0, v{Q}")
        a(f"v_mul_u32_u24 v91, 640, v91")
        a(f"v_cndmask_b32 v91, v91, v230, vcc")
        a(f"v_add_u32 v91, v{VP}, v91")
        for n in range(5):
            a(f"ds_read_b64 {v2(MU+2*n)}, v90 offset:{128*n}", tag="t3")
        for n in range(5):
            a(f"ds_read_b64 {v2(L8Q+2*n)}, v91 offset:{128*n}", tag="t3")
        for n in range(5):
            a(f"ds_read_b64 {v2(L32+2*n)}, v{VP} offset:{7*640+128*n}", tag="t3")
        for n in range(5):
            a(f"v_mov_b64 {v2(A_+2*n)}, {v2(E+2*n)}")
        for n in range(5):
            a(f"v_permlane16_swap_b32 v{A_+2*n}, v{E+2*n}")
            a(f"v_permlane16_swap_b32 v{A_+2*n+1}, v{E+2*n+1}")
        for n in range(5):
            self.cfma(P_ + 2 * n, A_ + 2 * n, L8 + 2 * n, E + 2 * n)
        for n in range(5):
            a(f"v_mov_b64 {v2(C_+2*n)}, {v2(P_+2*n)}")
        for n in range(5):
            a(f"v_permlane32_swap_b32 v{C_+2*n}, v{P_+2*n}")
            a(f"v_permlane32_swap_b32 v{C_+2*n+1}, v{P_+2*n+1}")
        per = a.bg_pause()
        a("s_mov_b32 exec_hi, 0")
        for n in range(5):
            a(f"v_mov_b64 {v2(C_+2*n)}, 0")
        a("s_mov_b32 exec_lo, 0xffff")
        a("s_mov_b32 exec_hi, 0xffff")
        for n in range(5):
            a(f"v_mov_b64 {v2(A_+2*n)}, 0")
        a("s_mov_b64 exec, -1")
        a.bg_period = per
        a.wait(lgkm="t3")
        for n in range(5):
            self.cfma(P_ + 2 * n, C_ + 2 * n, MU + 2 * n, A_ + 2 * n)
        for n in range(5):
            a(f"ds_read_b64 {v2(X+2*n)}, v1 offset:{512*n}", tag="t4")
        for n in range(5):
            a(f"ds_read_b64 {v2(A_+2*n)}, v1 offset:{512*n+8}", tag="t4")
        for n in range(5):
            a(f"ds_read_b64 {v2(C_+2*n)}, v1 offset:{512*n+256}", tag="t4")
        a.bg_pause()
        a(f"s_add_u32 s{sT0}, s{sW}, 6")
        a(f"s_cmp_eq_u32 s{sW}, 0")
        a(f"s_cselect_b32 s{sT0}, 0, s{sT0}")
        a(f"s_mul_i32 s{sT0}, s{sT0}, 640")
        a(f"v_add_u32 v90, s{sT0}, v{VP}")
        for n in range(5):
            a(f"ds_read_b64 {v2(MU+2*n)}, v90 offset:{128*n}", tag="t4")
        a.wait(lgkm=0)
        a(f"s_cmp_lt_u32 s{sW}, 2")
        a("s_cbranch_scc1 L_x1")
        for n in range(5):
            self.cfma(A_ + 2 * n, X + 2 * n, L32 + 2 * n, A_ + 2 * n)
            a(f"v_mov_b64 {v2(X+2*n)}, {v2(A_+2*n)}")
        a(f"s_cmp_lt_u32 s{sW}, 3")
        a("s_cbranch_scc1 L_x1")
        for n in range(5):
            self.cfma(C_ + 2 * n, X + 2 * n, L32 + 2 * n, C_ + 2 * n)
            a(f"v_mov_b64 {v2(X+2*n)}, {v2(C_+2*n)}")
        a("L_x1:")
        a(f"s_cmp_lg_u32 s{sW}, 0")
        a("s_cbranch_scc1 L_x2")
        for n in range(5):
            a(f"v_mov_b64 {v2(X+2*n)}, 0")
        a("L_x2:")
        a.bg_period = per
        a(f"s_lshl_b32 s{sT0}, s{sW}, 2")
        a(f"s_sub_u32 s{sT1}, s{sTC}, s{sT0}")
        a(f"s_sub_u32 s{sT1}, s{sT1}, 1")
        a(f"v_sub_u32 v92, s{sT1}, v{Q}")
        a(f"v_max_i32 v93, 0, v92")
        a(f"v_and_b32 v90, 3, v93")
        a(f"v_lshrrev_b32 v91, 2, v93")
        a(f"v_cmp_eq_u32 vcc, 0, v90")
        a(f"v_add_u32 v90, 9, v90")
        a(f"v_mul_u32_u24 v90, 640, v90")
        a(f"v_cndmask_b32 v90, v90, v230, vcc")
        a(f"v_cmp_eq_u32 vcc, 0, v91")
        a(f"v_add_u32 v91, 12, v91")
        a(f"v_mul_u32_u24 v91, 640, v91")
        a(f"v_cndmask_b32 v91, v91, v230, vcc")
        a(f"v_add_u32 v90, v{VP}, v90")
        a(f"v_add_u32 v91, v{VP}, v91")
        for n in range(5):
            a(f"ds_read_b64 {v2(C_+2*n)}, v90 offset:{128*n}", tag="t5")
        for n in range(5):
            a(f"ds_read_b64 {v2(L32+2*n)}, v91 offset:{128*n}", tag="t5")
        for n in range(5):
            self.cfma(P_ + 2 * n, X + 2 * n, L8Q + 2 * n, P_ + 2 * n)
            self.cmul(SL + 2 * n, P_ + 2 * n, CF + 2 * n)
            self.cmul(X + 2 * n, L8Q + 2 * n, MU + 2 * n)
            self.cmul(MC + 2 * n, X + 2 * n, CF + 2 * n)
        a.wait(lgkm="t5")
        for n in range(5):
            self.cmul(V + 2 * n, C_ + 2 * n, L32 + 2 * n)
        self.gate()
        G = 40
        a(f"s_lshl_b32 s{sT1}, s{sCG}, 4")
        a(f"s_add_u32 s{sT1}, s{sT1}, s{sT0}")
        a(f"s_mul_i32 s{sT1}, s{sT1}, 1280")
        a(f"s_add_u32 s{sT1}, s{sT1}, {WS_CARRY}")
        a(f"v_mul_u32_u24 v90, 1280, v{Q}")
        a(f"v_add_u32 v90, v90, v2")
        for k in range(0, 20, 2):
            a(f"v_mov_b64 {v2(G+k)}, 0")
        a(f"v_cmp_le_i32 vcc, 0, v92")
        a.bg_flush()
        a(f"s_mov_b32 s{sSPIN}, {cfg.spin}")
        self.stamp("w1done")
        a.wait(vm=0)
        a(f"s_and_saveexec_b64 {sp(sT2)}, vcc")
        a("s_cbranch_execz L_got")
        a("L_poll1:")
        for n in range(5):
            a(f"buffer_load_dwordx4 {v4(G+4*n)}, v90, {srd(SWS)}, s{sT1} offen offset:{256*n} sc1", tag="g1")
        a(f"s_sub_u32 s{sSPIN}, s{sSPIN}, 1")
        a.wait(vm=0)
        a(f"v_min3_u32 v94, v{G+1}, v{G+3}, v{G+5}")
        a(f"v_max3_u32 v95, v{G+1}, v{G+3}, v{G+5}")
        for k in (7, 11, 15):
            a(f"v_min3_u32 v94, v94, v{G+k}, v{G+k+2}")
            a(f"v_max3_u32 v95, v95, v{G+k}, v{G+k+2}")
        a(f"v_min_u32 v94, v94, v{G+19}")
        a(f"v_max_u32 v95, v95, v{G+19}")
        a(f"v_cmp_ne_u32 vcc, s{sTAG}, v94")
        a(f"v_cmp_ne_u32 {sp(sT2)}, s{sTAG}, v95")
        a(f"s_or_b64 vcc, vcc, {sp(sT2)}")
        a(f"s_cmp_eq_u32 s{sSPIN}, 0")
        a("s_cbranch_scc1 L_got")
        a("s_cbranch_vccnz L_poll1")
        a("L_got:")
        a("s_mov_b64 exec, -1")
        self.stamp("got")
        Z2 = 60
        for n in range(5):
            a(f"v_pk_mul_f32 {v2(Z2+2*n)}, {v2(V+2*n)}, {v2(G+4*n)} op_sel_hi:[1,0]")
            a(f"v_pk_fma_f32 {v2(Z2+2*n)}, {v2(V+2*n)}, {v2(G+4*n+2)}, {v2(Z2+2*n)} op_sel:[1,0,0] op_sel_hi:[0,0,1] neg_lo:[1,0,0]")
        self.swap_reduce(Z2, 2560, VPW)
        a.wait(lgkm=0)
        a("s_barrier")
        for n in range(5):
            a(f"ds_read_b128 {v4(20+8*n)}, v1 offset:{2560+512*n}", tag=f"cr{n}")
            a(f"ds_read_b128 {v4(24+8*n)}, v1 offset:{2560+512*n+256}", tag=f"cr{n}")
        HS = 90
        a(f"s_lshl_b32 s{sT0}, s{sTC}, 1")
        a(f"s_lshr_b32 s{sT1}, s{sW}, 1")
        a(f"s_add_u32 s{sT0}, s{sT0}, s{sT1}")
        a(f"s_lshl_b32 s{sT0}, s{sT0}, 4")
        a(f"s_add_u32 s{sT0}, s{sT0}, s{sCG}")
        a(f"s_and_b32 s{sT1}, s{sW}, 1")
        a(f"s_lshl_b32 s{sT3}, s{sT0}, 1")
        a(f"s_add_u32 s{sT3}, s{sT3}, s{sT1}")
        a(f"s_lshl_b32 s{sT3}, s{sT3}, 7")
        a(f"s_add_u32 s{sT3}, s{sT3}, {WS_FLAG}")
        a(f"s_mul_i32 s{sT0}, s{sT0}, 20480")
        a(f"s_lshl_b32 s{sT1}, s{sT1}, 11")
        a(f"s_add_u32 s{sT0}, s{sT0}, s{sT1}")
        a(f"s_add_u32 s{sT0}, s{sT0}, {WS_H}")
        a(f"v_and_b32 v{HS}, 1, v{Q}")
        a(f"v_lshlrev_b32 v{HS}, 6, v{HS}")
        a(f"v_xor_b32 v{HS}, v{HS}, v2")
        a(f"v_lshl_add_u32 v{HS}, v{Q}, 8, v{HS}")
        items = []
        for i in range(cfg.d4):
            items += self.bg_drain(2, i)
        for i in range(cfg.n2, cfg.n2 + cfg.n4):
            items += self.bg_dma(2, i)
        a.bg(items, cfg.p4)
        PK = 60
        for n in range(5):
            w0 = 20 + 8 * n
            a.wait(lgkm=f"cr{n}")
            a(f"v_pk_add_f32 {v2(w0)}, {v2(w0)}, {v2(w0+2)}")
            a(f"v_pk_add_f32 {v2(w0+4)}, {v2(w0+4)}, {v2(w0+6)}")
            a(f"v_pk_add_f32 {v2(w0)}, {v2(w0)}, {v2(w0+4)}")
            self.cfma(SL + 2 * n, w0, MC + 2 * n, SL + 2 * n)
            prev = SL + 2 * n
            for j in range(8):
                d = U + 16 * n + 2 * j
                self.cfma(d, prev, L1 + 2 * n, d)
                prev = d
            pk = PK + 8 * (n & 1)
            for k in range(4):
                d = U + 16 * n + 4 * k
                a(f"v_cvt_pk_bf16_f32 v{pk+k}, v{d}, v{d+2}")
            a(f"buffer_store_dwordx4 {v4(pk)}, v{HS}, {srd(SWS)}, s{sT0} offen sc1", tag="hst")
            for k in range(4):
                d = U + 16 * n + 4 * k
                a(f"v_cvt_pk_bf16_f32 v{pk+4+k}, -v{d+1}, -v{d+3}")
            a(f"buffer_store_dwordx4 {v4(pk+4)}, v{HS}, {srd(SWS)}, s{sT0} offen offset:1024 sc1", tag="hst")
            if n < 4:
                a(f"s_add_u32 s{sT0}, s{sT0}, 4096")
        self.stamp("hst")
        a.bg_pause()
        items = list(a.bgq)
        a.bgq = []
        for i in range(cfg.n2 + cfg.n4, 8):
            items += self.bg_dma(2, i)
        for i in range(8):
            if i >= cfg.d4:
                items += self.bg_drain(2, i)
            items += self.bg_dma(3, i)
        a(f"v_mov_b32 v{self.FG+1}, s{sTAG}")
        a(f"v_mov_b32 v{self.FG+3}, s{sTAG}")
        a(f"v_mov_b32 v94, 0")
        for it in items[:cfg.n5]:
            it()
        a.wait(vm="hst")
        a("s_mov_b64 exec, 1")
        a(f"buffer_store_dwordx4 {v4(self.FG)}, v94, {srd(SWS)}, s{sT3} offen sc1", tag="flag")
        a("s_mov_b64 exec, -1")
        self.stamp("flag")
        for it in items[cfg.n5:]:
            it()

    FG = 196 + 56

    def gate(self):
        a = self.a
        GX, GW, FG = self.GX, self.GW, self.FG
        T = 94
        a.wait(vm="gate")
        a(f"v_mov_b32 v{T}, 0")
        for k in range(10):
            a(f"v_dot2_f32_bf16 v{T}, v{GX+k}, v{GW+k}, v{T}")
        for r in (8, 4, 2, 1):
            a(f"v_add_f32_dpp v{T}, v{T}, v{T} row_ror:{r} row_mask:0xf bank_mask:0xf")
        a(f"v_mov_b32 v{T+1}, v{T}")
        a(f"v_permlane16_swap_b32 v{T}, v{T+1}")
        a(f"v_add_f32 v{T}, v{T}, v{T+1}")
        a(f"v_cvt_pk_bf16_f32 v{T}, v{T}, v{T}")
        a(f"v_lshlrev_b32 v{T}, 16, v{T}")
        a(f"v_mul_f32 v{T}, 0xbfb8aa3b, v{T}")
        a(f"v_exp_f32 v{T}, v{T}")
        a(f"v_add_f32 v{T}, 1.0, v{T}")
        a(f"v_rcp_f32 v{T}, v{T}")
        a(f"v_cvt_pk_bf16_f32 v{T}, v{T}, v{T}")
        a(f"v_lshlrev_b32 v{FG}, 16, v{T}")
        a(f"v_mov_b32 v{FG+2}, v{FG}")
        a(f"v_permlane32_swap_b32 v{FG}, v{FG+2}")

    ACC2 = 132
    HF = 212
    VT = 244
    VH = 248
    GG = 250

    def acc2(self, nt, mt):
        return self.ACC2 + 16 * nt + 4 * mt

    def h_dma(self, ks):
        a = self.a
        slot = ks % 7
        out = []
        for b in range(4):
            def f(b=b):
                if b == 0:
                    a(f"s_add_u32 m0, s{sBW}, {(slot >> 1)*SLOT + (slot & 1)*4096}")
                a(f"buffer_load_dwordx4 v{self.VH}, {srd(SWS)}, s{sK} offen offset:{1024*b} {self.cfg.hpol} lds", tag=f"h{ks}")
                if b == 3:
                    a(f"s_add_u32 s{sK}, s{sK}, 4096")
                    if self.cfg.rot2 and (ks & 3) == 3:
                        a(f"s_cmp_eq_u32 s{sK}, s{sHE}")
                        a(f"s_cselect_b32 s{sK}, s{sHB}, s{sK}")
            out.append(f)
        return out

    def h_reads(self, ks):
        a = self.a
        slot = ks % 7
        p = slot >> 1
        F = self.HF + 16 * (ks & 1)
        out = []
        for mt in range(4):
            for rho in range(2):
                def f(mt=mt, rho=rho):
                    off = (p & 1) * SLOT + (slot & 1) * 4096 + (mt >> 1) * 2048 + (mt & 1) * 512
                    a(f"ds_read_b64_tr_b16 {v2(F+4*mt+2*rho)}, v{self.VT + 2*(p >> 1) + rho} offset:{off}", tag=f"hr{ks}")
                out.append(f)
        return out

    def gemm2(self):
        a, cfg = self.a, self.cfg
        VT, VH, GG = self.VT, self.VH, self.GG
        T0, T1, T2, T3 = 1, 2, 3, 4
        a(f"v_bfe_u32 v{T0}, v0, 2, 2")
        a(f"v_bfe_u32 v{T1}, v0, 4, 1")
        a(f"v_lshl_add_u32 v{T0}, v{T1}, 3, v{T0}")
        a(f"v_bfe_u32 v{T1}, v0, 1, 1")
        a(f"v_lshlrev_b32 v{T2}, 2, v{T1}")
        a(f"v_xor_b32 v{T0}, v{T0}, v{T2}")
        a(f"v_lshlrev_b32 v{T0}, 4, v{T0}")
        a(f"v_lshl_add_u32 v{T0}, v{T1}, 8, v{T0}")
        a(f"v_and_b32 v{T1}, 1, v0")
        a(f"v_lshl_add_u32 v{T0}, v{T1}, 3, v{T0}")
        a(f"v_bfe_u32 v{T1}, v0, 5, 1")
        a(f"v_lshl_add_u32 v{T0}, v{T1}, 10, v{T0}")
        a(f"v_add_u32 v{VT}, s{sBW}, v{T0}")
        a(f"v_xor_b32 v{VT+1}, 64, v{VT}")
        a(f"v_add_u32 v{VT+2}, {2*SLOT}, v{VT}")
        a(f"v_add_u32 v{VT+3}, {2*SLOT}, v{VT+1}")
        a(f"v_and_b32 v{VH}, 63, v0")
        a(f"v_lshrrev_b32 v{T3}, 3, v{VH}")
        a(f"v_lshlrev_b32 v{T3}, 7, v{T3}")
        a(f"v_lshlrev_b32 v{VH}, 4, v{VH}")
        a(f"s_lshl_b32 s{sT0}, s{sRT}, 2")
        a(f"s_add_u32 s{sT0}, s{sT0}, s{sW}")
        a(f"s_lshl_b32 s{sT1}, s{sT0}, 10")
        a(f"s_add_u32 s{sT1}, s{sT1}, {WS_FLAG}")
        a(f"s_mul_i32 s{sT0}, s{sT0}, 81920")
        a(f"s_add_u32 s{sT0}, s{sT0}, {WS_H}")
        for i in range(8):
            if self.R3[i] != (4, 3):
                for it in self.bg_drain(3, i):
                    it()
        a(f"s_mov_b32 s{sHB}, s{sT0}")
        a(f"s_add_u32 s{sHE}, s{sT0}, 81920")
        a(f"s_lshl_b32 s{sK}, s{sKQ}, 7")
        a(f"s_add_u32 s{sK}, s{sK}, s{sT0}")
        a(f"s_mov_b32 s{sSPIN}, {cfg.spin}")
        self.stamp("w3done")
        PV = 6
        a("L_poll2:")
        a(f"buffer_load_dwordx4 {v4(PV)}, v{T3}, {srd(SWS)}, s{sT1} offen sc1", tag="g2")
        a(f"s_sub_u32 s{sSPIN}, s{sSPIN}, 1")
        a.wait(vm=0)
        a(f"v_cmp_ne_u32 vcc, s{sTAG}, v{PV+1}")
        a(f"v_cmp_ne_u32 {sp(sT2)}, s{sTAG}, v{PV+3}")
        a(f"s_or_b64 vcc, vcc, {sp(sT2)}")
        a(f"s_cmp_eq_u32 s{sSPIN}, 0")
        a("s_cbranch_scc1 L_got2")
        a("s_cbranch_vccnz L_poll2")
        a("L_got2:")
        a.wait(lgkm=0)
        self.stamp("got2")
        for ks in range(7):
            for it in self.h_dma(ks):
                it()
        a(f"v_and_b32 v{T0}, 4, v0")
        a(f"v_cmp_ne_u32 vcc, 0, v{T0}")
        a(f"v_cndmask_b32 v{GG}, v{PV}, v{PV+2}, vcc")
        a(f"v_sub_f32 v{GG+1}, 1.0, v{GG}")
        a(f"v_cvt_pk_bf16_f32 v{GG+1}, v{GG+1}, v{GG+1}")
        a(f"v_lshlrev_b32 v{GG+1}, 16, v{GG+1}")
        XO, DO, OO, EW, ER, OD = 1, 2, 3, 4, 5, 249
        a(f"v_bfe_u32 v6, v0, 2, 4")
        a(f"v_and_b32 v7, 3, v0")
        a(f"s_lshl_b32 s{sT0}, s{sRT}, 2")
        a(f"s_add_u32 s{sT0}, s{sT0}, s{sW}")
        a(f"s_lshl_b32 s{sT0}, s{sT0}, 4")
        a(f"s_mul_i32 s{sT1}, s{sDG}, 80")
        a(f"v_add_u32 v8, s{sT0}, v6")
        a(f"v_mul_u32_u24 v8, 640, v8")
        a(f"v_lshl_add_u32 v9, v7, 2, s{sT1}")
        a(f"v_add_u32 v8, v8, v9")
        a(f"v_lshlrev_b32 v{XO}, 1, v8")
        a(f"v_lshlrev_b32 v{OO}, 2, v8")
        a(f"v_lshlrev_b32 v{DO}, 1, v9")
        a(f"v_bfe_u32 v8, v6, 1, 2")
        a(f"v_xor_b32 v8, v8, v7")
        a(f"v_lshlrev_b32 v8, 4, v8")
        a(f"v_mul_u32_u24 v9, 320, v6")
        a(f"s_mul_i32 s{sT1}, s{sW}, {SLOT}")
        a(f"v_add3_u32 v{ER}, v8, v9, s{sT1}")
        a(f"v_and_b32 v6, 15, v0")
        a(f"v_bfe_u32 v7, v0, 4, 2")
        a(f"v_bfe_u32 v8, v6, 1, 2")
        a(f"v_xor_b32 v8, v8, v7")
        a(f"v_lshlrev_b32 v8, 4, v8")
        a(f"v_mul_u32_u24 v9, 320, v6")
        a(f"v_add3_u32 v{EW}, v8, v9, s{sBW}")
        a(f"v_bfe_u32 v7, v0, 5, 1")
        a(f"v_lshrrev_b32 v8, 3, v6")
        a(f"v_lshl_add_u32 v7, v7, 1, v8")
        a(f"v_mul_u32_u24 v7, {SLOT}, v7")
        a(f"v_and_b32 v8, 0x3ff, v{self.VCR}".replace(f"v{self.VCR}", f"v{self.VCR}"))
        a(f"v_add3_u32 v{OD}, v7, v8, s{sBW}")
        a(f"v_add_u32 v{OD}, 8192, v{OD}")
        a.wait(vm="h0")
        for it in self.h_reads(0):
            it()
        XS, DA, DB, SK = 52, 62, 72, 82
        skip_ops = []
        for i in range(5):
            x0, da, db, sk = XS + 2 * i, DA + 2 * i, DB + 2 * i, 6
            t = 10
            o = []
            o.append(f"v_lshlrev_b32 v{t}, 16, v{x0}")
            o.append(f"v_and_b32 v{t+1}, 0xffff0000, v{x0}")
            o.append(f"v_lshlrev_b32 v{t+2}, 16, v{x0+1}")
            o.append(f"v_and_b32 v{t+3}, 0xffff0000, v{x0+1}")
            for (dsk, gq, first) in ((da, GG, True), (db, GG + 1, False)):
                o.append(f"v_lshlrev_b32 v{t+4}, 16, v{dsk}")
                o.append(f"v_and_b32 v{t+5}, 0xffff0000, v{dsk}")
                o.append(f"v_lshlrev_b32 v{t+6}, 16, v{dsk+1}")
                o.append(f"v_and_b32 v{t+7}, 0xffff0000, v{dsk+1}")
                for e in range(4):
                    o.append(f"v_mul_f32 v{t+4+e}, v{t+e}, v{t+4+e}")
                o.append(f"v_cvt_pk_bf16_f32 v{t+4}, v{t+4}, v{t+5}")
                o.append(f"v_cvt_pk_bf16_f32 v{t+6}, v{t+6}, v{t+7}")
                o.append(f"v_and_b32 v{t+5}, 0xffff0000, v{t+4}")
                o.append(f"v_lshlrev_b32 v{t+4}, 16, v{t+4}")
                o.append(f"v_and_b32 v{t+7}, 0xffff0000, v{t+6}")
                o.append(f"v_lshlrev_b32 v{t+6}, 16, v{t+6}")
                for e in range(4):
                    dst = self.skreg(i) + e
                    if first:
                        o.append(f"v_mul_f32 v{dst}, v{gq}, v{t+4+e}")
                    else:
                        o.append(f"v_fmac_f32 v{dst}, v{gq}, v{t+4+e}")
            skip_ops += o
        for ks in range(20):
            kq, ksl = ks >> 2, ks & 3
            fill = []
            if ks < 19:
                a.wait(vm=f"h{ks+1}", lgkm=0)
                for k, it in enumerate(self.h_reads(ks + 1)):
                    fill.append((k, it))
            else:
                a.wait(lgkm=0)
            if ks + 7 < 20:
                for k, it in enumerate(self.h_dma(ks + 7)):
                    fill.append((2 + 5 * k, it))
            if ks == 12:
                def ld():
                    for i in range(5):
                        a(f"global_load_dwordx2 {v2(XS+2*i)}, v{XO}, {sp(pX)} offset:{32*i}", tag="ep")
                    for i in range(5):
                        a(f"global_load_dwordx2 {v2(DA+2*i)}, v{DO}, {sp(pDA)} offset:{32*i}", tag="ep")
                    for i in range(5):
                        a(f"global_load_dwordx2 {v2(DB+2*i)}, v{DO}, {sp(pDB)} offset:{32*i}", tag="ep")
                fill.append((19, ld))
            if ks == 5:
                for k, it in enumerate(self.drain_unit(4, 3, 7, "late")):
                    fill.append((9 + k, it))
                for k in range(4):
                    def g(k=k):
                        if k:
                            a(f"v_xor_b32 v9, {32*k}, v{OD}")
                        a(f"ds_read_b128 {v4(self.CV+16+4*k)}, v{9 if k else OD}", tag="late")
                    fill.append((13 + k, g))
            F = self.HF + 16 * (ks & 1)
            g = 0
            for nt in range(5):
                f, r = self.c_home(kq, nt)
                for mt in range(4):
                    d = self.acc2(nt, mt)
                    c = "0" if ks == 0 else v4(d)
                    a(f"v_mfma_f32_16x16x32_bf16 {v4(d)}, {v4(r+4*ksl, f)}, {v4(F+4*mt)}, {c}")
                    for gi, it in fill:
                        if gi == g:
                            it()
                    g += 1
        self.stamp("gemm2")
        a(f"v_add_u32 v9, {2*SLOT}, v{EW}")
        for nt in range(5):
            for mt in range(4):
                a(f"ds_write_b128 v{9 if mt >> 1 else EW}, {v4(self.acc2(nt, mt))} offset:{(mt & 1)*SLOT + 64*nt}", tag="ew")
        a.wait(vm="ep")
        for o in skip_ops:
            a(o)
        a.wait(lgkm=0)
        a("s_barrier")
        RB = 132
        for i in range(5):
            for wp in range(4):
                a(f"ds_read_b128 {v4(RB+16*i+4*wp)}, v{ER} offset:{wp*PIECE + 64*i}", tag=f"er{i}")
        for i in range(5):
            b = RB + 16 * i
            sk = self.skreg(i)
            a.wait(lgkm=f"er{i}")
            for hlf in range(2):
                a(f"v_pk_add_f32 {v2(b+2*hlf)}, {v2(b+2*hlf)}, {v2(b+4+2*hlf)}")
                a(f"v_pk_add_f32 {v2(b+8+2*hlf)}, {v2(b+8+2*hlf)}, {v2(b+12+2*hlf)}")
            for hlf in range(2):
                a(f"v_pk_fma_f32 {v2(sk+2*hlf)}, {v2(b+2*hlf)}, {v2(GG)}, {v2(sk+2*hlf)} op_sel_hi:[1,0,1]")
                a(f"v_pk_fma_f32 {v2(sk+2*hlf)}, {v2(b+8+2*hlf)}, {v2(GG)}, {v2(sk+2*hlf)} op_sel:[0,1,0] op_sel_hi:[1,1,1]")
            a(f"buffer_store_dwordx4 {v4(sk)}, v{OO}, {srd(SOUT)}, 0 offen offset:{64*i}", tag="out")
        self.stamp("outst")
        a(f"s_cmp_lg_u32 s{sRT}, 31")
        a("s_cbranch_scc1 L_noep")
        a(f"s_or_b32 s{sT0}, s{sDG}, s{sW}")
        a(f"s_cmp_lg_u32 s{sT0}, 0")
        a("s_cbranch_scc1 L_noep")
        a(f"v_mov_b32 v6, s{sTAG}")
        a(f"v_mov_b32 v7, 0")
        a("s_mov_b64 exec, 1")
        a(f"buffer_store_dword v6, v7, {srd(SWS)}, 0 offen offset:{WS_EPOCH}", counted=False)
        a("s_mov_b64 exec, -1")
        a("L_noep:")

    def skreg(self, i):
        return 100 + 4 * i

    def finish(self):
        a = self.a
        if self.cfg.prof:
            a.wait(vm=0)
            self.stamp("end")
            self.stamp("rt1")
            a("s_waitcnt lgkmcnt(0)")
            a(f"s_lshl_b32 s{sT0}, s2, 2")
            a(f"s_add_u32 s{sT0}, s{sT0}, s{sW}")
            a(f"s_lshl_b32 s{sT0}, s{sT0}, 7")
            a(f"s_add_u32 s{sT0}, s{sT0}, {WS_PROF}")
            a("v_mov_b32 v6, 0")
            a("s_mov_b64 exec, 1")
            for k in range(self.nstamp):
                a(f"v_mov_b32 v7, s{STAMP_REGS[k]}")
                a(f"buffer_store_dword v7, v6, {srd(SWS)}, s{sT0} offen offset:{4*k}")
            a(f"s_getreg_b32 s{sT1}, hwreg(HW_REG_XCC_ID)")
            a(f"v_mov_b32 v7, s{sT1}")
            a(f"buffer_store_dword v7, v6, {srd(SWS)}, s{sT0} offen offset:124")
        a("L_end:")
        a("s_endpgm")

    def build(self):
        self.prologue()
        self.gemm1()
        self.scan()
        self.gemm2()
        self.finish()
        n = self.a.fix_hazards(verbose=self.cfg.verbose)
        errs = self.a.check_waits()
        for e in errs:
            print("WAIT ERROR:", e, file=sys.stderr)
        assert not errs
        print("wait states inserted:", n, " instructions:", len(self.a.ins), file=sys.stderr)
        ref = open(os.path.join(os.path.dirname(os.path.abspath(__file__)), "..", "cdna_kernels", NAME + ".s.ref")).read()
        head = []
        for line in ref.split("\n"):
            if line.startswith("; @launch"):
                break
            head.append(line)
        txt = "\n".join(head) + f"\n; @launch grid=(256,1,1) block=(256,1,1) lds={LDS_BYTES}\n"
        txt += f""".amdgcn_target "amdgcn-amd-amdhsa--gfx950"
.text
.globl {NAME}_kernel
.p2align 8
.type {NAME}_kernel,@function
{NAME}_kernel:
"""
        txt += self.a.text()
        txt += f""".section .rodata,"a"
.p2align 6
.amdhsa_kernel {NAME}_kernel
  .amdhsa_next_free_vgpr 512
  .amdhsa_next_free_sgpr 102
  .amdhsa_accum_offset 256
  .amdhsa_group_segment_fixed_size 0
  .amdhsa_kernarg_size 176
  .amdhsa_user_sgpr_count 2
  .amdhsa_user_sgpr_kernarg_segment_ptr 1
  .amdhsa_system_sgpr_workgroup_id_x 1
  .amdhsa_float_denorm_mode_32 3
.end_amdhsa_kernel
"""
        return txt


def main():
    p = argparse.ArgumentParser()
    p.add_argument("-o", default=None)
    p.add_argument("--prof", type=int, default=0)
    p.add_argument("--place", type=int, default=3)
    p.add_argument("--place2", type=int, default=2)
    p.add_argument("--rot", type=int, default=1)
    p.add_argument("--rot2", type=int, default=1)
    p.add_argument("--xpol", default="")
    p.add_argument("--bpol", default="")
    p.add_argument("--cpol", default="")
    p.add_argument("--hpol", default="sc1")
    p.add_argument("--par_after", type=int, default=0)
    p.add_argument("--st1_first", type=int, default=0)
    p.add_argument("--pace", type=int, default=9)
    p.add_argument("--pace_c", type=int, default=4)
    p.add_argument("--maxstep", type=float, default=20)
    p.add_argument("--dma_phase", type=float, default=1)
    p.add_argument("--p1", type=int, default=0)
    p.add_argument("--n2", type=int, default=5)
    p.add_argument("--p2", type=int, default=5)
    p.add_argument("--n4", type=int, default=0)
    p.add_argument("--d4", type=int, default=4)
    p.add_argument("--p4", type=int, default=6)
    p.add_argument("--n5", type=int, default=20)
    p.add_argument("--abl", type=int, default=0)
    p.add_argument("--probe", type=int, default=0)
    p.add_argument("--probe_src", default="bx")
    p.add_argument("--probe_stride", type=int, default=10240)
    p.add_argument("--probe_off", type=int, default=0)
    p.add_argument("--spin", type=int, default=20000)
    p.add_argument("--verbose", type=int, default=0)
    cfg = p.parse_args()
    g = Gen(cfg)
    txt = g.build()
    out = cfg.o or os.path.join(os.path.dirname(os.path.abspath(__file__)), "..", "cdna_kernels", NAME + ".s")
    open(out, "w").write(txt)
    if cfg.prof:
        open(out + ".stamps", "w").write("\n".join(g.stamp_names))


if __name__ == "__main__":
    main()
```

```python
import re

REG_RE = re.compile(r"(?<![\w.])(-?)(?:abs\()?([vas])(?:(\d+)|\[(\d+):(\d+)\])")


def regs_of(tok):
    out = set()
    t = tok.strip()
    if t in ("vcc", "vcc_lo", "vcc_hi"):
        return {("s", "vcc")}
    if t in ("exec", "exec_lo", "exec_hi"):
        return {("s", "exec")}
    if t == "m0":
        return {("s", "m0")}
    m = REG_RE.match(t)
    if m:
        f = m.group(2)
        if m.group(3) is not None:
            out.add((f, int(m.group(3))))
        else:
            for i in range(int(m.group(4)), int(m.group(5)) + 1):
                out.add((f, i))
    return out


TRANS = ("v_exp_f32", "v_log_f32", "v_rcp_f32", "v_rsq_f32", "v_sqrt_f32", "v_sin_f32", "v_cos_f32")


class Ins:
    __slots__ = ("text", "op", "kind", "rd", "wr", "srcc", "srcab", "tag", "label", "target", "states",
                 "dpp", "lds_dma", "wide_store", "sgpr_rd_vmem", "passes", "counted", "waits", "slow")

    def __init__(self, text, tag=None, counted=True):
        self.text = text
        self.tag = tag
        self.counted = counted
        self.slow = False
        self.label = None
        self.target = None
        self.rd = set()
        self.wr = set()
        self.srcc = set()
        self.srcab = set()
        self.states = 1
        self.dpp = False
        self.lds_dma = False
        self.wide_store = set()
        self.passes = 0
        self.waits = {}
        t = text.split(";")[0].strip()
        if t.endswith(":"):
            self.label = t[:-1]
            self.kind = "label"
            self.op = ""
            self.states = 0
            return
        if t.startswith(".") or not t:
            self.kind = "dir"
            self.op = ""
            self.states = 0
            return
        parts = t.split(None, 1)
        op = parts[0]
        self.op = op
        rest = parts[1] if len(parts) > 1 else ""
        ops = []
        cur = ""
        depth = 0
        for ch in rest:
            if ch in "[(":
                depth += 1
            if ch in "])":
                depth -= 1
            if ch == "," and depth == 0:
                ops.append(cur.strip())
                cur = ""
            else:
                cur += ch
        if cur.strip():
            ops.append(cur.strip())
        mods = ""
        if ops:
            sp = ops[-1].split(None, 1)
            ops[-1] = sp[0]
            mods = sp[1] if len(sp) > 1 else ""
        R = [regs_of(o) for o in ops]

        def u(lst):
            s = set()
            for x in lst:
                s |= x
            return s

        if op.startswith("v_mfma"):
            self.kind = "mfma"
            self.wr = R[0]
            self.srcab = R[1] | R[2]
            self.srcc = R[3]
            self.rd = self.srcab | self.srcc
            self.passes = 8 if "32x32x16" in op else 4
        elif op.startswith("v_cmp"):
            self.kind = "valu"
            self.wr = R[0]
            self.rd = u(R[1:])
        elif op.startswith("v_permlane"):
            self.kind = "valu"
            self.wr = R[0] | R[1]
            self.rd = R[0] | R[1]
        elif op.startswith("v_"):
            self.kind = "valu"
            self.wr = R[0]
            self.rd = u(R[1:])
            if op.startswith(("v_fmac", "v_dot2c", "v_writelane")) or "_dpp" in op:
                self.rd |= R[0]
            if op.startswith(("v_add_co", "v_sub_co", "v_addc_co", "v_div_scale")):
                self.wr = R[0] | R[1]
                self.rd = u(R[2:])
            if op.startswith("v_cndmask") and len(ops) == 3:
                self.rd |= {("s", "vcc")}
            if "_dpp" in op or "row_" in mods or "quad_perm" in mods:
                self.dpp = True
        elif op.startswith("ds_"):
            self.kind = "ds"
            if op.startswith("ds_read") or "permute" in op or "swizzle" in op:
                self.wr = R[0]
                self.rd = u(R[1:])
            else:
                self.rd = u(R)
        elif op.startswith(("buffer_", "global_")):
            self.kind = "vmem"
            is_lds = re.search(r"\blds\b", mods) is not None or "_lds_" in op
            if "load" in op:
                if is_lds:
                    self.lds_dma = True
                    self.rd = u(R) | {("s", "m0")}
                else:
                    self.wr = R[0]
                    self.rd = u(R[1:])
                    if "d16" in op:
                        self.rd |= R[0]
            elif "store" in op:
                self.rd = u(R)
                data = R[0] if op.startswith("buffer_") else R[1]
                if op.endswith(("x3", "x4")):
                    self.wide_store = data
            elif "atomic" in op:
                self.rd = u(R)
                if "sc0" in mods:
                    self.wr = R[0]
            else:
                self.rd = u(R)
        elif op.startswith(("s_load", "s_memtime", "s_memrealtime", "s_buffer_load")):
            self.kind = "smem"
            self.wr = R[0]
            self.rd = u(R[1:])
        elif op == "s_waitcnt":
            self.kind = "wait"
            for k, n in re.findall(r"(vmcnt|lgkmcnt)\((\d+)\)", rest):
                self.waits[k] = int(n)
        elif op == "s_nop":
            self.kind = "nop"
            self.states = int(ops[0], 0) + 1
        elif op.startswith(("s_branch", "s_cbranch")):
            self.kind = "branch"
            self.target = ops[0]
            if "vcc" in op:
                self.rd = {("s", "vcc")}
        elif op in ("s_barrier", "s_endpgm", "s_sleep", "s_setprio"):
            self.kind = "misc"
        elif op.startswith("s_"):
            self.kind = "salu"
            if op.startswith("s_cmp") or op.startswith("s_bitcmp"):
                self.rd = u(R)
            else:
                self.wr = R[0]
                self.rd = u(R[1:])
                if "saveexec" in op:
                    self.wr |= {("s", "exec")}
                    self.rd |= {("s", "exec")}
                if op.startswith(("s_addk", "s_mulk")):
                    self.rd |= R[0]
        else:
            raise ValueError("unknown instruction: " + text)


def vg(s):
    return {r for r in s if r[0] in "va"}


def sg(s):
    return {r for r in s if r[0] == "s"}


def need(p, c):
    n = 0
    if p.kind == "valu":
        pv = vg(p.wr)
        ps = sg(p.wr)
        if c.kind == "mfma" and pv & c.rd:
            n = max(n, 2)
        if c.kind == "valu":
            if pv & c.rd:
                if c.dpp or c.op.startswith("v_permlane"):
                    n = max(n, 2)
                if c.op.startswith(("v_readlane", "v_readfirstlane")):
                    n = max(n, 1)
                if p.op.startswith(TRANS) and not c.op.startswith(TRANS):
                    n = max(n, 1)
            if p.op.startswith("v_dot2") and (pv & (c.rd | c.wr)):
                if not (c.op == p.op):
                    n = max(n, 3)
            if ps & c.rd:
                n = max(n, 4 if c.op.startswith(("v_readlane", "v_writelane")) else 2)
        if c.kind == "vmem" and ps & c.rd:
            n = max(n, 5)
        if p.op.startswith("v_dot2") and c.kind in ("vmem", "ds", "mfma") and pv & c.rd:
            n = max(n, 3)
    if p.kind == "mfma":
        big = 8 if p.passes == 4 else 12
        if c.kind == "mfma":
            if p.wr & c.srcab:
                n = max(n, big)
            if p.wr & c.srcc and not (p.wr == c.srcc and p.passes == c.passes):
                n = max(n, big - 2)
            if p.wr & c.wr and not (p.wr == c.srcc and p.passes == c.passes):
                n = max(n, big)
        elif c.kind in ("valu", "vmem", "ds"):
            if p.wr & (c.rd | c.wr):
                n = max(n, big)
            if p.srcc & c.wr:
                n = max(n, 3 if p.passes == 4 else 7)
    if p.kind == "vmem" and p.wide_store:
        if p.wide_store & c.wr:
            n = max(n, 2)
    if p.kind == "salu" and ("s", "m0") in p.wr and c.lds_dma:
        n = max(n, 1)
    return n


class Asm:
    def __init__(self):
        self.ins = []
        self.bgq = []
        self.bg_period = 0
        self.bg_acc = 0
        self._in_bg = False

    def __call__(self, text, tag=None, counted=True, slow=False):
        for line in text.split("\n"):
            if line.strip():
                i = Ins(line.strip(), tag, counted)
                i.slow = slow
                self.ins.append(i)
                if self.bg_period and not self._in_bg and i.kind in ("valu", "ds"):
                    self.bg_acc += 1
                    if self.bg_acc >= self.bg_period and self.bgq:
                        self.bg_acc = 0
                        self.bg_step()

    def bg_step(self, n=1):
        self._in_bg = True
        for _ in range(n):
            if self.bgq:
                self.bgq.pop(0)()
        self._in_bg = False

    def bg(self, items, period):
        self.bgq += items
        self.bg_period = period

    def bg_pause(self):
        p, self.bg_period = self.bg_period, 0
        return p

    def bg_flush(self):
        self.bg_period = 0
        self.bg_step(len(self.bgq))

    def _count_after(self, kind, tag):
        key = "vmcnt" if kind == "vmem" else "lgkmcnt"
        n = 0
        total = 0
        waits = []
        for i in reversed(self.ins):
            if i.kind == "wait" and key in i.waits and not i.slow:
                waits.append((n, i.waits[key]))
            if i.kind == kind:
                if i.tag == tag:
                    for after, cnt in waits:
                        if n - after >= cnt:
                            return None
                    return n
                if i.counted:
                    n += 1
        raise KeyError("no %s op tagged %r" % (kind, tag))

    def wait(self, vm=None, lgkm=None):
        parts = []
        if vm is not None:
            n = vm if isinstance(vm, int) else self._count_after("vmem", vm)
            if n is not None:
                assert n <= 63, n
                parts.append("vmcnt(%d)" % n)
        if lgkm is not None:
            n = lgkm if isinstance(lgkm, int) else self._count_after("ds", lgkm)
            if n is not None:
                parts.append("lgkmcnt(%d)" % min(n, 15))
        if parts:
            self("s_waitcnt " + " ".join(parts))

    def fix_hazards(self, verbose=False):
        total = 0
        while True:
            ins = self.ins
            labels = {x.label: k for k, x in enumerate(ins) if x.label}
            preds = {}
            for k, x in enumerate(ins):
                if x.kind == "branch":
                    preds.setdefault(labels[x.target], []).append(k)
            changed = False
            out = []
            for k, c in enumerate(ins):
                if c.kind in ("valu", "mfma", "vmem", "ds", "salu", "smem"):
                    worst = 0
                    stack = [(k - 1, 0)]
                    seen = set()
                    while stack:
                        j, dist = stack.pop()
                        while j >= 0 and dist < 20:
                            if (j, dist) in seen:
                                break
                            seen.add((j, dist))
                            p = ins[j]
                            if p.label:
                                for b in preds.get(j, ()):
                                    stack.append((b, dist))
                            r = need(p, c)
                            if r > dist:
                                worst = max(worst, r - dist)
                            dist += p.states
                            j -= 1
                    if worst:
                        out.append(Ins("s_nop %d" % (worst - 1)))
                        total += worst
                        changed = True
                        if verbose:
                            print("nop", worst, "before", c.text)
                        out.extend(ins[k:])
                        break
                out.append(c)
            self.ins = out
            if not changed:
                return total

    def check_waits(self):
        vq, lq = [], []
        errs = []
        smem = set()
        since_label = []
        for k, x in enumerate(self.ins):
            if x.label:
                since_label = []
            if x.kind == "vmem":
                since_label.append(x)
            if x.kind == "wait" and x.slow:
                vq = [p for p in vq if p not in since_label]
                continue
            if x.kind == "wait":
                if "vmcnt" in x.waits:
                    n = x.waits["vmcnt"]
                    vq = vq[len(vq) - n:] if n < len(vq) and n > 0 else ([] if n == 0 else vq)
                if "lgkmcnt" in x.waits:
                    n = x.waits["lgkmcnt"]
                    lq = lq[len(lq) - n:] if n < len(lq) and n > 0 else ([] if n == 0 else lq)
                    if n == 0:
                        smem = set()
                continue
            touched = x.rd | x.wr
            for q in (vq, lq):
                for p in q:
                    if p.wr & touched:
                        errs.append("line %d: %s touches %s of un-waited %s" % (k, x.text, sorted(p.wr & touched)[:2], p.text))
            if smem & touched:
                errs.append("line %d: %s touches un-waited scalar load %s" % (k, x.text, sorted(smem & touched)[:2]))
            if x.kind == "vmem":
                vq.append(x)
                if len(vq) > 63:
                    errs.append("line %d: more than 63 vmem ops outstanding" % k)
            elif x.kind == "ds":
                lq.append(x)
            elif x.kind == "smem" and not x.op.startswith("s_mem"):
                smem |= x.wr
        return errs

    def text(self):
        out = []
        for x in self.ins:
            out.append(x.text if x.label else "    " + x.text)
        return "\n".join(out) + "\n"
```

```python
import sys, os, argparse, math
sys.path.insert(0, os.path.dirname(os.path.abspath(__file__)))
from asmlib import Asm, Ins

NAME = "gated_mix__ssm_conv_s5__ssm_conv_s5__prompt"

WS_EPOCH = 0
WS_FLAG = 4096
WS_XF = 135168
WS_CARRY = 299008
WS_H = 655360
WS_XCH = WS_H + 10485760
WS_PROF = WS_XCH + 5242880
WS_USED = WS_PROF + 1024 * 128

SLOT = 36864
PIECE = 9216
TOP = 4 * SLOT
TAB = TOP
PART1 = TOP + 10240
PART2 = TAB + 6400
LGW = PART1 + 4480
LDK = LGW + 1280
LDS_BYTES = 163840

sSPIN, sTC, sCG, sLATE, sBR, sW, sBW, sTAG, sK = 3, 4, 5, 6, 7, 8, 9, 10, 11
sT0, sT1, sT2, sT3 = 12, 13, 14, 15
SX, SB, SC, SWS, SOUT = 16, 20, 24, 32, 36
sPUB, sGAT, sHRE, sHIM = 28, 29, 30, 31
KA = 40
pX, pLre, pLim, pBre, pBim, pCre, pCim, pDT, pDA = 40, 42, 44, 46, 48, 50, 52, 54, 56
pDB, pGW, pOUT, pWS = 74, 76, 78, 80
sM = 58
sFLG, sPOL, sHA, sHB, sXS, sXR = 82, 83, 84, 85, 86, 87
sKQ, sROT, sEND = 60, 65, 66
STAMP_REGS = list(range(88, 102, 2)) + [42, 44, 46, 48, 50, 52, 54, 68, 70, 72]


def srd(b):
    return "s[%d:%d]" % (b, b + 3)


def sp(b):
    return "s[%d:%d]" % (b, b + 1)


def v2(b):
    return "v[%d:%d]" % (b, b + 1)


def v4(b, f="v"):
    return "%s[%d:%d]" % (f, b, b + 3)


class Op:
    __slots__ = ("f", "strict", "dma", "tag")

    def __init__(self, f, strict=False, dma=False, tag=None):
        self.f, self.strict, self.dma, self.tag = f, strict, dma, tag

    def __call__(self):
        self.f()


class Rec(list):
    def __init__(self, a):
        super().__init__()
        self.a = a

    def __call__(self, text, tag=None, counted=True, strict=False):
        self.append(Op(lambda: self.a(text, tag, counted), strict, text.startswith(("buffer_", "global_")), tag))

    def wait(self, vm=None, lgkm=None):
        self.append(Op(lambda: self.a.wait(vm, lgkm)))

    def group(self, *texts):
        self.append(Op(lambda: [self.a(t) for t in texts]))


def cmul(a, d, x, y):
    a(f"v_pk_mul_f32 {v2(d)}, {v2(x)}, {v2(y)} op_sel_hi:[1,0]")
    a(f"v_pk_fma_f32 {v2(d)}, {v2(x)}, {v2(y)}, {v2(d)} op_sel:[1,1,0] op_sel_hi:[0,1,1] neg_lo:[1,0,0]")


def cfma(a, d, x, y, c):
    a(f"v_pk_fma_f32 {v2(d)}, {v2(x)}, {v2(y)}, {v2(c)} op_sel_hi:[1,0,1]")
    a(f"v_pk_fma_f32 {v2(d)}, {v2(x)}, {v2(y)}, {v2(d)} op_sel:[1,1,0] op_sel_hi:[0,1,1] neg_lo:[1,0,0]")


def run(ops):
    for o in ops:
        o()


class Gen:
    def __init__(self, cfg):
        self.cfg = cfg
        self.a = Asm()
        self.nstamp = 0
        self.stamp_names = []
        self.tail = []

    def rec(self):
        return Rec(self.a)

    def stamp(self, name):
        if not self.cfg.prof:
            return
        if name in self.cfg.nostamp.split(","):
            return
        op = "s_memrealtime" if name.startswith("rt") else "s_memtime"
        self.a("%s %s" % (op, sp(STAMP_REGS[self.nstamp])))
        self.stamp_names.append(name)
        self.nstamp += 1

    def weave(self, mf, streams):
        n = len(mf)
        load = [0] * n
        slots = [[] for _ in range(n)]
        for ops, start, step in streams:
            prev = -1
            for k, op in enumerate(ops):
                g = max(int(start + k * step), prev + (1 if op.strict else 0), 0)
                while g < n - 1 and load[g] >= self.cfg.cap:
                    g += 1
                g = min(g, n - 1)
                slots[g].append(op)
                load[g] += 1
                prev = g
        for g in range(n):
            self.a(mf[g])
            run(slots[g])

    ACC = 20
    GX, GW = 70, 80
    L1, L2, WQ, V, MC = 196, 206, 216, 232, 190
    T4 = 246
    VP, Q = 250, 251
    FG = 252
    VC0, VC1 = 18, 19
    VCR = 10
    U = 100

    def acc(self, m, n, part):
        return self.ACC + (n * 2 + part) * 8 + 4 * m

    def prologue(self):
        a, cfg = self.a, self.cfg
        a(f"s_load_dwordx16 s[{KA}:{KA+15}], s[0:1], 0")
        a(f"s_load_dwordx16 s[{KA+16}:{KA+31}], s[0:1], 64")
        a(f"s_load_dwordx8 s[{KA+32}:{KA+39}], s[0:1], 128")
        a(f"s_load_dwordx2 {sp(pWS)}, s[0:1], 168")
        a("s_cmp_ge_u32 s2, 0x100")
        a("s_cbranch_scc1 L_end")
        if cfg.cpf == 0:
            a(f"s_getpc_b64 {sp(sT0)}")
            a("L_pc0:")
            a("v_lshlrev_b32 v18, 7, v0")
            a("v_min_u32 v19, L_last-L_pc0, v18")
            a(f"global_load_dword v243, v19, {sp(sT0)}", tag="pf")
        self.stamp("rt0")
        self.stamp("start")
        a("v_lshrrev_b32 v18, 6, v0")
        a(f"s_and_b32 s{sT2}, s2, 7")
        a(f"s_lshr_b32 s{sT3}, s2, 3")
        a(f"v_readfirstlane_b32 s{sW}, v18")
        if cfg.cpf:
            run(self.code_prefetch(18, 1))
        L, R8, SL, F0, T0, T1, C = 196, 197, 198, 199, 246, 247, 248
        Q = self.Q
        a(f"s_lshr_b32 s{sTC}, s{sT2}, 1")
        a(f"s_lshl_b32 s{sTC}, s{sTC}, 2")
        a(f"s_lshr_b32 s{sT0}, s{sT3}, 3")
        a(f"s_add_u32 s{sTC}, s{sTC}, s{sT0}")
        a(f"s_and_b32 s{sBR}, s{sT2}, 1")
        a(f"s_and_b32 s{sT1}, s{sT3}, 7")
        a(f"s_lshl_b32 s{sCG}, s{sBR}, 3")
        a(f"s_add_u32 s{sCG}, s{sCG}, s{sT1}")
        a(f"s_mov_b32 s{sK}, 0")
        a(f"v_and_b32 v{L}, 63, v0")
        a(f"v_lshrrev_b32 v{R8}, 3, v{L}")
        a(f"v_and_b32 v{SL}, 7, v{L}")
        a(f"v_lshrrev_b32 v{Q}, 4, v{L}")
        a(f"v_xor_b32 v{F0}, v{Q}, v{SL}")
        a(f"v_lshlrev_b32 v{F0}, 4, v{F0}")
        a(f"v_lshrrev_b32 v{T0}, 5, v{L}")
        a(f"v_and_b32 v{T1}, 3, v{R8}")
        a(f"v_lshl_add_u32 v{T0}, v{T0}, 3, v{T1}")
        a(f"v_mul_u32_u24 v{T0}, 1280, v{T0}")
        a(f"v_xor_b32 v{T1}, 64, v{F0}")
        a(f"v_add_u32 v1, v{T0}, v{F0}")
        a(f"v_add_u32 v2, v{T0}, v{T1}")
        a(f"v_add_u32 v2, {16*1280-1024}, v2")
        a(f"v_add_u32 v3, {4*1280-2048}, v1")
        a(f"v_add_u32 v4, {4*1280-2048}, v2")
        a(f"v_mul_u32_u24 v{T0}, 1280, v{R8}")
        a(f"v_add_u32 v{self.VC0}, v{T0}, v{F0}")
        a(f"v_add_u32 v{self.VC1}, v{T0}, v{T1}")
        a(f"v_add_u32 v{self.VC1}, {8*1280}, v{self.VC1}")
        a(f"s_mul_i32 s{sBW}, s{sW}, {PIECE}")
        a(f"s_bitcmp1_b32 s{sW}, 1")
        a(f"s_cselect_b64 vcc, -1, 0")
        a(f"s_mul_i32 s{sT1}, s{sT1}, 80")
        a(f"s_mul_i32 s{sT0}, s{sW}, 20")
        a(f"v_cndmask_b32 v5, v{self.VC0}, v{self.VC1}, vcc")
        for n in range(1, 5):
            a(f"v_add_u32 v{5+n}, {n*16*1280 - 1024*(n & 3)}, v5")
        a(f"v_add_u32 v{self.VC1}, -1024, v{self.VC1}")
        a(f"v_min_u32 v{T0}, 19, v{L}")
        a(f"v_add_u32 v204, s{sT0}, v{T0}")
        a(f"v_add_lshl_u32 v{T0}, v204, s{sT1}, 1")
        a(f"s_mul_i32 s{sT1}, s{sT1}, 1280")
        a(f"s_lshl_b32 s{sT0}, s{sTC}, 2")
        a(f"s_add_u32 s{sT0}, s{sT0}, s{sW}")
        a(f"s_mul_i32 s{sT0}, s{sT0}, {32*1280}")
        a(f"s_lshl_b32 s{sPUB}, s{sT3}, 2")
        a(f"s_add_u32 s{sPUB}, s{sPUB}, s{sW}")
        a(f"s_lshl_b32 s{sGAT}, s{sT2}, 7")
        a(f"s_add_u32 s{sGAT}, s{sGAT}, s{sPUB}")
        a(f"s_mul_i32 s{sGAT}, s{sGAT}, 2560")
        a(f"s_bfe_u32 s{sHRE}, s{sT2}, 0x10001")
        a(f"s_lshl_b32 s{sHRE}, s{sHRE}, 7")
        a(f"s_add_u32 s{sHRE}, s{sHRE}, s{sPUB}")
        a(f"s_mul_i32 s{sHRE}, s{sHRE}, 3200")
        a(f"v_lshlrev_b32 v241, 7, v{L}")
        a(f"v_add_u32 v242, s{sHRE}, v241")
        a(f"v_add_u32 v241, s{sGAT}, v241")
        a(f"s_mov_b32 s{SX+3}, 0x20000")
        a(f"s_mov_b32 s{SB+3}, 0x20000")
        a(f"s_sub_u32 s{SX+2}, 2621440, s{sT0}")
        a(f"s_sub_u32 s{SB+2}, 819200, s{sT1}")
        a("s_waitcnt lgkmcnt(0)")
        self.stamp("karg")
        a(f"s_add_u32 s{SX}, s{pX}, s{sT0}")
        a(f"s_addc_u32 s{SX+1}, s{pX+1}, 0")
        a(f"s_cmp_eq_u32 s{sBR}, 1")
        for p in (pBre, pBim, pLre, pLim, pDT, pCre, pCim):
            a(f"s_cselect_b64 {sp(p)}, {sp(p+18)}, {sp(p)}")
        a(f"s_bitcmp1_b32 s{sW}, 0")
        a(f"s_cselect_b64 {sp(SB)}, {sp(pBim)}, {sp(pBre)}")
        a(f"s_cselect_b64 {sp(SC)}, {sp(pCim)}, {sp(pCre)}")
        a(f"s_add_u32 s{SB}, s{SB}, s{sT1}")
        a(f"s_addc_u32 s{SB+1}, s{SB+1}, 0")
        a(f"global_load_ushort v206, v{T0}, {sp(pLre)}", tag="par")
        a(f"global_load_ushort v207, v{T0}, {sp(pLim)}", tag="par")
        a(f"global_load_ushort v208, v{T0}, {sp(pDT)}", tag="par")

        def prefetch():
            a(f"s_bitcmp1_b32 s{sT2}, 2")
            a(f"s_cselect_b64 {sp(SWS)}, {sp(pBim)}, {sp(pBre)}")
            a(f"s_cselect_b64 {sp(sM)}, {sp(pCim)}, {sp(pCre)}")
            a("s_mov_b64 exec, 0xfffff")
            a(f"global_load_dword v244, v241, {sp(pX)}", tag="pf")
            a("s_mov_b64 exec, 0x1ffffff")
            a(f"global_load_dword v245, v242, {sp(SWS)}", tag="pf")
            a("s_mov_b64 exec, -1")
        if cfg.pf == 1:
            prefetch()
        run(self.dma_stage(0))
        if cfg.pf == 2:
            prefetch()
        a(f"s_load_dword s{sTAG}, {sp(pWS)}, {WS_EPOCH}")
        self.stamp("dma0")
        a(f"v_lshlrev_b32 v204, 3, v204")
        a(f"v_add_u32 v204, {TAB}, v204")
        a(f"v_and_b32 v{C}, 15, v{L}")
        a(f"v_lshrrev_b32 v{T0}, 1, v{C}")
        a(f"v_xor_b32 v{T0}, v{T0}, v{Q}")
        a(f"v_lshlrev_b32 v{T0}, 4, v{T0}")
        a(f"v_lshl_add_u32 v{T1}, v{C}, 7, v{T0}")
        a(f"v_add_u32 v10, s{sBW}, v{T1}")
        a(f"v_xor_b32 v11, 64, v10")
        a(f"v_add_u32 v12, {2*SLOT}, v10")
        a(f"v_add_u32 v13, {2*SLOT}, v11")
        a(f"v_and_b32 v{T1}, 7, v{C}")
        a(f"v_lshl_add_u32 v{T0}, v{T1}, 7, v{T0}")
        a(f"v_lshrrev_b32 v{T1}, 3, v{C}")
        a(f"v_mul_u32_u24 v{T1}, {2*PIECE}, v{T1}")
        a(f"v_add_u32 v{T0}, 4096, v{T0}")
        a(f"v_add_u32 v14, v{T0}, v{T1}")
        a(f"v_xor_b32 v15, 64, v14")
        a(f"v_add_u32 v16, {2*SLOT}, v14")
        a(f"v_add_u32 v17, {2*SLOT}, v15")
        a(f"v_lshlrev_b32 v{self.VP}, 3, v{C}")
        a(f"v_add_u32 v{self.VP}, {TAB}, v{self.VP}")
        a(f"s_lshr_b32 s{sT0}, s{sW}, 1")
        a(f"s_mul_i32 s{sT0}, s{sT0}, 640")
        a(f"s_add_u32 s{sT0}, s{sT0}, s{sT1}")
        a(f"s_add_u32 s{SC}, s{SC}, s{sT0}")
        a(f"s_addc_u32 s{SC+1}, s{SC+1}, 0")
        a(f"s_sub_u32 s{SC+2}, 819200, s{sT0}")
        a(f"s_mov_b32 s{SC+3}, 0x20000")
        a(f"s_mov_b32 s{SWS}, s{pWS}")
        a(f"s_mov_b32 s{SWS+1}, s{pWS+1}")
        a(f"s_mov_b32 s{SWS+2}, {WS_USED}")
        a(f"s_mov_b32 s{SWS+3}, 0x20000")
        a(f"s_mov_b32 s{SOUT}, s{pOUT}")
        a(f"s_mov_b32 s{SOUT+1}, s{pOUT+1}")
        a(f"s_mov_b32 s{SOUT+2}, 5242880")
        a(f"s_mov_b32 s{SOUT+3}, 0x20000")
        if cfg.rot:
            a(f"s_and_b32 s{sT0}, s{sCG}, 7")
            a(f"s_and_b32 s{sT2}, s{sTC}, 3")
            a(f"s_add_u32 s{sT0}, s{sT0}, s{sT2}")
            for _ in range(2):
                a(f"s_sub_u32 s{sT2}, s{sT0}, 5")
                a(f"s_cselect_b32 s{sT0}, s{sT0}, s{sT2}")
        else:
            a(f"s_mov_b32 s{sT0}, 0")
        a(f"s_lshl_b32 s{sROT}, s{sT0}, 13")
        a(f"s_lshl_b32 s{sKQ}, s{sT0}, 7")
        for k in range(1, 5):
            a(f"s_add_u32 s{sKQ+k}, s{sKQ+k-1}, 128")
            a(f"s_cmp_eq_u32 s{sKQ+k}, 640")
            a(f"s_cselect_b32 s{sKQ+k}, 0, s{sKQ+k}")
        a(f"s_lshr_b32 s{sLATE}, s{sW}, 1")
        a(f"s_xor_b32 s{sLATE}, s{sLATE}, s{sBR}")
        a(f"s_mul_i32 s{sT0}, s{sW}, 320")
        a(f"v_lshl_add_u32 v236, v{L}, 4, s{sT0}")
        a(f"s_add_u32 s{sEND}, s{sT0}, {LGW}")
        a(f"s_and_b32 s{sT0}, s{sCG}, 7")
        a(f"s_mul_i32 s{sT0}, s{sT0}, 160")
        a(f"v_lshl_add_u32 v237, v{L}, 4, s{sT0}")
        a(f"s_bitcmp1_b32 s{sW}, 0")
        a(f"s_cselect_b64 {sp(68)}, {sp(pDB)}, {sp(pDA)}")
        a(f"s_cselect_b32 s67, 160, 0")
        a(f"s_add_u32 s67, s67, {LDK}")
        self.ws_offsets()
        if cfg.order == 0:
            run(self.dma_stage(1))
            self.params()
        else:
            self.params()
            run(self.dma_stage(1))
        a("s_waitcnt lgkmcnt(0)")
        a(f"s_mul_i32 s{sTAG}, s{sTAG}, 0x9E3779B1")
        a(f"s_add_u32 s{sTAG}, s{sTAG}, 0x7F4A7C15")
        a(f"s_mov_b32 m0, s{sEND}")
        a("s_mov_b64 exec, 0xfffff")
        a(f"global_load_lds_dwordx4 v236, {sp(pGW)}", tag="small")
        a(f"s_mov_b32 m0, s67")
        a("s_mov_b64 exec, 0x3ff")
        a(f"global_load_lds_dwordx4 v237, {sp(68)}", tag="small")
        a("s_mov_b64 exec, -1")
        self.stamp("dma1")

    def code_prefetch(self, t, k):
        a = self.a
        r = self.rec()
        r(f"s_lshr_b32 s{sT0}, s2, 3")
        r(f"s_lshl_b32 s{sT0}, s{sT0}, 2")
        r(f"s_add_u32 s{sT0}, s{sT0}, s{sW}")
        r(f"s_lshl_b32 s{sT0}, s{sT0}, 8")
        r(f"v_and_b32 v{t}, 1, v0")
        r(f"v_lshl_add_u32 v{t}, v{t}, 7, s{sT0}")
        r.append(Op(lambda: (a(f"s_getpc_b64 {sp(sT0)}"), a(f"L_pc{k}:"), a(f"v_min_u32 v{t}, L_last-L_pc{k}, v{t}"),
                             a("s_mov_b64 exec, 3"), a(f"global_load_dword a{255-k}, v{t}, {sp(sT0)}", tag="pf"),
                             a("s_mov_b64 exec, -1")), dma=True))
        return r

    def ws_offsets(self):
        a = self.a
        a(f"s_lshl_b32 s{sT0}, s{sCG}, 4")
        a(f"s_add_u32 s{sPUB}, s{sT0}, s{sTC}")
        a(f"s_mul_i32 s{sPUB}, s{sPUB}, 1280")
        a(f"s_add_u32 s{sPUB}, s{sPUB}, {WS_CARRY}")
        a(f"s_lshl_b32 s{sT2}, s{sW}, 2")
        a(f"s_add_u32 s{sGAT}, s{sT0}, s{sT2}")
        a(f"s_mul_i32 s{sGAT}, s{sGAT}, 1280")
        a(f"s_add_u32 s{sGAT}, s{sGAT}, {WS_CARRY}")
        a(f"s_lshl_b32 s{sT0}, s{sTC}, 1")
        a(f"s_add_u32 s{sT0}, s{sT0}, s{sBR}")
        a(f"s_lshr_b32 s{sT2}, s{sW}, 1")
        a(f"s_and_b32 s{sT3}, s{sW}, 1")
        a(f"s_lshl_b32 s{sHRE}, s{sT0}, 1")
        a(f"s_add_u32 s{sHRE}, s{sHRE}, s{sT2}")
        a(f"s_mul_i32 s{sHRE}, s{sHRE}, {2*81920}")
        a(f"s_and_b32 s{sHIM}, s{sCG}, 7")
        a(f"s_mul_i32 s{sHIM}, s{sHIM}, 10240")
        a(f"s_add_u32 s{sHRE}, s{sHRE}, s{sHIM}")
        a(f"s_lshl_b32 s{sHIM}, s{sT3}, 10")
        a(f"s_add_u32 s{sHRE}, s{sHRE}, s{sHIM}")
        a(f"s_add_u32 s{sHRE}, s{sHRE}, {WS_H}")
        a(f"s_add_u32 s{sHIM}, s{sHRE}, 81920")
        a(f"s_lshl_b32 s{sHB}, s{sT0}, 1")
        a(f"s_add_u32 s{sHB}, s{sHB}, s{sBR}")
        a(f"s_xor_b32 s{sHA}, s{sHB}, 1")
        a(f"s_mul_i32 s{sXS}, s{sT3}, 81920")
        a(f"s_mul_i32 s{sXR}, s{sT2}, 40960")
        a(f"s_add_u32 s{sXS}, s{sXS}, s{sXR}")
        a(f"s_add_u32 s{sXS}, s{sXS}, {WS_H}")
        a(f"s_mul_i32 s{sHA}, s{sHA}, {2*81920}")
        a(f"s_mul_i32 s{sHB}, s{sHB}, {2*81920}")
        a(f"s_add_u32 s{sHA}, s{sHA}, s{sXS}")
        a(f"s_add_u32 s{sHB}, s{sHB}, s{sXS}")
        a(f"s_lshl_b32 s{sFLG}, s{sTC}, 4")
        a(f"s_add_u32 s{sFLG}, s{sFLG}, s{sCG}")
        a(f"s_lshl_b32 s{sFLG}, s{sFLG}, 2")
        a(f"s_add_u32 s{sFLG}, s{sFLG}, s{sW}")
        a(f"s_lshl_b32 s{sFLG}, s{sFLG}, 7")
        a(f"s_add_u32 s{sFLG}, s{sFLG}, {WS_FLAG}")
        a(f"s_lshl_b32 s{sPOL}, s{sT0}, 1")
        a(f"s_add_u32 s{sPOL}, s{sPOL}, s{sT2}")
        a(f"s_lshl_b32 s{sPOL}, s{sPOL}, 11")
        a(f"s_add_u32 s{sPOL}, s{sPOL}, {WS_FLAG}")
        a(f"s_lshl_b32 s{sXS}, s{sTC}, 3")
        a(f"s_and_b32 s{sT0}, s{sCG}, 7")
        a(f"s_add_u32 s{sXS}, s{sXS}, s{sT0}")
        a(f"s_lshl_b32 s{sXS}, s{sXS}, 1")
        a(f"s_add_u32 s{sXS}, s{sXS}, s{sBR}")
        a(f"s_lshl_b32 s{sXS}, s{sXS}, 2")
        a(f"s_add_u32 s{sXS}, s{sXS}, s{sW}")
        a(f"s_xor_b32 s{sXR}, s{sXS}, 4")

    def params(self):
        a = self.a
        LR, LI, DT, T0, T1, T2 = 206, 207, 208, 209, 210, 211
        P = lambda k: 100 + 2 * k
        a(f"v_lshlrev_b32 v{T0}, 3, v196")
        a(f"v_add_u32 v{T0}, {PART1}, v{T0}")
        a(f"v_mov_b64 {v2(P(16))}, 0")
        a("s_mov_b32 exec_hi, 0xffff")
        for n in range(5):
            a(f"ds_write_b64 v{T0}, {v2(P(16))} offset:{n*896}", tag="tab")
        a("s_mov_b64 exec, 0xfffff")
        a.wait(vm="par")
        a(f"v_lshlrev_b32 v{DT}, 16, v{DT}")
        a(f"v_lshlrev_b32 v{LR}, 16, v{LR}")
        a(f"v_mul_f32 v{DT}, 0x3fb8aa3b, v{DT}")
        a(f"v_exp_f32 v{DT}, v{DT}")
        a(f"v_lshlrev_b32 v{LI}, 16, v{LI}")
        a(f"v_cvt_pk_bf16_f32 v{DT}, v{DT}, v{DT}")
        a(f"v_lshlrev_b32 v{DT}, 16, v{DT}")
        a(f"v_mul_f32 v{T0}, v{DT}, v{LR}")
        a(f"v_mul_f32 v{T1}, v{DT}, v{LI}")
        a(f"v_mul_f32 v{T0}, 0x3fb8aa3b, v{T0}")
        a(f"v_mul_f32 v{T1}, 0x3e22f983, v{T1}")
        a(f"v_exp_f32 v{T0}, v{T0}")
        a(f"v_rndne_f32 v{T2}, v{T1}")
        a(f"v_sub_f32 v{T1}, v{T1}, v{T2}")
        a(f"v_cos_f32 v{T2}, v{T1}")
        a(f"v_sin_f32 v{T1}, v{T1}")
        a(f"v_mov_b32 v{P(0)}, 1.0")
        a(f"v_mov_b32 v{P(0)+1}, 0")
        a(f"v_mul_f32 v{P(1)}, v{T0}, v{T2}")
        a(f"v_mul_f32 v{P(1)+1}, v{T0}, v{T1}")
        a(f"v_mul_f32 v{T0}, v{LR}, v{LR}")
        a(f"v_fmac_f32 v{T0}, v{LI}, v{LI}")
        a(f"v_rcp_f32 v{T0}, v{T0}")
        a(f"v_add_f32 v{T1}, -1.0, v{P(1)}")
        a(f"v_mul_f32 v{P(3)}, v{T1}, v{LR}")
        a(f"v_mul_f32 v{P(3)+1}, v{P(1)+1}, v{LR}")
        a(f"v_add_f32 v{T0}, v{T0}, v{T0}")
        a(f"v_fmac_f32 v{P(3)}, v{P(1)+1}, v{LI}")
        a(f"v_fma_f32 v{P(3)+1}, -v{T1}, v{LI}, v{P(3)+1}")
        a(f"v_mul_f32 v{P(3)}, v{P(3)}, v{T0}")
        a(f"v_mul_f32 v{P(3)+1}, v{P(3)+1}, v{T0}")
        cmul(a, P(2), P(1), P(1))
        cmul(a, P(17), P(2), P(2))
        cmul(a, P(4), P(17), P(17))
        for base in (4, 7, 10, 13):
            cmul(a, P(base + 1), P(base), P(base))
            cmul(a, P(base + 2), P(base + 1), P(base))
            if base < 13:
                cmul(a, P(base + 3), P(base + 1), P(base + 1))
        for e in range(16):
            a(f"ds_write_b64 v204, {v2(P(e))} offset:{e*640}", tag="tab")
        a("s_mov_b64 exec, -1")

    def dma_stage(self, s):
        r = self.rec()
        base = (s % 4) * SLOT
        for j in range(9):
            if j in (0, 4, 8):
                r(f"s_add_u32 m0, s{sBW}, {base + 1024*j}")
            sr = SX if j < 4 else SB
            r(f"buffer_load_dwordx4 v{1+j}, {srd(sr)}, s{sK} offen offset:{1024*(j & 3)} lds", tag=f"st{s}", strict=j in (0, 4, 8))
        if s < 9:
            r(f"s_add_u32 s{sK}, s{sK}, 128")
        return r

    def c_slot(self, u):
        u %= 16
        return ((2 + u // 4) % 4), (u % 4)

    def c_dma(self, u):
        r = self.rec()
        p, qq = self.c_slot(u)
        kl, nt = divmod(u, 5)
        if u >= 16:
            r.wait(lgkm=f"dr{u-16}")
        r(f"s_add_u32 m0, s{sBW}, {p*SLOT + qq*2048}")
        r(f"s_add_u32 s{sK}, s{sKQ+kl}, {nt*20480}")
        r(f"buffer_load_dwordx4 v{self.VC0}, {srd(SC)}, s{sK} offen lds", tag=f"c{u}", strict=True)
        r(f"buffer_load_dwordx4 v{self.VC1}, {srd(SC)}, s{sK} offen offset:1024 lds", tag=f"c{u}")
        return r

    def c_drain(self, u):
        r = self.rec()
        p, qq = self.c_slot(u)
        r.wait(vm=f"c{u}")
        for b in range(2):
            r(f"ds_read_b128 {v4(8*u+4*b, 'a')}, v{self.VCR + 2*(p >> 1) + b} offset:{(p & 1)*SLOT + qq*2048}", tag=f"dr{u}")
        return r

    def c_stream(self, rest):
        ops = list(rest)
        for u in range(16, 25):
            ops += self.c_drain(u - 16) if u == 16 else []
            ops += self.c_dma(u)[:-1]
            if u < 24:
                ops += self.c_drain(u - 15)
            ops += self.c_dma(u)[-1:]
        items, cur = [], []
        for o in ops:
            cur.append(o)
            if o.dma:
                items.append(Op(lambda c=cur: run(c)))
                cur = []
        assert not cur
        return items

    def c_take(self, n):
        r, self.cq = self.cq[:n], self.cq[n:]
        return r

    def frag_reads(self, h):
        r = self.rec()
        s, u = h >> 1, h & 1
        slot = s % 4
        F = 100 + 48 * (h & 1)
        va = 10 + 2 * (slot >> 1) + u
        vb = 14 + 2 * (slot >> 1) + u
        so = (slot & 1) * SLOT
        rd = lambda dst, vr, off: r(f"ds_read_b128 {v4(dst)}, v{vr} offset:{off}", tag=f"fr{h}")
        rd(F, va, so)
        rd(F + 8, vb, so)
        rd(F + 4, va, so + 2048)
        for k in range(1, 10):
            rd(F + 8 + 4 * k, vb, so + (k & 1) * PIECE + (k >> 1) * 1024)
        return r

    def gate_loads(self, t):
        a = self.a
        GX, GW = self.GX, self.GW
        a(f"s_lshl_b32 s{sT0}, s{sTC}, 4")
        a(f"s_add_u32 s{sT0}, s{sT0}, s{sCG}")
        a(f"s_lshl_b32 s{sT0}, s{sT0}, 2")
        a(f"s_add_u32 s{sT0}, s{sT0}, s{sW}")
        a(f"s_lshl_b32 s{sT0}, s{sT0}, 1")
        a(f"v_bfe_u32 v{t}, v0, 5, 1")
        a(f"v_add_u32 v{t}, s{sT0}, v{t}")
        a(f"v_mul_u32_u24 v{t}, 1280, v{t}")
        a(f"v_and_b32 v{t+1}, 31, v0")
        a(f"v_lshl_add_u32 v{t+2}, v{t+1}, 4, v{t}")
        a(f"v_lshl_add_u32 v{t+3}, v{t+1}, 3, v{t}")
        a(f"global_load_dwordx4 {v4(GX)}, v{t+2}, {sp(pX)}", tag="gate")
        a(f"global_load_dwordx4 {v4(GX+4)}, v{t+2}, {sp(pX)} offset:512", tag="gate")
        a(f"global_load_dwordx2 {v2(GX+8)}, v{t+3}, {sp(pX)} offset:1024", tag="gate")
        a(f"v_lshlrev_b32 v{t+2}, 4, v{t+1}")
        a(f"v_add_u32 v{t+2}, {LGW}, v{t+2}")
        a(f"v_lshlrev_b32 v{t+3}, 3, v{t+1}")
        a(f"v_add_u32 v{t+3}, {LGW + 1024}, v{t+3}")
        a(f"ds_read_b128 {v4(GW)}, v{t+2}", tag="gw")
        a(f"ds_read_b128 {v4(GW+4)}, v{t+2} offset:512", tag="gw")
        a(f"ds_read_b64 {v2(GW+8)}, v{t+3}", tag="gw")

    def gate(self, T):
        a = self.a
        GX, GW, FG = self.GX, self.GW, self.FG
        a(f"v_mov_b32 v{T}, 0")
        a(f"v_mov_b32 v{T+1}, 0")
        a.wait(vm="gate", lgkm="gw")
        for k in range(10):
            a(f"v_dot2_f32_bf16 v{T+(k & 1)}, v{GX+k}, v{GW+k}, v{T+(k & 1)}")
        a(f"v_mov_b32 v{FG+1}, s{sTAG}")
        a(f"v_mov_b32 v{FG+3}, s{sTAG}")
        a(f"v_add_f32 v{T}, v{T}, v{T+1}")
        for k in (8, 4, 2, 1):
            a(f"v_add_f32_dpp v{T}, v{T}, v{T} row_ror:{k} row_mask:0xf bank_mask:0xf")
        a(f"v_mov_b32 v{T+1}, v{T}")
        a(f"v_permlane16_swap_b32 v{T}, v{T+1}")
        a(f"v_add_f32 v{T}, v{T}, v{T+1}")
        a(f"v_cvt_pk_bf16_f32 v{T}, v{T}, v{T}")
        a(f"v_lshlrev_b32 v{T}, 16, v{T}")
        a(f"v_mul_f32 v{T}, 0xbfb8aa3b, v{T}")
        a(f"v_exp_f32 v{T}, v{T}")
        a(f"v_add_f32 v{T}, 1.0, v{T}")
        a(f"v_rcp_f32 v{T}, v{T}")
        a(f"v_cvt_pk_bf16_f32 v{T}, v{T}, v{T}")
        a(f"v_lshlrev_b32 v{FG}, 16, v{T}")
        a(f"v_mov_b32 v{FG+2}, v{FG}")
        a(f"v_permlane32_swap_b32 v{FG}, v{FG+2}")

    def tab_entry(self, r, dst, idx, add):
        r(f"v_cmp_eq_u32 vcc, 0, v{idx}")
        r(f"v_add_u32 v{dst}, {add}, v{idx}")
        r(f"v_mul_u32_u24 v{dst}, 640, v{dst}")
        r(f"v_add_u32 v{dst}, v{self.VP}, v{dst}")
        r(f"v_cndmask_b32 v{dst}, v{dst}, v{self.VP}, vcc")

    def tab_rd(self, r, dst, va, off, tag):
        for n in range(5):
            r(f"ds_read_b64 {v2(dst+2*n)}, v{va} offset:{off+128*n}", tag=tag)

    def shadow(self):
        L1, L2, WQ, V, MC, T, VP, Q = self.L1, self.L2, self.WQ, self.V, self.MC, self.T4, self.VP, self.Q
        S = {}
        r = self.rec()
        r(f"s_lshl_b32 s{sT0}, s{sW}, 2")
        r(f"s_sub_u32 s{sT0}, s{sTC}, s{sT0}")
        r(f"s_sub_u32 s{sT0}, s{sT0}, 1")
        r(f"v_sub_u32 v{T}, s{sT0}, v{Q}")
        r(f"v_cmp_le_i32 {sp(sT2)}, 0, v{T}")
        r(f"v_max_i32 v{T}, 0, v{T}")
        r(f"v_and_b32 v{T+1}, 3, v{T}")
        r(f"v_lshrrev_b32 v{T}, 2, v{T}")
        self.tab_entry(r, 226, T + 1, 9)
        S[2] = r
        r = self.rec()
        self.tab_entry(r, 227, T, 12)
        self.tab_entry(r, 228, Q, 3)
        r(f"v_mov_b32 v{T}, s{sW}")
        S[3] = r
        r = self.rec()
        self.tab_entry(r, 229, T, 6)
        r(f"v_and_b32 v230, 1, v{Q}")
        r(f"v_mul_u32_u24 v230, {4*640}, v230")
        r(f"v_add_u32 v230, v{VP}, v230")
        S[4] = r
        r = self.rec()
        r(f"v_sub_u32 v{T}, 3, v{Q}")
        self.tab_entry(r, T + 2, T, 3)
        self.tab_rd(r, WQ, T + 2, 0, "t1")
        S[5] = r
        r = self.rec()
        self.tab_rd(r, L2, VP, 2 * 640, "t1")
        self.tab_rd(r, L1, VP, 1 * 640, "t1")
        S[6] = r
        r = self.rec()
        r(f"v_and_b32 v2, 15, v0")
        r(f"v_lshlrev_b32 v1, 3, v2")
        r(f"v_lshlrev_b32 v2, 4, v2")
        r(f"s_lshl_b32 s{sT1}, s{sW}, 7")
        r(f"s_add_u32 s{sT1}, s{sT1}, {PART1}")
        r(f"v_add_u32 v1, s{sT1}, v1")
        r(f"v_lshrrev_b32 v7, 1, v{Q}")
        r(f"v_lshl_add_u32 v4, v7, 2, v1")
        r(f"v_add_u32 v4, 384, v4")
        r(f"v_and_b32 v6, 1, v{Q}")
        r(f"v_mul_u32_u24 v3, 896, v6")
        r(f"v_add_u32 v3, v3, v4")
        S[18] = r
        r = self.rec()
        r(f"s_lshr_b32 s{sT0}, s{sW}, 1")
        r(f"s_lshl_b32 s{sT0}, s{sT0}, 8")
        r(f"s_and_b32 s{sT1}, s{sW}, 1")
        r(f"s_lshl_b32 s{sT1}, s{sT1}, 3")
        r(f"s_add_u32 s{sT0}, s{sT0}, s{sT1}")
        r(f"s_add_u32 s{sT0}, s{sT0}, {PART2}")
        r(f"v_lshl_add_u32 v15, v7, 2, v2")
        r(f"v_add_u32 v15, s{sT0}, v15")
        r(f"v_lshl_add_u32 v14, v6, 9, v15")
        r(f"v_add_u32 v16, {PART2}, v2")
        r(f"v_mul_u32_u24 v17, 1280, v{Q}")
        r(f"v_add_u32 v17, v17, v2")
        r(f"v_lshlrev_b32 v6, 6, v6")
        r(f"v_xor_b32 v6, v6, v2")
        r(f"v_lshl_add_u32 v5, v{Q}, 8, v6")
        r(f"v_lshl_add_u32 v{T}, v{Q}, 2, s{sW}")
        r(f"v_min_u32 v{T+1}, 4, v{T}")
        r(f"v_lshl_add_u32 v{T+2}, v{T+1}, 7, v{VP}")
        r(f"ds_read_b64 {v2(T+2)}, v{T+2} offset:{7*640}", tag="t1")
        r(f"v_lshl_add_u32 v6, v{T}, 8, v2")
        r(f"v_mul_u32_u24 v7, 896, v{T+1}")
        r(f"v_add_u32 v7, v7, v{VP}")
        r(f"v_add_u32 v7, {PART1 + 384 - TAB}, v7")
        S[19] = r
        return S

    def gemm1(self):
        a, cfg = self.a, self.cfg
        a.wait(vm="st0")
        a("s_barrier")
        self.stamp("st0")
        run(self.frag_reads(0))
        S = self.shadow()
        queue = list(self.dma_stage(2)) + list(self.dma_stage(3))

        nu = 0
        for h in range(20):
            s, u = h >> 1, h & 1
            if u == 1:
                if s < 9:
                    assert all(o.tag != f"st{s+1}" for o in queue)
                    a.wait(vm=f"st{s+1}", lgkm=0)
                else:
                    a.wait(lgkm=0)
                a("s_barrier")
            else:
                a.wait(lgkm=0)
            if h in (2, 4, 8, 12, 16):
                self.stamp(f"gh{h}")
            streams = []
            if h < 19:
                streams.append((self.frag_reads(h + 1), 0, 1))
            if u == 1:
                if s + 4 <= 9:
                    queue += self.dma_stage(s + 4)
                    if s + 4 == cfg.pf_at:
                        queue.append(Op(lambda: (a("s_mov_b64 exec, 0x1ffffff"),
                                                 a(f"global_load_dword a255, v242, {sp(sM)}", tag="pf"),
                                                 a("s_mov_b64 exec, -1")), dma=True, tag="pfc"))
                else:
                    for _ in range(4):
                        queue += self.c_dma(nu)
                        nu += 1
            pace = cfg.pace0 if h < cfg.pace0_h else cfg.pace if h < cfg.pace_h else cfg.pace_c
            now, k = [], 0
            while queue and k < pace:
                o = queue.pop(0)
                now.append(o)
                k += o.dma
            left = {o.tag for o in queue}
            assert not (h >= 17 and any(t and t.startswith("st") for t in left))
            if now:
                streams.append((now, cfg.dma_phase, min(19.0 / len(now), cfg.maxstep)))
            if h in S:
                ops = S[h]
                streams.append((ops, 0, 19.0 / len(ops)))
            F = 100 + 48 * (h & 1)
            mf = []
            for k in range(10):
                for m in range(2):
                    d = self.acc(m, k >> 1, k & 1)
                    mf.append(f"v_mfma_f32_16x16x32_bf16 {v4(d)}, {v4(F+4*m)}, {v4(F+8+4*k)}, {'0' if h == 0 else v4(d)}")
            self.weave(mf, streams)
        self.cq = self.c_stream(queue)
        self.stamp("gemm1")

    def swap_reduce(self, Z, va, o1, o2):
        a = self.a
        for n in range(5):
            a(f"v_permlane32_swap_b32 v{Z+2*n}, v{Z+2*n+1}")
        for n in (4, 0, 1, 2, 3):
            a(f"v_add_f32 v{Z+2*n}, v{Z+2*n}, v{Z+2*n+1}")
            if n == 0:
                a(f"v_mov_b32 v{Z+9}, v{Z+8}")
        a(f"v_permlane16_swap_b32 v{Z+8}, v{Z+9}")
        a(f"v_permlane16_swap_b32 v{Z}, v{Z+2}")
        a(f"v_permlane16_swap_b32 v{Z+4}, v{Z+6}")
        a(f"v_add_f32 v{Z+8}, v{Z+8}, v{Z+9}")
        a(f"v_add_f32 v{Z}, v{Z}, v{Z+2}")
        a(f"v_add_f32 v{Z+4}, v{Z+4}, v{Z+6}")
        a(f"ds_write_b32 v{va+1}, v{Z+8} offset:{o2}", tag="pw")
        a(f"ds_write_b32 v{va}, v{Z}", tag="pw")
        a(f"ds_write_b32 v{va}, v{Z+4} offset:{o1}", tag="pw")

    def scan(self):
        a, cfg = self.a, self.cfg
        L1, L2, WQ, V, MC, T, VP, Q, U, FG = self.L1, self.L2, self.WQ, self.V, self.MC, self.T4, self.VP, self.Q, self.U, self.FG
        E = 180
        Z = 100
        TA, TB = 110, 114
        PL = T + 2
        a.wait(lgkm="t1")
        a.bg(self.c_take(cfg.k1), cfg.p1)
        for n in range(5):
            ur, ui = self.acc(0, n, 0), self.acc(0, n, 1)
            er, ei = ur, ui
            for k in range(1, 4):
                X = TA if k & 1 else TB
                a(f"v_pk_fma_f32 {v2(X)}, {v2(er)}, {v2(L2+2*n)}, {v2(ur+2*k)} op_sel_hi:[1,0,1]")
                a(f"v_pk_fma_f32 {v2(X+2)}, {v2(ei)}, {v2(L2+2*n)}, {v2(ui+2*k)} op_sel_hi:[1,0,1]")
                a(f"v_pk_fma_f32 {v2(X)}, {v2(ei)}, {v2(L2+2*n)}, {v2(X)} op_sel:[0,1,0] op_sel_hi:[1,1,1] neg_lo:[1,0,0] neg_hi:[1,0,0]")
                a(f"v_pk_fma_f32 {v2(X+2)}, {v2(er)}, {v2(L2+2*n)}, {v2(X+2)} op_sel:[0,1,0] op_sel_hi:[1,1,1]")
                er, ei = X, X + 2
            a(f"v_fma_f32 v{E+2*n}, v{L1+2*n}, v{er}, v{er+1}")
            a(f"v_fma_f32 v{E+2*n+1}, v{L1+2*n}, v{ei}, v{ei+1}")
            a(f"v_fma_f32 v{E+2*n}, -v{L1+2*n+1}, v{ei}, v{E+2*n}")
            a(f"v_fma_f32 v{E+2*n+1}, v{L1+2*n+1}, v{er}, v{E+2*n+1}")
            cmul(a, Z + 2 * n, E + 2 * n, WQ + 2 * n)
        a.bg_flush()
        self.swap_reduce(Z, 3, 1792, 3584)
        PG = 114
        CF, L8 = L2, WQ
        a(f"v_cmp_gt_u32 vcc, 5, v{T}")
        a(f"v_mov_b32 v{PG+1}, s{sTAG}")
        a(f"v_mov_b32 v{PG+3}, s{sTAG}")
        a(f"s_mov_b64 {sp(sM)}, {sp(sT2)}")
        a.wait(lgkm=0)
        a("s_barrier")
        for k in range(4):
            a(f"ds_read_b64 {v2(120+2*k)}, v7 offset:{128*k}", tag="pr")
        r = self.rec()
        self.tab_rd(r, CF, VP, 3 * 640, "t2")
        self.tab_rd(r, L8, VP, 4 * 640, "t2")
        run(r)
        a(f"s_and_saveexec_b64 {sp(sT2)}, vcc")
        a.wait(lgkm="pr")
        cfma(a, 128, 120, PL, 122)
        cfma(a, 130, 128, PL, 124)
        cfma(a, 128, 130, PL, 126)
        a(f"v_mov_b32 v{PG}, v128")
        a(f"v_mov_b32 v{PG+2}, v129")
        a(f"buffer_store_dwordx4 {v4(PG)}, v6, {srd(SWS)}, s{sPUB} offen sc1", tag="pub")
        a(f"s_mov_b64 exec, -1")
        self.stamp("pub")

        if cfg.cpf >= 2:
            run(self.code_prefetch(132, 2))
        run(self.c_take(cfg.k2a))
        a.wait(lgkm="t2")
        a.bg(self.c_take(cfg.k2), cfg.p2)
        for n in range(5):
            for j in range(8):
                ur, ui = self.acc(0, n, 0) + (j & ~1), self.acc(0, n, 1) + (j & ~1)
                o = j & 1
                d = U + 16 * n + 2 * j
                a(f"v_pk_mul_f32 {v2(d)}, {v2(CF+2*n)}, {v2(ur)} op_sel:[0,{o}] op_sel_hi:[1,{o}]")
                a(f"v_pk_fma_f32 {v2(d)}, {v2(CF+2*n)}, {v2(ui)}, {v2(d)} op_sel:[1,{o},0] op_sel_hi:[0,{o},1] neg_lo:[1,0,0]")
        self.stamp("coef")
        A_, P_, C_, MU, L8Q, L32, Y0, Y1 = 20, 30, 40, 50, 60, 70, 80, 90
        SL, G = 180, 40
        r = self.rec()
        self.tab_rd(r, MU, 230, 0, "t3")
        self.tab_rd(r, L32, VP, 7 * 640, "t3")
        for n in range(5):
            r(f"ds_read_b64 {v2(Y0+2*n)}, v1 offset:{896*n}", tag="t3")
        for n in range(5):
            r(f"ds_read_b64 {v2(Y1+2*n)}, v1 offset:{896*n+128}", tag="t3")
        self.tab_rd(r, L8Q, 228, 0, "t3")
        run(r)
        for n in range(5):
            a(f"v_mov_b64 {v2(A_+2*n)}, {v2(E+2*n)}")
        for n in range(5):
            a(f"v_permlane16_swap_b32 v{A_+2*n}, v{E+2*n}")
            a(f"v_permlane16_swap_b32 v{A_+2*n+1}, v{E+2*n+1}")
        for n in range(5):
            cfma(a, P_ + 2 * n, A_ + 2 * n, L8 + 2 * n, E + 2 * n)
        for n in range(5):
            a(f"ds_read_b64 {v2(L8+2*n)}, v1 offset:{896*n+256}", tag="t4")
        for n in range(5):
            a(f"v_mov_b64 {v2(C_+2*n)}, {v2(P_+2*n)}")
        for n in range(5):
            a(f"v_permlane32_swap_b32 v{C_+2*n}, v{P_+2*n}")
            a(f"v_permlane32_swap_b32 v{C_+2*n+1}, v{P_+2*n+1}")
        per = a.bg_pause()
        a("s_mov_b32 exec_hi, 0")
        for n in range(5):
            a(f"v_mov_b64 {v2(C_+2*n)}, 0")
        a("s_mov_b32 exec_lo, 0xffff")
        a("s_mov_b32 exec_hi, 0xffff")
        for n in range(5):
            a(f"v_mov_b64 {v2(A_+2*n)}, 0")
        a("s_mov_b64 exec, -1")
        a.bg_period = per
        a.wait(lgkm="t3")
        for n in range(5):
            cfma(a, P_ + 2 * n, C_ + 2 * n, MU + 2 * n, A_ + 2 * n)
            cfma(a, Y1 + 2 * n, Y0 + 2 * n, L32 + 2 * n, Y1 + 2 * n)
        for k in range(0, 20, 2):
            a(f"v_mov_b64 {v2(G+k)}, 0")
        a.bg_flush()
        a(f"s_mov_b32 s{sSPIN}, {cfg.spin}")

        def g_loads(tag):
            for n in range(5):
                a(f"buffer_load_dwordx4 {v4(G+4*n)}, v17, {srd(SWS)}, s{sGAT} offen offset:{256*n} sc1", tag=tag, counted=False)

        def g_check():
            a(f"v_min3_u32 v{T}, v{G+1}, v{G+3}, v{G+5}")
            a(f"v_max3_u32 v{T+1}, v{G+1}, v{G+3}, v{G+5}")
            for k in (7, 11, 15):
                a(f"v_min3_u32 v{T}, v{T}, v{G+k}, v{G+k+2}")
                a(f"v_max3_u32 v{T+1}, v{T+1}, v{G+k}, v{G+k+2}")
            a(f"v_min_u32 v{T}, v{T}, v{G+19}")
            a(f"v_max_u32 v{T+1}, v{T+1}, v{G+19}")
            a(f"v_cmp_ne_u32 vcc, s{sTAG}, v{T}")
            a(f"v_cmp_ne_u32 {sp(sT2)}, s{sTAG}, v{T+1}")
            a(f"s_or_b64 vcc, vcc, {sp(sT2)}")
        self.stamp("w1done")
        a(f"s_mov_b64 exec, {sp(sM)}")
        a("s_cbranch_execz L_g0")
        g_loads("g1")
        a("L_g0:")
        a("s_mov_b64 exec, -1")
        a.bg(self.c_take(cfg.k3), cfg.p3)
        r = self.rec()
        self.tab_rd(r, A_, 226, 0, "t5")
        self.tab_rd(r, Y0, 227, 0, "t5")
        run(r)
        a.wait(lgkm="t4")
        for n in range(5):
            cfma(a, L8 + 2 * n, Y1 + 2 * n, L32 + 2 * n, L8 + 2 * n)
        r = self.rec()
        self.tab_rd(r, Y1, 229, 0, "t6")
        run(r)
        for n in range(5):
            cfma(a, P_ + 2 * n, L8 + 2 * n, L8Q + 2 * n, P_ + 2 * n)
            cmul(a, SL + 2 * n, P_ + 2 * n, CF + 2 * n)
        a.wait(lgkm="t5")
        for n in range(5):
            cmul(a, V + 2 * n, A_ + 2 * n, Y0 + 2 * n)
        a.wait(lgkm="t6")
        for n in range(5):
            cmul(a, A_ + 2 * n, L8Q + 2 * n, Y1 + 2 * n)
            cmul(a, L8 + 2 * n, A_ + 2 * n, CF + 2 * n)
        MC = L8
        a.bg_flush()
        self.gate_loads(90)
        a.wait(vm="g1")
        a(f"s_mov_b64 exec, {sp(sM)}")
        a("s_cbranch_execz L_got")
        g_check()
        a("s_cbranch_vccz L_got")
        a("L_poll1:")
        g_loads("g1b")
        a(f"s_sub_u32 s{sSPIN}, s{sSPIN}, 1")
        a("s_waitcnt vmcnt(0)", slow=True)
        g_check()
        a(f"s_cmp_eq_u32 s{sSPIN}, 0")
        a("s_cbranch_scc1 L_got")
        a("s_cbranch_vccnz L_poll1")
        a("L_got:")
        a("s_mov_b64 exec, -1")
        self.stamp("got")
        Z2 = 60
        for n in range(5):
            a(f"v_pk_mul_f32 {v2(Z2+2*n)}, {v2(V+2*n)}, {v2(G+4*n)} op_sel_hi:[1,0]")
            a(f"v_pk_fma_f32 {v2(Z2+2*n)}, {v2(V+2*n)}, {v2(G+4*n+2)}, {v2(Z2+2*n)} op_sel:[1,0,0] op_sel_hi:[0,0,1] neg_lo:[1,0,0]")
        self.swap_reduce(Z2, 14, 1024, 2048)
        a(f"v_mov_b32 v{T}, 0")
        a(f"s_cmp_eq_u32 s{sLATE}, 0")
        a.wait(lgkm=0)
        a("s_barrier")
        for n in range(5):
            a(f"ds_read_b128 {v4(20+8*n)}, v16 offset:{512*n}", tag=f"cr{n}")
            a(f"ds_read_b128 {v4(24+8*n)}, v16 offset:{512*n+256}", tag=f"cr{n}")
        if cfg.split:
            a("s_cbranch_scc1 L_late")
        k4, k5 = self.c_take(cfg.k4), self.c_take(cfg.k5)

        def stores(n):
            w0 = 20 + 8 * n
            for part, so in enumerate((sHRE, sHIM)):
                yield f"buffer_store_dwordx4 {v4(w0+4*part)}, v5, {srd(SWS)}, s{so} offen offset:{2048*(n & 1)} sc1"

        def step(n):
            if n in (1, 3):
                a(f"s_add_u32 s{sHRE}, s{sHRE}, 4096")
                a(f"s_add_u32 s{sHIM}, s{sHIM}, 4096")

        def pass2(late):
            a.bg(list(k4), cfg.p4)
            for n in range(5):
                w0 = 20 + 8 * n
                a.wait(lgkm=f"cr{n}")
                a(f"v_pk_add_f32 {v2(w0)}, {v2(w0)}, {v2(w0+2)}")
                a(f"v_pk_add_f32 {v2(w0+4)}, {v2(w0+4)}, {v2(w0+6)}")
                a(f"v_pk_add_f32 {v2(w0)}, {v2(w0)}, {v2(w0+4)}")
                cfma(a, SL + 2 * n, w0, MC + 2 * n, SL + 2 * n)
                prev = SL + 2 * n
                for j in range(8):
                    d = U + 16 * n + 2 * j
                    cfma(a, d, prev, L1 + 2 * n, d)
                    prev = d
                st = list(stores(n))
                for k in range(4):
                    d = U + 16 * n + 4 * k
                    a(f"v_cvt_pk_bf16_f32 v{w0+k}, v{d}, v{d+2}")
                if not late:
                    a(st[0], tag="hst")
                for k in range(4):
                    d = U + 16 * n + 4 * k
                    a(f"v_cvt_pk_bf16_f32 v{w0+4+k}, -v{d+1}, -v{d+3}")
                if not late:
                    a(st[1], tag="hst")
                    step(n)
            a.bg_flush()
            if not late:
                self.stamp("hst")
            elif cfg.prof and "hst" in self.stamp_names:
                a("s_memtime %s" % sp(STAMP_REGS[self.stamp_names.index("hst")]))
            run(k5)
            self.gate(90)
            self.gemm2_setup()
            if late:
                if cfg.split == 2:
                    a("s_barrier")
                for n in range(5):
                    for st in stores(n):
                        a(st, tag="hst")
                    step(n)
            a.wait(vm="hst")
            a("s_mov_b64 exec, 1")
            a(f"buffer_store_dwordx4 {v4(FG)}, v{T}, {srd(SWS)}, s{sFLG} offen sc1", tag="flag")
            a("s_mov_b64 exec, -1")
            if cfg.split == 2 and not late:
                a("s_barrier")
        first = len(a.ins)
        pass2(False)
        if cfg.split:
            main = a.ins[first:]
            del a.ins[first:]
            pass2(True)
            self.tail = ["L_late:"] + [x.text for x in a.ins[first:]] + ["s_branch L_join"]
            a.ins[first:] = main
            a("L_join:")
        self.stamp("flag")

    ACCA, ACCB = 20, 100
    HF = 180
    VT = 212
    VH = 216
    GG = 218
    XO, DO, OO, EW, ER, EW2, PO, BP, PO2 = 1, 2, 3, 4, 6, 7, 8, 9, 217
    SPK = 222
    PV = 242

    def gemm2_setup(self):
        a = self.a
        VT, VH = self.VT, self.VH
        T0, T1, T2, T3 = 14, 15, 16, 17
        a(f"v_bfe_u32 v{T0}, v0, 2, 2")
        a(f"v_bfe_u32 v{T1}, v0, 4, 1")
        a(f"v_lshl_add_u32 v{T0}, v{T1}, 3, v{T0}")
        a(f"v_bfe_u32 v{T1}, v0, 1, 1")
        a(f"v_lshlrev_b32 v{T2}, 2, v{T1}")
        a(f"v_xor_b32 v{T0}, v{T0}, v{T2}")
        a(f"v_lshlrev_b32 v{T0}, 4, v{T0}")
        a(f"v_lshl_add_u32 v{T0}, v{T1}, 8, v{T0}")
        a(f"v_and_b32 v{T1}, 1, v0")
        a(f"v_lshl_add_u32 v{T0}, v{T1}, 3, v{T0}")
        a(f"v_bfe_u32 v{T1}, v0, 5, 1")
        a(f"v_lshl_add_u32 v{T0}, v{T1}, 11, v{T0}")
        a(f"v_add_u32 v{VT}, s{sBW}, v{T0}")
        a(f"v_xor_b32 v{VT+1}, 64, v{VT}")
        a(f"v_add_u32 v{VT+2}, {2*SLOT}, v{VT}")
        a(f"v_add_u32 v{VT+3}, {2*SLOT}, v{VT+1}")
        a(f"v_and_b32 v{VH}, 63, v0")
        a(f"v_lshlrev_b32 v{VH}, 4, v{VH}")
        a(f"v_bfe_u32 v{T0}, v0, 2, 4")
        a(f"v_and_b32 v{T1}, 3, v0")
        a(f"v_lshlrev_b32 v{self.PO2}, 7, v{T0}")
        a(f"v_bfe_u32 v{T2}, v0, 4, 2")
        a(f"v_bfe_u32 v{T3}, v0, 3, 1")
        a(f"v_lshl_add_u32 v{T2}, v{T2}, 2, v{T3}")
        a(f"s_xor_b32 s{sT0}, s{sBR}, 1")
        a(f"s_lshl_b32 s{sT0}, s{sT0}, 8")
        a(f"v_lshl_add_u32 v{self.PO}, v{T2}, 7, s{sT0}")
        a(f"v_lshlrev_b32 v{self.DO}, 3, v{T1}")
        a(f"v_add_u32 v{self.DO}, {LDK}, v{self.DO}")
        a(f"s_lshl_b32 s{sT0}, s{sTC}, 1")
        a(f"s_add_u32 s{sT0}, s{sT0}, s{sBR}")
        a(f"s_lshl_b32 s{sT0}, s{sT0}, 2")
        a(f"s_add_u32 s{sT0}, s{sT0}, s{sW}")
        a(f"s_lshl_b32 s{sT0}, s{sT0}, 4")
        a(f"s_and_b32 s{sT1}, s{sCG}, 7")
        a(f"s_mul_i32 s{sT1}, s{sT1}, 80")
        a(f"v_add_u32 v{T2}, s{sT0}, v{T0}")
        a(f"v_mul_u32_u24 v{T2}, 640, v{T2}")
        a(f"v_lshl_add_u32 v{T3}, v{T1}, 2, s{sT1}")
        a(f"v_add_u32 v{T2}, v{T2}, v{T3}")
        a(f"v_lshlrev_b32 v{self.XO}, 1, v{T2}")
        a(f"v_lshlrev_b32 v{self.OO}, 2, v{T2}")
        a(f"v_bfe_u32 v{T2}, v{T0}, 1, 2")
        a(f"v_xor_b32 v{T2}, v{T2}, v{T1}")
        a(f"v_lshlrev_b32 v{T2}, 4, v{T2}")
        a(f"v_mul_u32_u24 v{T3}, 320, v{T0}")
        a(f"s_mul_i32 s{sT1}, s{sW}, {SLOT}")
        a(f"s_add_u32 s{sT1}, s{sT1}, 4096")
        a(f"v_add3_u32 v{self.ER}, v{T2}, v{T3}, s{sT1}")
        a(f"s_and_b32 s{sT1}, s{sW}, 1")
        a(f"s_lshl_b32 s{sT1}, s{sT1}, 7")
        a(f"v_lshrrev_b32 v{T2}, 1, v{T0}")
        a(f"v_lshl_add_u32 v{self.BP}, v{T2}, 4, s{sT1}")
        a(f"v_and_b32 v{T0}, 15, v0")
        a(f"v_bfe_u32 v{T1}, v0, 4, 2")
        a(f"v_bfe_u32 v{T2}, v{T0}, 1, 2")
        a(f"v_xor_b32 v{T2}, v{T2}, v{T1}")
        a(f"v_lshlrev_b32 v{T2}, 4, v{T2}")
        a(f"v_mul_u32_u24 v{T3}, 320, v{T0}")
        a(f"s_add_u32 s{sT1}, s{sBW}, 4096")
        a(f"v_add3_u32 v{self.EW}, v{T2}, v{T3}, s{sT1}")
        a(f"v_add_u32 v{self.EW2}, {2*SLOT}, v{self.EW}")

    def h_dma(self, s):
        r = self.rec()
        base = sHA if s < 10 else sHB
        if s in (0, 10):
            r(f"s_add_u32 s{sK}, s{base}, s{sROT}")
            r(f"s_add_u32 s{sEND}, s{base}, 40960")
        r(f"s_add_u32 m0, s{sBW}, {(s % 4)*SLOT}")
        for b in range(4):
            if self.cfg.abl == 1 and s >= 4 and b > 0:
                continue
            if self.cfg.abl == 2 and s >= 4:
                r(f"buffer_load_dwordx4 v{self.VH}, {srd(SWS)}, s{sHA} offen offset:{1024*b} {self.cfg.hpol} lds", tag=f"h{s}", strict=b == 0)
                continue
            r(f"buffer_load_dwordx4 v{self.VH}, {srd(SWS)}, s{sK} offen offset:{1024*b} {self.cfg.hpol} lds", tag=f"h{s}", strict=b == 0)
        if s not in (9, 19):
            r(f"s_add_u32 s{sK}, s{sK}, 4096")
            if s & 1 and self.cfg.rot:
                r.group(f"s_cmp_eq_u32 s{sK}, s{sEND}", f"s_cselect_b32 s{sK}, s{base}, s{sK}")
        return r

    def h_reads(self, s):
        r = self.rec()
        p = s % 4
        F = self.HF + 16 * (s & 1)
        for mt in range(4):
            for rho in range(2):
                off = (p & 1) * SLOT + (mt >> 1) * 1024 + (mt & 1) * 512
                r(f"ds_read_b64_tr_b16 {v2(F+4*mt+2*rho)}, v{self.VT + 2*(p >> 1) + rho} offset:{off}", tag=f"hr{s}")
        return r

    def part_writes(self, base):
        r = self.rec()
        for nt in range(5):
            for mt in range(4):
                r(f"ds_write_b128 v{self.EW2 if mt >> 1 else self.EW}, {v4(base + 16*nt + 4*mt)} offset:{(mt & 1)*SLOT + 64*nt}", tag="ew")
        return r

    def part_reads(self, base, tag):
        r = self.rec()
        for i in range(5):
            for wp in range(4):
                r(f"ds_read_b128 {v4(base+16*i+4*wp)}, v{self.ER} offset:{wp*PIECE + 64*i}", tag=f"{tag}{i}")
        return r

    def gemm2(self):
        a, cfg = self.a, self.cfg
        GG, PV, SPK, T = self.GG, self.PV, self.SPK, self.T4
        A, B = self.ACCA, self.ACCB
        XS, DA, DB = 100, 110, 120
        for i in range(5):
            a(f"global_load_dwordx2 {v2(XS+2*i)}, v{self.XO}, {sp(pX)} offset:{32*i}", tag="ep")
        for i in range(5):
            a(f"ds_read_b64 {v2(DA+2*i)}, v{self.DO} offset:{32*i}", tag="dk")
            a(f"ds_read_b64 {v2(DB+2*i)}, v{self.DO} offset:{160+32*i}", tag="dk")
        if cfg.cpf >= 3:
            run(self.code_prefetch(140, 3))
        run(self.c_take(999))
        a(f"s_mov_b32 s{sSPIN}, {cfg.spin}")

        def p_load(tag, po=self.PO, counted=True):
            a(f"buffer_load_dwordx4 {v4(PV)}, v{po}, {srd(SWS)}, s{sPOL} offen sc1", tag=tag, counted=counted)

        def p_check():
            a(f"v_cmp_ne_u32 vcc, s{sTAG}, v{PV+1}")
            a(f"v_cmp_ne_u32 {sp(sT2)}, s{sTAG}, v{PV+3}")
            a(f"s_or_b64 vcc, vcc, {sp(sT2)}")
        self.stamp("w3done")
        p_load("g2")
        for u in range(9, 25):
            run(self.c_drain(u))
        a.wait(vm="ep", lgkm="dk")
        t = 130
        for i in range(5):
            x0 = XS + 2 * i
            a(f"v_lshlrev_b32 v{t}, 16, v{x0}")
            a(f"v_and_b32 v{t+1}, 0xffff0000, v{x0}")
            a(f"v_lshlrev_b32 v{t+2}, 16, v{x0+1}")
            a(f"v_and_b32 v{t+3}, 0xffff0000, v{x0+1}")
            for b, dsk in enumerate((DA + 2 * i, DB + 2 * i)):
                a(f"v_lshlrev_b32 v{t+4}, 16, v{dsk}")
                a(f"v_and_b32 v{t+5}, 0xffff0000, v{dsk}")
                a(f"v_lshlrev_b32 v{t+6}, 16, v{dsk+1}")
                a(f"v_and_b32 v{t+7}, 0xffff0000, v{dsk+1}")
                a(f"v_pk_mul_f32 {v2(t+4)}, {v2(t)}, {v2(t+4)}")
                a(f"v_pk_mul_f32 {v2(t+6)}, {v2(t+2)}, {v2(t+6)}")
                a(f"v_cvt_pk_bf16_f32 v{SPK+4*i+2*b}, v{t+4}, v{t+5}")
                a(f"v_cvt_pk_bf16_f32 v{SPK+4*i+2*b+1}, v{t+6}, v{t+7}")
        a.wait(vm=0)
        p_check()
        a("s_cbranch_vccz L_got2")
        a("L_poll2:")
        if cfg.nap:
            a(f"s_sleep {cfg.nap}")
        p_load("g2b")
        a(f"s_sub_u32 s{sSPIN}, s{sSPIN}, 1")
        a.wait(vm=0)
        p_check()
        a(f"s_cmp_eq_u32 s{sSPIN}, 0")
        a("s_cbranch_scc1 L_got2")
        a("s_cbranch_vccnz L_poll2")
        a("L_got2:")
        a.wait(lgkm=0)
        self.stamp("got2")
        for s in range(4):
            run(self.h_dma(s))
        a(f"s_mul_i32 s{sT0}, s{sXS}, 5120")
        a(f"s_add_u32 s{sT0}, s{sT0}, {WS_XCH}")
        a(f"s_mul_i32 s{sT1}, s{sXR}, 5120")
        a(f"s_add_u32 s{sT1}, s{sT1}, {WS_XCH}")
        a(f"s_lshl_b32 s{sXS}, s{sXS}, 7")
        a(f"s_add_u32 s{sXS}, s{sXS}, {WS_XF}")
        a(f"s_lshl_b32 s{sXR}, s{sXR}, 7")
        a(f"s_add_u32 s{sXR}, s{sXR}, {WS_XF}")
        a(f"s_mov_b32 s{sPUB}, s{sT0}")
        a(f"s_mov_b32 s{sGAT}, s{sT1}")
        a(f"s_add_u32 s{sHRE}, s{sT0}, 4096")
        a(f"s_add_u32 s{sHIM}, s{sT1}, 4096")
        a(f"s_mov_b32 s{sSPIN}, {cfg.spin}")
        a.wait(vm="h0")
        self.stamp("h0")
        run(self.h_reads(0))
        rb = self.rec()
        rb(f"ds_bpermute_b32 v{T}, v{self.BP}, v{PV}", tag="bp")
        rb(f"ds_bpermute_b32 v{T+1}, v{self.BP}, v{PV+2}", tag="bp")
        r0 = self.rec()
        r0.wait(lgkm="bp")
        r0(f"v_and_b32 v{T+2}, 4, v0")
        r0(f"v_cmp_ne_u32 vcc, 0, v{T+2}")
        r0(f"v_cndmask_b32 v{GG}, v{T}, v{T+1}, vcc", strict=True)
        r0(f"v_sub_f32 v{GG+1}, 1.0, v{GG}")
        r0(f"v_cvt_pk_bf16_f32 v{GG+1}, v{GG+1}, v{GG+1}")
        r0(f"v_lshlrev_b32 v{GG+1}, 16, v{GG+1}")
        r0.group(f"s_cmp_eq_u32 s{sBR}, 1", "s_cselect_b64 vcc, -1, 0")
        r0(f"v_cndmask_b32 v{GG+2}, v{GG}, v{GG+1}, vcc", strict=True)
        r0(f"v_cndmask_b32 v{GG+3}, v{GG+1}, v{GG}, vcc")
        r0(f"v_mov_b32 v{T+2}, s{sTAG}")
        r0(f"v_mov_b32 v{T+3}, 0")
        rs = self.rec()
        for i in range(5):
            b = A + 16 * i
            for e in range(4):
                rs(f"v_add_f32 v{b+e}, v{b+e}, v{b+4+e}")
                rs(f"v_add_f32 v{b+8+e}, v{b+8+e}, v{b+12+e}")
            for e in range(4):
                rs(f"v_add_f32 v{b+e}, v{b+e}, v{b+8+e}")
            so, off = (sPUB, 1024 * i) if i < 4 else (sHRE, 0)
            rs(f"buffer_store_dwordx4 {v4(b)}, v{self.VH}, {srd(SWS)}, s{so} offen offset:{off} sc1", tag="xs")
        rk = self.rec()
        for i in range(5):
            sk, t = A + 16 * i + 4, A + 16 * i + 8
            for b in range(2):
                s0 = SPK + 4 * i + 2 * b
                rk(f"v_lshlrev_b32 v{t}, 16, v{s0}")
                rk(f"v_and_b32 v{t+1}, 0xffff0000, v{s0}")
                rk(f"v_lshlrev_b32 v{t+2}, 16, v{s0+1}")
                rk(f"v_and_b32 v{t+3}, 0xffff0000, v{s0+1}")
                for e in range(4):
                    rk(f"v_mul_f32 v{sk+e}, v{GG}, v{t+e}" if b == 0 else f"v_fmac_f32 v{sk+e}, v{GG+1}, v{t+e}")
        wa = self.part_writes(A)
        wb = self.part_writes(B)
        lag = cfg.ew_lag
        b1 = cfg.b1
        nw9 = cfg.nw9
        for s in range(20):
            kk = s % 10
            base = A if s < 10 else B
            streams = []
            if s == b1:
                a.wait(vm=f"h{s+1}", lgkm=0)
                a("s_barrier")
            elif s == b1 + 1:
                a.wait(vm=f"h{s+1}", lgkm=0)
            elif s < 19:
                a.wait(vm=f"h{s+1}", lgkm=f"hr{s}")
            else:
                a.wait(lgkm=f"hr{s}")
            if s == b1 + 3:
                a("s_barrier")
            if s == 10:
                self.stamp("passA")
            if s == cfg.p2_at:
                p_load("g3", self.PO2)
            if s == 6:
                a.wait(vm="g3")
                p_check()
                a("s_cbranch_vccz L_got4")
                a("L_poll4:")
                p_load("g3b", self.PO2, False)
                a(f"s_sub_u32 s{sSPIN}, s{sSPIN}, 1")
                a("s_waitcnt vmcnt(0)", slow=True)
                p_check()
                a(f"s_cmp_eq_u32 s{sSPIN}, 0")
                a("s_cbranch_scc1 L_got4")
                a("s_cbranch_vccnz L_poll4")
                a("L_got4:")
                a(f"s_mov_b32 s{sSPIN}, {cfg.spin}")
            if s == cfg.xf_at:
                a.wait(vm="xs")
                a("s_mov_b64 exec, 1")
                a(f"buffer_store_dword v{T+2}, v{T+3}, {srd(SWS)}, s{sXS} offen sc1", tag="xf")
                a("s_mov_b64 exec, -1")
            if s == cfg.xp_at:
                a(f"buffer_load_dword v{PV}, v{T+3}, {srd(SWS)}, s{sXR} offen sc1", tag="xp")
            if s < 19:
                streams.append((self.h_reads(s + 1), 0, 1))
            if s + 4 < 20:
                streams.append((self.h_dma(s + 4), cfg.hd0, cfg.hds))
            if s == 6:
                streams.append((rb, 10, 1))
            if s == 7:
                streams.append((r0, 8, 1))
            if s == 9:
                now, wa = wa[:nw9], wa[nw9:]
                streams.append((now, lag, (20.0 - lag) / len(now)))
            elif 10 <= s < b1:
                k = -(-len(wa) // (b1 - s))
                now, wa = wa[:k], wa[k:]
                streams.append((now, 0, 20.0 / len(now)))
            if s == b1:
                assert not wa
                streams.append((self.part_reads(A, "ra"), 0, 1))
            if s in (b1 + 1, b1 + 2):
                half = len(rs) * 3 // 5 if s == b1 + 1 else len(rs)
                now, rs = rs[:half], rs[half:]
                streams.append((now, 0, 19.0 / len(now)))
            if b1 + 3 <= s <= 18:
                k = -(-len(rk) // (19 - s))
                now, rk = rk[:k], rk[k:]
                streams.append((now, 2, 18.0 / len(now)))
            if s == 19:
                now, wb = wb[:cfg.nw19], wb[cfg.nw19:]
                streams.append((now, lag, (20.0 - lag) / len(now)))
            F = self.HF + 16 * (s & 1)
            mf = []
            for nt in range(5):
                cr = 8 * (5 * (kk >> 1) + nt) + 4 * (kk & 1)
                for mt in range(4):
                    d = base + 16 * nt + 4 * mt
                    mf.append(f"v_mfma_f32_16x16x32_bf16 {v4(d)}, {v4(cr, 'a')}, {v4(F+4*mt)}, {'0' if kk == 0 else v4(d)}")
            if cfg.abl == 3:
                mf = ["s_nop 0"] * 20
            self.weave(mf, streams)
        assert not rk and not rs
        self.stamp("gemm2")

        def recv():
            for i in range(5):
                so, off = (sGAT, 1024 * i) if i < 4 else (sHIM, 0)
                a(f"buffer_load_dwordx4 {v4(A+16*i)}, v{self.VH}, {srd(SWS)}, s{so} offen offset:{off} sc1", tag=f"xr{i}")
        run(wb)
        a.wait(vm="xp")
        a(f"v_cmp_ne_u32 vcc, s{sTAG}, v{PV}")
        a("s_cbranch_vccz L_got3")
        a("L_poll3:")
        a(f"buffer_load_dword v{PV}, v{T+3}, {srd(SWS)}, s{sXR} offen sc1", tag="xpb")
        a(f"s_sub_u32 s{sSPIN}, s{sSPIN}, 1")
        a.wait(vm=0)
        a(f"v_cmp_ne_u32 vcc, s{sTAG}, v{PV}")
        a(f"s_cmp_eq_u32 s{sSPIN}, 0")
        a("s_cbranch_scc1 L_got3")
        a("s_cbranch_vccnz L_poll3")
        a("L_got3:")
        recv()
        self.stamp("got3")
        a.wait(lgkm=0)
        a("s_barrier")
        run(self.part_reads(B, "rb"))
        for i in range(5):
            b, rv, sk = B + 16 * i, A + 16 * i, A + 16 * i + 4
            a.wait(lgkm=f"rb{i}")
            for hf in range(2):
                a(f"v_pk_add_f32 {v2(b+2*hf)}, {v2(b+2*hf)}, {v2(b+4+2*hf)}")
                a(f"v_pk_add_f32 {v2(b+8+2*hf)}, {v2(b+8+2*hf)}, {v2(b+12+2*hf)}")
            for hf in range(2):
                a(f"v_pk_add_f32 {v2(b+2*hf)}, {v2(b+2*hf)}, {v2(b+8+2*hf)}")
            for hf in range(2):
                a(f"v_pk_fma_f32 {v2(sk+2*hf)}, {v2(b+2*hf)}, {v2(GG+2)}, {v2(sk+2*hf)} op_sel_hi:[1,0,1]")
        for i in range(5):
            rv, sk = A + 16 * i, A + 16 * i + 4
            a.wait(vm=f"xr{i}")
            for hf in range(2):
                a(f"v_pk_fma_f32 {v2(sk+2*hf)}, {v2(rv+2*hf)}, {v2(GG+2)}, {v2(sk+2*hf)} op_sel:[0,1,0] op_sel_hi:[1,1,1]")
            a(f"buffer_store_dwordx4 {v4(sk)}, v{self.OO}, {srd(SOUT)}, 0 offen offset:{64*i} {cfg.opol}", tag="out")
        self.stamp("outst")
        a(f"s_xor_b32 s{sT0}, s{sTC}, 15")
        a(f"s_or_b32 s{sT0}, s{sT0}, s{sCG}")
        a(f"s_or_b32 s{sT0}, s{sT0}, s{sW}")
        a("s_cbranch_scc1 L_noep")
        a("s_mov_b64 exec, 1")
        a(f"buffer_store_dword v{T+2}, v{T+3}, {srd(SWS)}, 0 offen offset:{WS_EPOCH}", counted=False)
        a("s_mov_b64 exec, -1")
        a("L_noep:")

    def finish(self):
        a = self.a
        if self.cfg.prof:
            a.wait(vm=0)
            self.stamp("end")
            self.stamp("rt1")
            a("s_waitcnt lgkmcnt(0)")
            a(f"s_lshl_b32 s{sT0}, s2, 2")
            a(f"s_add_u32 s{sT0}, s{sT0}, s{sW}")
            a(f"s_lshl_b32 s{sT0}, s{sT0}, 7")
            a(f"s_add_u32 s{sT0}, s{sT0}, {WS_PROF}")
            a("v_mov_b32 v6, 0")
            a("s_mov_b64 exec, 1")
            for k in range(self.nstamp):
                a(f"v_mov_b32 v7, s{STAMP_REGS[k]}")
                a(f"buffer_store_dword v7, v6, {srd(SWS)}, s{sT0} offen offset:{4*k}")
            a(f"s_getreg_b32 s{sT1}, hwreg(HW_REG_XCC_ID)")
            a(f"v_mov_b32 v7, s{sT1}")
            a(f"buffer_store_dword v7, v6, {srd(SWS)}, s{sT0} offen offset:124")
            a(f"v_mov_b32 v7, s{sLATE}")
            a(f"buffer_store_dword v7, v6, {srd(SWS)}, s{sT0} offen offset:120")
        a("L_end:")
        a("s_endpgm")

    def build(self):
        self.prologue()
        self.gemm1()
        self.scan()
        self.gemm2()
        self.finish()
        errs = self.a.check_waits()
        for e in errs:
            print("WAIT ERROR:", e, file=sys.stderr)
        assert not errs
        for t in self.tail:
            self.a(t)
        self.a("L_last:")
        self.a("s_endpgm")
        n = self.a.fix_hazards(verbose=self.cfg.verbose)
        print("wait states inserted:", n, " instructions:", len(self.a.ins), file=sys.stderr)
        ref = open(os.path.join(os.path.dirname(os.path.abspath(__file__)), "..", "cdna_kernels", NAME + ".s.ref")).read()
        head = []
        for line in ref.split("\n"):
            if line.startswith("; @launch"):
                break
            head.append(line)
        txt = "\n".join(head) + f"\n; @launch grid=(256,1,1) block=(256,1,1) lds={LDS_BYTES}\n"
        txt += f""".amdgcn_target "amdgcn-amd-amdhsa--gfx950"
.text
.globl {NAME}_kernel
.p2align 8
.type {NAME}_kernel,@function
{NAME}_kernel:
"""
        txt += self.a.text().replace(" ;POL", "")
        txt += f""".section .rodata,"a"
.p2align 6
.amdhsa_kernel {NAME}_kernel
  .amdhsa_next_free_vgpr 512
  .amdhsa_next_free_sgpr 102
  .amdhsa_accum_offset 256
  .amdhsa_group_segment_fixed_size 0
  .amdhsa_kernarg_size 176
  .amdhsa_user_sgpr_count 2
  .amdhsa_user_sgpr_kernarg_segment_ptr 1
  .amdhsa_system_sgpr_workgroup_id_x 1
  .amdhsa_float_denorm_mode_32 3
.end_amdhsa_kernel
"""
        return txt


def main():
    p = argparse.ArgumentParser()
    p.add_argument("-o", default=None)
    for name, default in dict(prof=0, pf=2, pf_at=99, pace0=5, pace0_h=8, pace=5, pace_c=0, pace_h=16, cap=2, k1=4, p1=22, k2a=1, k2=8, p2=22,
                              k3=4, p3=8, k4=0, p4=22, k5=6, ew_lag=5, xf_at=18, xp_at=19, split=2, order=1, b1=12, nw9=6, nw19=6, hd0=1, hds=3, cpf=2, abl=0, nap=0, rot=1, p2_at=4, spin=20000, verbose=0).items():
        p.add_argument("--" + name, type=int, default=default)
    p.add_argument("--maxstep", type=float, default=20)
    p.add_argument("--dma_phase", type=float, default=1)
    p.add_argument("--hpol", default="sc1")
    p.add_argument("--opol", default="")
    p.add_argument("--nostamp", default="karg,dma0,coef,w3done,got3,gh2,gh4,gh8,gh12,gh16")
    cfg = p.parse_args()
    g = Gen(cfg)
    txt = g.build()
    out = cfg.o or os.path.join(os.path.dirname(os.path.abspath(__file__)), "..", "cdna_kernels", NAME + ".s")
    open(out, "w").write(txt)
    if cfg.prof:
        open(out + ".stamps", "w").write("\n".join(g.stamp_names))


if __name__ == "__main__":
    main()
```

```python
import re

REG_RE = re.compile(r"(?<![\w.])(-?)(?:abs\()?([vas])(?:(\d+)|\[(\d+):(\d+)\])")


def regs_of(tok):
    out = set()
    t = tok.strip()
    if t in ("vcc", "vcc_lo", "vcc_hi"):
        return {("s", "vcc")}
    if t in ("exec", "exec_lo", "exec_hi"):
        return {("s", "exec")}
    if t == "m0":
        return {("s", "m0")}
    m = REG_RE.match(t)
    if m:
        f = m.group(2)
        if m.group(3) is not None:
            out.add((f, int(m.group(3))))
        else:
            for i in range(int(m.group(4)), int(m.group(5)) + 1):
                out.add((f, i))
    return out


TRANS = ("v_exp_f32", "v_log_f32", "v_rcp_f32", "v_rsq_f32", "v_sqrt_f32", "v_sin_f32", "v_cos_f32")


class Ins:
    __slots__ = ("text", "op", "kind", "rd", "wr", "srcc", "srcab", "tag", "label", "target", "states",
                 "dpp", "lds_dma", "wide_store", "sgpr_rd_vmem", "passes", "counted", "waits", "slow")

    def __init__(self, text, tag=None, counted=True):
        self.text = text
        self.tag = tag
        self.counted = counted
        self.slow = False
        self.label = None
        self.target = None
        self.rd = set()
        self.wr = set()
        self.srcc = set()
        self.srcab = set()
        self.states = 1
        self.dpp = False
        self.lds_dma = False
        self.wide_store = set()
        self.passes = 0
        self.waits = {}
        t = text.split(";")[0].strip()
        if t.endswith(":"):
            self.label = t[:-1]
            self.kind = "label"
            self.op = ""
            self.states = 0
            return
        if t.startswith(".") or not t:
            self.kind = "dir"
            self.op = ""
            self.states = 0
            return
        parts = t.split(None, 1)
        op = parts[0]
        self.op = op
        rest = parts[1] if len(parts) > 1 else ""
        ops = []
        cur = ""
        depth = 0
        for ch in rest:
            if ch in "[(":
                depth += 1
            if ch in "])":
                depth -= 1
            if ch == "," and depth == 0:
                ops.append(cur.strip())
                cur = ""
            else:
                cur += ch
        if cur.strip():
            ops.append(cur.strip())
        mods = ""
        if ops:
            sp = ops[-1].split(None, 1)
            ops[-1] = sp[0]
            mods = sp[1] if len(sp) > 1 else ""
        R = [regs_of(o) for o in ops]

        def u(lst):
            s = set()
            for x in lst:
                s |= x
            return s

        if op.startswith("v_mfma"):
            self.kind = "mfma"
            self.wr = R[0]
            self.srcab = R[1] | R[2]
            self.srcc = R[3]
            self.rd = self.srcab | self.srcc
            self.passes = 8 if "32x32x16" in op else 4
        elif op.startswith("v_cmp"):
            self.kind = "valu"
            self.wr = R[0]
            self.rd = u(R[1:])
        elif op.startswith("v_permlane"):
            self.kind = "valu"
            self.wr = R[0] | R[1]
            self.rd = R[0] | R[1]
        elif op.startswith("v_"):
            self.kind = "valu"
            self.wr = R[0]
            self.rd = u(R[1:])
            if op.startswith(("v_fmac", "v_dot2c", "v_writelane")) or "_dpp" in op:
                self.rd |= R[0]
            if op.startswith(("v_add_co", "v_sub_co", "v_addc_co", "v_div_scale")):
                self.wr = R[0] | R[1]
                self.rd = u(R[2:])
            if op.startswith("v_cndmask") and len(ops) == 3:
                self.rd |= {("s", "vcc")}
            if "_dpp" in op or "row_" in mods or "quad_perm" in mods:
                self.dpp = True
        elif op.startswith("ds_"):
            self.kind = "ds"
            if op.startswith("ds_read") or "permute" in op or "swizzle" in op:
                self.wr = R[0]
                self.rd = u(R[1:])
            else:
                self.rd = u(R)
        elif op.startswith(("buffer_", "global_")):
            self.kind = "vmem"
            is_lds = re.search(r"\blds\b", mods) is not None or "_lds_" in op
            if "load" in op:
                if is_lds:
                    self.lds_dma = True
                    self.rd = u(R) | {("s", "m0")}
                else:
                    self.wr = R[0]
                    self.rd = u(R[1:])
                    if "d16" in op:
                        self.rd |= R[0]
            elif "store" in op:
                self.rd = u(R)
                data = R[0] if op.startswith("buffer_") else R[1]
                if op.endswith(("x3", "x4")):
                    self.wide_store = data
            elif "atomic" in op:
                self.rd = u(R)
                if "sc0" in mods:
                    self.wr = R[0]
            else:
                self.rd = u(R)
        elif op.startswith(("s_load", "s_memtime", "s_memrealtime", "s_buffer_load")):
            self.kind = "smem"
            self.wr = R[0]
            self.rd = u(R[1:])
        elif op == "s_waitcnt":
            self.kind = "wait"
            for k, n in re.findall(r"(vmcnt|lgkmcnt)\((\d+)\)", rest):
                self.waits[k] = int(n)
        elif op == "s_nop":
            self.kind = "nop"
            self.states = int(ops[0], 0) + 1
        elif op.startswith(("s_branch", "s_cbranch")):
            self.kind = "branch"
            self.target = ops[0]
            if "vcc" in op:
                self.rd = {("s", "vcc")}
        elif op in ("s_barrier", "s_endpgm", "s_sleep", "s_setprio"):
            self.kind = "misc"
        elif op.startswith("s_"):
            self.kind = "salu"
            if op.startswith("s_cmp") or op.startswith("s_bitcmp"):
                self.rd = u(R)
            else:
                self.wr = R[0]
                self.rd = u(R[1:])
                if "saveexec" in op:
                    self.wr |= {("s", "exec")}
                    self.rd |= {("s", "exec")}
                if op.startswith(("s_addk", "s_mulk")):
                    self.rd |= R[0]
        else:
            raise ValueError("unknown instruction: " + text)


def vg(s):
    return {r for r in s if r[0] in "va"}


def sg(s):
    return {r for r in s if r[0] == "s"}


def need(p, c):
    n = 0
    if p.kind == "valu":
        pv = vg(p.wr)
        ps = sg(p.wr)
        if c.kind == "mfma" and pv & c.rd:
            n = max(n, 2)
        if c.kind == "valu":
            if pv & c.rd:
                if c.dpp or c.op.startswith("v_permlane"):
                    n = max(n, 2)
                if c.op.startswith(("v_readlane", "v_readfirstlane")):
                    n = max(n, 1)
                if p.op.startswith(TRANS) and not c.op.startswith(TRANS):
                    n = max(n, 1)
            if p.op.startswith("v_dot2") and (pv & (c.rd | c.wr)):
                if not (c.op == p.op):
                    n = max(n, 3)
            if ps & c.rd:
                n = max(n, 4 if c.op.startswith(("v_readlane", "v_writelane")) else 2)
        if c.kind == "vmem" and ps & c.rd:
            n = max(n, 5)
        if p.op.startswith("v_dot2") and c.kind in ("vmem", "ds", "mfma") and pv & c.rd:
            n = max(n, 3)
    if p.kind == "mfma":
        big = 8 if p.passes == 4 else 12
        if c.kind == "mfma":
            if p.wr & c.srcab:
                n = max(n, big)
            if p.wr & c.srcc and not (p.wr == c.srcc and p.passes == c.passes):
                n = max(n, big - 2)
            if p.wr & c.wr and not (p.wr == c.srcc and p.passes == c.passes):
                n = max(n, big)
        elif c.kind in ("valu", "vmem", "ds"):
            if p.wr & (c.rd | c.wr):
                n = max(n, big)
            if p.srcc & c.wr:
                n = max(n, 3 if p.passes == 4 else 7)
    if p.kind == "vmem" and p.wide_store:
        if p.wide_store & c.wr:
            n = max(n, 2)
    if p.kind == "salu" and ("s", "m0") in p.wr and c.lds_dma:
        n = max(n, 1)
    return n


class Asm:
    def __init__(self):
        self.ins = []
        self.bgq = []
        self.bg_period = 0
        self.bg_acc = 0
        self._in_bg = False

    def __call__(self, text, tag=None, counted=True, slow=False):
        for line in text.split("\n"):
            if line.strip():
                i = Ins(line.strip(), tag, counted)
                i.slow = slow
                self.ins.append(i)
                if self.bg_period and not self._in_bg and i.kind in ("valu", "ds"):
                    self.bg_acc += 1
                    if self.bg_acc >= self.bg_period and self.bgq:
                        self.bg_acc = 0
                        self.bg_step()

    def bg_step(self, n=1):
        self._in_bg = True
        for _ in range(n):
            if self.bgq:
                self.bgq.pop(0)()
        self._in_bg = False

    def bg(self, items, period):
        self.bgq += items
        self.bg_period = period

    def bg_pause(self):
        p, self.bg_period = self.bg_period, 0
        return p

    def bg_flush(self):
        self.bg_period = 0
        self.bg_step(len(self.bgq))

    def _count_after(self, kind, tag):
        key = "vmcnt" if kind == "vmem" else "lgkmcnt"
        n = 0
        total = 0
        waits = []
        for i in reversed(self.ins):
            if i.kind == "wait" and key in i.waits and not i.slow:
                waits.append((n, i.waits[key]))
            if i.kind == kind:
                if i.tag == tag:
                    for after, cnt in waits:
                        if n - after >= cnt:
                            return None
                    return n
                if i.counted:
                    n += 1
        raise KeyError("no %s op tagged %r" % (kind, tag))

    def wait(self, vm=None, lgkm=None):
        parts = []
        if vm is not None:
            n = vm if isinstance(vm, int) else self._count_after("vmem", vm)
            if n is not None:
                assert n <= 63, n
                parts.append("vmcnt(%d)" % n)
        if lgkm is not None:
            n = lgkm if isinstance(lgkm, int) else self._count_after("ds", lgkm)
            if n is not None:
                parts.append("lgkmcnt(%d)" % min(n, 15))
        if parts:
            self("s_waitcnt " + " ".join(parts))

    def fix_hazards(self, verbose=False):
        total = 0
        while True:
            ins = self.ins
            labels = {x.label: k for k, x in enumerate(ins) if x.label}
            preds = {}
            for k, x in enumerate(ins):
                if x.kind == "branch":
                    preds.setdefault(labels[x.target], []).append(k)
            changed = False
            out = []
            for k, c in enumerate(ins):
                if c.kind in ("valu", "mfma", "vmem", "ds", "salu", "smem"):
                    worst = 0
                    stack = [(k - 1, 0)]
                    seen = set()
                    while stack:
                        j, dist = stack.pop()
                        while j >= 0 and dist < 20:
                            if (j, dist) in seen:
                                break
                            seen.add((j, dist))
                            p = ins[j]
                            if p.label:
                                for b in preds.get(j, ()):
                                    stack.append((b, dist))
                            r = need(p, c)
                            if r > dist:
                                worst = max(worst, r - dist)
                            dist += p.states
                            j -= 1
                    if worst:
                        out.append(Ins("s_nop %d" % (worst - 1)))
                        total += worst
                        changed = True
                        if verbose:
                            print("nop", worst, "before", c.text)
                        out.extend(ins[k:])
                        break
                out.append(c)
            self.ins = out
            if not changed:
                return total

    def check_waits(self):
        vq, lq = [], []
        errs = []
        smem = set()
        since_label = []
        for k, x in enumerate(self.ins):
            if x.label:
                since_label = []
            if x.kind == "vmem":
                since_label.append(x)
            if x.kind == "wait" and x.slow:
                vq = [p for p in vq if p not in since_label]
                continue
            if x.kind == "wait":
                if "vmcnt" in x.waits:
                    n = x.waits["vmcnt"]
                    vq = vq[len(vq) - n:] if n < len(vq) and n > 0 else ([] if n == 0 else vq)
                if "lgkmcnt" in x.waits:
                    n = x.waits["lgkmcnt"]
                    lq = lq[len(lq) - n:] if n < len(lq) and n > 0 else ([] if n == 0 else lq)
                    if n == 0:
                        smem = set()
                continue
            touched = x.rd | x.wr
            for q in (vq, lq):
                for p in q:
                    if p.wr & touched:
                        errs.append("line %d: %s touches %s of un-waited %s" % (k, x.text, sorted(p.wr & touched)[:2], p.text))
            if smem & touched:
                errs.append("line %d: %s touches un-waited scalar load %s" % (k, x.text, sorted(smem & touched)[:2]))
            if x.kind == "vmem":
                vq.append(x)
                if len(vq) > 63:
                    errs.append("line %d: more than 63 vmem ops outstanding" % k)
            elif x.kind == "ds":
                lq.append(x)
            elif x.kind == "smem" and not x.op.startswith("s_mem"):
                smem |= x.wr
        return errs

    def sizes(self):
        import subprocess, tempfile, os
        d = tempfile.mkdtemp()
        open(d + "/a.s", "w").write('.amdgcn_target "amdgcn-amd-amdhsa--gfx950"\n.text\nk:\n' + self.text())
        B = "bin/"
        subprocess.run([B + "clang", "-x", "assembler", "-target", "amdgcn-amd-amdhsa", "-mcpu=gfx950", "-c", d + "/a.s", "-o", d + "/a.o"], check=True)
        out = subprocess.run([B + "llvm-objdump", "-d", "--mcpu=gfx950", d + "/a.o"], capture_output=True, text=True, check=True).stdout
        sz = [4 * len(m.group(1).split()) for m in re.finditer(r"// [0-9A-F]+: ((?:[0-9A-F]{8} ?)+)", out)]
        real = [x for x in self.ins if x.kind not in ("label", "dir")]
        assert len(sz) == len(real), (len(sz), len(real))
        return {id(x): n for x, n in zip(real, sz)}

    def align8(self, min_run=2):
        sz = self.sizes()
        ins = self.ins
        out = []
        addr = 0
        widened = nops = 0
        for k, x in enumerate(ins):
            n = sz.get(id(x), 0)
            if n >= 8 and addr % 8:
                run_len = 0
                for y in ins[k:]:
                    m = sz.get(id(y), 0)
                    if m == 4:
                        break
                    run_len += m >= 8
                cand = None
                for j in range(len(out) - 1, -1, -1):
                    y = out[j]
                    m = sz.get(id(y), 0)
                    if m >= 8:
                        break
                    if m == 4 and y.kind == "valu" and not y.op.startswith(("v_readfirstlane", "v_nop")) and not y.op.endswith("_e64"):
                        cand = j
                        break
                if cand is not None:
                    y = out[cand]
                    z = Ins(y.text.replace(y.op, y.op.replace("_e32", "") + "_e64", 1), y.tag, y.counted)
                    sz[id(z)] = 8
                    out[cand] = z
                    addr += 4
                    widened += 1
                elif run_len >= min_run:
                    z = Ins("s_nop 0")
                    sz[id(z)] = 4
                    out.append(z)
                    addr += 4
                    nops += 1
            out.append(x)
            addr += n
        self.ins = out
        return widened, nops

    def text(self):
        out = []
        for x in self.ins:
            out.append(x.text if x.label else "    " + x.text)
        return "\n".join(out) + "\n"
```

```python
import sys, os, argparse, math
sys.path.insert(0, os.path.dirname(os.path.abspath(__file__)))
from asmlib import Asm, Ins

NAME = "gated_mix__ssm_conv_s5__ssm_conv_s5__prompt"

WS_EPOCH = 0
WS_FLAG = 4096
WS_XF = 135168
WS_CARRY = 266240
WS_XCC = 593920
WS_H = 655360
WS_XCH = WS_H + 10485760
WS_PROF = WS_XCH + 5242880
WS_USED = WS_PROF + 1024 * 128

SLOT = 36864
PIECE = 9216
TOP = 4 * SLOT
TAB = TOP
PART1 = TOP + 10240
PART2 = TAB + 6400
LGW = PART1 + 4480
LDK = LGW + 1280
LDS_BYTES = 163840

sSPIN, sTC, sCG, sLATE, sBR, sW, sBW, sTAG, sK = 3, 4, 5, 6, 7, 8, 9, 10, 11
sT0, sT1, sT2, sT3 = 12, 13, 14, 15
SX, SB, SC, SWS, SOUT = 16, 20, 24, 32, 36
sPUB, sGAT, sHRE, sHIM = 28, 29, 30, 31
KA = 40
pX, pLre, pLim, pBre, pBim, pCre, pCim, pDT, pDA = 40, 42, 44, 46, 48, 50, 52, 54, 56
pDB, pGW, pOUT, pWS = 74, 76, 78, 80
sM = 58
sFLG, sPOL, sHA, sHB, sXS, sXR = 82, 83, 84, 85, 86, 87
sD0, sD1 = 72, 73
sKQ, sROT, sEND = 60, 65, 66
STAMP_REGS = list(range(88, 102, 2)) + [42, 44, 46, 48, 50, 52, 54, 68, 70]


def srd(b):
    return "s[%d:%d]" % (b, b + 3)


def sp(b):
    return "s[%d:%d]" % (b, b + 1)


def v2(b):
    return "v[%d:%d]" % (b, b + 1)


def v4(b, f="v"):
    return "%s[%d:%d]" % (f, b, b + 3)


class Op:
    __slots__ = ("f", "strict", "dma", "tag")

    def __init__(self, f, strict=False, dma=False, tag=None):
        self.f, self.strict, self.dma, self.tag = f, strict, dma, tag

    def __call__(self):
        self.f()


class Rec(list):
    def __init__(self, a):
        super().__init__()
        self.a = a

    def __call__(self, text, tag=None, counted=True, strict=False):
        self.append(Op(lambda: self.a(text, tag, counted), strict, text.startswith(("buffer_", "global_")), tag))

    def wait(self, vm=None, lgkm=None):
        self.append(Op(lambda: self.a.wait(vm, lgkm)))

    def group(self, *texts):
        self.append(Op(lambda: [self.a(t) for t in texts]))


def cmul(a, d, x, y):
    a(f"v_pk_mul_f32 {v2(d)}, {v2(x)}, {v2(y)} op_sel_hi:[1,0]")
    a(f"v_pk_fma_f32 {v2(d)}, {v2(x)}, {v2(y)}, {v2(d)} op_sel:[1,1,0] op_sel_hi:[0,1,1] neg_lo:[1,0,0]")


def cfma(a, d, x, y, c):
    a(f"v_pk_fma_f32 {v2(d)}, {v2(x)}, {v2(y)}, {v2(c)} op_sel_hi:[1,0,1]")
    a(f"v_pk_fma_f32 {v2(d)}, {v2(x)}, {v2(y)}, {v2(d)} op_sel:[1,1,0] op_sel_hi:[0,1,1] neg_lo:[1,0,0]")


def run(ops):
    for o in ops:
        o()


class Gen:
    def __init__(self, cfg):
        self.cfg = cfg
        self.a = Asm()
        self.nstamp = 0
        self.stamp_names = []
        self.tail = []

    def rec(self):
        return Rec(self.a)

    def stamp(self, name):
        if not self.cfg.prof:
            return
        if self.cfg.only:
            if name not in self.cfg.only.split(",") + ["rt0", "start", "end", "rt1"]:
                return
        elif name in self.cfg.nostamp.split(",") or (name[0] == "s" and name[1:].isdigit()):
            return
        op = "s_memrealtime" if name.startswith("rt") else "s_memtime"
        self.a("%s %s" % (op, sp(STAMP_REGS[self.nstamp])))
        self.stamp_names.append(name)
        self.nstamp += 1

    def weave(self, mf, streams, pins=None):
        n = len(mf)
        load = [0] * n
        slots = [[] for _ in range(n)]
        for ops, start, step in streams:
            prev = -1
            for k, op in enumerate(ops):
                g = max(int(start + k * step), prev + (1 if op.strict else 0), 0)
                while g < n - 1 and load[g] >= self.cfg.cap:
                    g += 1
                g = min(g, n - 1)
                slots[g].append(op)
                load[g] += 1
                prev = g
        for g in range(n):
            self.a(mf[g])
            run(slots[g])
            if pins and g in pins:
                pins[g]()

    ACC = 20
    GX, GW = 70, 80
    L1, L2, WQ, V, MC = 196, 206, 216, 232, 190
    T4 = 246
    VP, Q = 250, 251
    FG = 252
    TP, HS = 244, 243
    VC0, VC1 = 18, 19
    VCR = 10
    U = 100

    def acc(self, m, n, part):
        return self.ACC + (n * 2 + part) * 8 + 4 * m

    def prologue(self):
        a, cfg = self.a, self.cfg
        a(f"s_load_dwordx16 s[{KA}:{KA+15}], s[0:1], 0")
        a(f"s_load_dwordx16 s[{KA+16}:{KA+31}], s[0:1], 64")
        a(f"s_load_dwordx8 s[{KA+32}:{KA+39}], s[0:1], 128")
        a(f"s_load_dwordx2 {sp(pWS)}, s[0:1], 168")
        a("s_cmp_ge_u32 s2, 0x100")
        a("s_cbranch_scc1 L_end")
        if cfg.cpf == 0:
            a(f"s_getpc_b64 {sp(sT0)}")
            a("L_pc0:")
            a("v_lshlrev_b32 v18, 7, v0")
            a("v_min_u32 v19, L_last-L_pc0, v18")
            a(f"global_load_dword v243, v19, {sp(sT0)}", tag="pf")
        self.stamp("rt0")
        self.stamp("start")
        a("v_lshrrev_b32 v18, 6, v0")
        a(f"s_and_b32 s{sT2}, s2, 7")
        a(f"s_lshr_b32 s{sT3}, s2, 3")
        a(f"v_readfirstlane_b32 s{sW}, v18")
        if cfg.cpf:
            run(self.code_prefetch(18, 1))
        L, R8, SL, F0, T0, T1, C = 196, 197, 198, 199, 246, 247, 248
        Q = self.Q
        a(f"s_lshr_b32 s{sTC}, s{sT2}, 1")
        if cfg.remap:
            a(f"s_lshr_b32 s{sT0}, s{sTC}, 1")
            a(f"s_xor_b32 s{sTC}, s{sTC}, s{sT0}")
        a(f"s_lshl_b32 s{sTC}, s{sTC}, 2")
        a(f"s_lshr_b32 s{sT0}, s{sT3}, 3")
        a(f"s_add_u32 s{sTC}, s{sTC}, s{sT0}")
        a(f"s_and_b32 s{sBR}, s{sT2}, 1")
        a(f"s_and_b32 s{sT1}, s{sT3}, 7")
        a(f"s_lshl_b32 s{sCG}, s{sBR}, 3")
        a(f"s_add_u32 s{sCG}, s{sCG}, s{sT1}")
        a(f"s_mov_b32 s{sK}, 0")
        a(f"v_and_b32 v{L}, 63, v0")
        a(f"v_lshrrev_b32 v{R8}, 3, v{L}")
        a(f"v_and_b32 v{SL}, 7, v{L}")
        a(f"v_lshrrev_b32 v{Q}, 4, v{L}")
        a(f"v_xor_b32 v{F0}, v{Q}, v{SL}")
        a(f"v_lshlrev_b32 v{F0}, 4, v{F0}")
        a(f"v_lshrrev_b32 v{T0}, 5, v{L}")
        a(f"v_and_b32 v{T1}, 3, v{R8}")
        a(f"v_lshl_add_u32 v{T0}, v{T0}, 3, v{T1}")
        a(f"v_mul_u32_u24 v{T0}, 1280, v{T0}")
        a(f"v_xor_b32 v{T1}, 64, v{F0}")
        a(f"v_add_u32 v1, v{T0}, v{F0}")
        a(f"v_add_u32 v2, v{T0}, v{T1}")
        a(f"v_add_u32 v2, {16*1280-1024}, v2")
        a(f"v_add_u32 v3, {4*1280-2048}, v1")
        a(f"v_add_u32 v4, {4*1280-2048}, v2")
        a(f"v_mul_u32_u24 v{T0}, 1280, v{R8}")
        a(f"v_add_u32 v{self.VC0}, v{T0}, v{F0}")
        a(f"v_add_u32 v{self.VC1}, v{T0}, v{T1}")
        a(f"v_add_u32 v{self.VC1}, {8*1280}, v{self.VC1}")
        a(f"s_mul_i32 s{sBW}, s{sW}, {PIECE}")
        a(f"s_bitcmp1_b32 s{sW}, 1")
        a(f"s_cselect_b64 vcc, -1, 0")
        a(f"s_mul_i32 s{sT1}, s{sT1}, 80")
        a(f"s_mul_i32 s{sT0}, s{sW}, 20")
        a(f"v_cndmask_b32 v5, v{self.VC0}, v{self.VC1}, vcc")
        for n in range(1, 5):
            a(f"v_add_u32 v{5+n}, {n*16*1280 - 1024*(n & 3)}, v5")
        a(f"v_add_u32 v{self.VC1}, -1024, v{self.VC1}")
        a(f"v_min_u32 v{T0}, 19, v{L}")
        a(f"v_add_u32 v204, s{sT0}, v{T0}")
        a(f"v_add_lshl_u32 v{T0}, v204, s{sT1}, 1")
        a(f"s_mul_i32 s{sT1}, s{sT1}, 1280")
        a(f"s_lshl_b32 s{sT0}, s{sTC}, 2")
        a(f"s_add_u32 s{sT0}, s{sT0}, s{sW}")
        a(f"s_mul_i32 s{sT0}, s{sT0}, {32*1280}")
        a(f"s_lshl_b32 s{sPUB}, s{sT3}, 2")
        a(f"s_add_u32 s{sPUB}, s{sPUB}, s{sW}")
        a(f"s_lshl_b32 s{sGAT}, s{sT2}, 7")
        a(f"s_add_u32 s{sGAT}, s{sGAT}, s{sPUB}")
        a(f"s_mul_i32 s{sGAT}, s{sGAT}, 2560")
        a(f"s_bfe_u32 s{sHRE}, s{sT2}, 0x10001")
        a(f"s_lshl_b32 s{sHRE}, s{sHRE}, 7")
        a(f"s_add_u32 s{sHRE}, s{sHRE}, s{sPUB}")
        a(f"s_mul_i32 s{sHRE}, s{sHRE}, 3200")
        a(f"v_lshlrev_b32 v241, 7, v{L}")
        a(f"s_lshl_b32 s{sHIM}, s2, 2")
        a(f"s_add_u32 s{sHIM}, s{sHIM}, s{sW}")
        a(f"s_mul_i32 s{sHIM}, s{sHIM}, 640")
        a(f"s_add_u32 s{sHIM}, s{sHIM}, {WS_FLAG}")
        a(f"v_add_u32 v240, s{sHIM}, v241")
        a(f"v_add_u32 v242, s{sHRE}, v241")
        a(f"v_add_u32 v241, s{sGAT}, v241")
        a(f"s_mov_b32 s{SX+3}, 0x20000")
        a(f"s_mov_b32 s{SB+3}, 0x20000")
        a(f"s_sub_u32 s{SX+2}, 2621440, s{sT0}")
        a(f"s_sub_u32 s{SB+2}, 819200, s{sT1}")
        a("s_waitcnt lgkmcnt(0)")
        self.stamp("karg")
        a(f"s_add_u32 s{SX}, s{pX}, s{sT0}")
        a(f"s_addc_u32 s{SX+1}, s{pX+1}, 0")
        a(f"s_cmp_eq_u32 s{sBR}, 1")
        for p in (pBre, pBim, pLre, pLim, pDT, pCre, pCim):
            a(f"s_cselect_b64 {sp(p)}, {sp(p+18)}, {sp(p)}")
        a(f"s_bitcmp1_b32 s{sW}, 0")
        a(f"s_cselect_b64 {sp(SB)}, {sp(pBim)}, {sp(pBre)}")
        a(f"s_cselect_b64 {sp(SC)}, {sp(pCim)}, {sp(pCre)}")
        a(f"s_add_u32 s{SB}, s{SB}, s{sT1}")
        a(f"s_addc_u32 s{SB+1}, s{SB+1}, 0")
        a(f"global_load_ushort v206, v{T0}, {sp(pLre)}", tag="par")
        a(f"global_load_ushort v207, v{T0}, {sp(pLim)}", tag="par")
        a(f"global_load_ushort v208, v{T0}, {sp(pDT)}", tag="par")

        def prefetch():
            a(f"s_bitcmp1_b32 s{sT2}, 2")
            a(f"s_cselect_b64 {sp(SWS)}, {sp(pBim)}, {sp(pBre)}")
            a(f"s_cselect_b64 {sp(sM)}, {sp(pCim)}, {sp(pCre)}")
            a("s_mov_b64 exec, 0xfffff")
            a(f"global_load_dword v244, v241, {sp(pX)}", tag="pf")
            a("s_mov_b64 exec, 0x1ffffff")
            a(f"global_load_dword v245, v242, {sp(SWS)}", tag="pf")
            if cfg.touch == 1:
                a("s_mov_b64 exec, 0x1f")
                a(f"global_load_dword v243, v240, {sp(pWS)}", tag="pf")
            a("s_mov_b64 exec, -1")
        if cfg.pf == 1:
            prefetch()
        if cfg.pfc0:
            a(f"s_bitcmp1_b32 s{sT2}, 2")
            a(f"s_cselect_b64 {sp(sM)}, {sp(pCim)}, {sp(pCre)}")
            a("s_mov_b64 exec, 0x1ffffff")
            a(f"global_load_dword a255, v242, {sp(sM)}", tag="pf")
            a("s_mov_b64 exec, -1")
        run(self.dma_stage(0))
        if cfg.pf == 2:
            prefetch()
        a(f"s_load_dword s{sTAG}, {sp(pWS)}, {WS_EPOCH}")
        self.stamp("dma0")
        a(f"v_lshlrev_b32 v204, 3, v204")
        a(f"v_add_u32 v204, {TAB}, v204")
        a(f"v_and_b32 v{C}, 15, v{L}")
        a(f"v_lshrrev_b32 v{T0}, 1, v{C}")
        a(f"v_xor_b32 v{T0}, v{T0}, v{Q}")
        a(f"v_lshlrev_b32 v{T0}, 4, v{T0}")
        a(f"v_lshl_add_u32 v{T1}, v{C}, 7, v{T0}")
        a(f"v_add_u32 v10, s{sBW}, v{T1}")
        a(f"v_xor_b32 v11, 64, v10")
        a(f"v_add_u32 v12, {2*SLOT}, v10")
        a(f"v_add_u32 v13, {2*SLOT}, v11")
        a(f"v_and_b32 v{T1}, 7, v{C}")
        a(f"v_lshl_add_u32 v{T0}, v{T1}, 7, v{T0}")
        a(f"v_lshrrev_b32 v{T1}, 3, v{C}")
        a(f"v_mul_u32_u24 v{T1}, {2*PIECE}, v{T1}")
        a(f"v_add_u32 v{T0}, 4096, v{T0}")
        a(f"v_add_u32 v14, v{T0}, v{T1}")
        a(f"v_xor_b32 v15, 64, v14")
        a(f"v_add_u32 v16, {2*SLOT}, v14")
        a(f"v_add_u32 v17, {2*SLOT}, v15")
        a(f"v_lshlrev_b32 v{self.VP}, 3, v{C}")
        a(f"v_add_u32 v{self.VP}, {TAB}, v{self.VP}")
        a(f"s_lshr_b32 s{sT0}, s{sW}, 1")
        a(f"s_mul_i32 s{sT0}, s{sT0}, 640")
        a(f"s_add_u32 s{sT0}, s{sT0}, s{sT1}")
        a(f"s_add_u32 s{SC}, s{SC}, s{sT0}")
        a(f"s_addc_u32 s{SC+1}, s{SC+1}, 0")
        a(f"s_sub_u32 s{SC+2}, 819200, s{sT0}")
        a(f"s_mov_b32 s{SC+3}, 0x20000")
        a(f"s_mov_b32 s{SWS}, s{pWS}")
        a(f"s_mov_b32 s{SWS+1}, s{pWS+1}")
        a(f"s_mov_b32 s{SWS+2}, {WS_USED}")
        a(f"s_mov_b32 s{SWS+3}, 0x20000")
        a(f"s_mov_b32 s{SOUT}, s{pOUT}")
        a(f"s_mov_b32 s{SOUT+1}, s{pOUT+1}")
        a(f"s_mov_b32 s{SOUT+2}, 5242880")
        a(f"s_mov_b32 s{SOUT+3}, 0x20000")
        if cfg.rot:
            a(f"s_and_b32 s{sT0}, s{sCG}, 7")
            if cfg.rot == 1:
                a(f"s_and_b32 s{sT2}, s{sTC}, 3")
                a(f"s_add_u32 s{sT0}, s{sT0}, s{sT2}")
            for _ in range(2 if cfg.rot == 1 else 1):
                a(f"s_sub_u32 s{sT2}, s{sT0}, 5")
                a(f"s_cselect_b32 s{sT0}, s{sT0}, s{sT2}")
        else:
            a(f"s_mov_b32 s{sT0}, 0")
        a(f"s_lshl_b32 s{sROT}, s{sT0}, 13")
        a(f"s_lshl_b32 s{sKQ}, s{sT0}, 7")
        for k in range(1, 5):
            a(f"s_add_u32 s{sKQ+k}, s{sKQ+k-1}, 128")
            a(f"s_cmp_eq_u32 s{sKQ+k}, 640")
            a(f"s_cselect_b32 s{sKQ+k}, 0, s{sKQ+k}")
        if cfg.fast:
            cfg.split = 0
        a(f"s_lshr_b32 s{sLATE}, s{sW}, 1")
        a(f"s_xor_b32 s{sLATE}, s{sLATE}, s{sBR}")
        a(f"s_mul_i32 s{sT0}, s{sW}, 320")
        a(f"v_lshl_add_u32 v236, v{L}, 4, s{sT0}")
        a(f"s_add_u32 s{sEND}, s{sT0}, {LGW}")
        a(f"s_and_b32 s{sT0}, s{sCG}, 7")
        a(f"s_mul_i32 s{sT0}, s{sT0}, 160")
        a(f"v_lshl_add_u32 v237, v{L}, 4, s{sT0}")
        a(f"s_bitcmp1_b32 s{sW}, 0")
        a(f"s_cselect_b64 {sp(68)}, {sp(pDB)}, {sp(pDA)}")
        a(f"s_cselect_b32 s67, 160, 0")
        a(f"s_add_u32 s67, s67, {LDK}")
        self.ws_offsets()
        if cfg.order == 0:
            run(self.dma_stage(1))
            self.params()
        else:
            self.params()
            run(self.dma_stage(1))
        a("s_waitcnt lgkmcnt(0)")
        a(f"s_mul_i32 s{sTAG}, s{sTAG}, 0x9E3779B1")
        a(f"s_add_u32 s{sTAG}, s{sTAG}, 0x7F4A7C15")
        if cfg.fast:
            a(f"s_getreg_b32 s{sLATE}, hwreg(HW_REG_XCC_ID, 0, 4)")
            a(f"s_lshl_b32 s{sT0}, s{sTC}, 4")
            a(f"s_add_u32 s{sT0}, s{sT0}, s{sCG}")
            a(f"s_lshl_b32 s{sT0}, s{sT0}, 7")
            a(f"s_add_u32 s{sT0}, s{sT0}, {WS_XCC}")
            a(f"v_mov_b32 v246, s{sLATE}")
            a(f"v_mov_b32 v247, s{sTAG}")
            a(f"v_lshlrev_b32 v248, 3, v196")
            a("s_mov_b64 exec, 0xffff")
            a(f"buffer_store_dwordx2 {v2(246)}, v248, {srd(SWS)}, s{sT0} offen sc1", tag="xcc")
        a(f"s_mov_b32 m0, s{sEND}")
        a("s_mov_b64 exec, 0xfffff")
        a(f"global_load_lds_dwordx4 v236, {sp(pGW)}", tag="small")
        a(f"s_mov_b32 m0, s67")
        a("s_mov_b64 exec, 0x3ff")
        a(f"global_load_lds_dwordx4 v237, {sp(68)}", tag="small")
        a("s_mov_b64 exec, -1")
        self.stamp("dma1")

    def code_prefetch(self, t, k):
        a = self.a
        r = self.rec()
        r(f"s_lshr_b32 s{sT0}, s2, 3")
        r(f"s_lshl_b32 s{sT0}, s{sT0}, 2")
        r(f"s_add_u32 s{sT0}, s{sT0}, s{sW}")
        r(f"s_lshl_b32 s{sT0}, s{sT0}, 8")
        r(f"v_and_b32 v{t}, 1, v0")
        r(f"v_lshl_add_u32 v{t}, v{t}, 7, s{sT0}")
        r.append(Op(lambda: (a(f"s_getpc_b64 {sp(sT0)}"), a(f"L_pc{k}:"), a(f"v_min_u32 v{t}, L_last-L_pc{k}, v{t}"),
                             a("s_mov_b64 exec, 3"), a(f"global_load_dword a{255-k}, v{t}, {sp(sT0)}", tag="pf"),
                             a("s_mov_b64 exec, -1")), dma=True))
        return r

    def ws_offsets(self):
        a = self.a
        a(f"s_lshl_b32 s{sT0}, s{sCG}, 4")
        a(f"s_add_u32 s{sPUB}, s{sT0}, s{sTC}")
        a(f"s_mul_i32 s{sPUB}, s{sPUB}, 1280")
        a(f"s_add_u32 s{sPUB}, s{sPUB}, {WS_CARRY}")
        a(f"s_lshl_b32 s{sT2}, s{sW}, 2")
        a(f"s_add_u32 s{sGAT}, s{sT0}, s{sT2}")
        a(f"s_mul_i32 s{sGAT}, s{sGAT}, 1280")
        a(f"s_add_u32 s{sGAT}, s{sGAT}, {WS_CARRY}")
        a(f"s_lshl_b32 s{sT0}, s{sTC}, 1")
        a(f"s_add_u32 s{sT0}, s{sT0}, s{sBR}")
        a(f"s_lshr_b32 s{sT2}, s{sW}, 1")
        a(f"s_and_b32 s{sT3}, s{sW}, 1")
        a(f"s_lshl_b32 s{sHRE}, s{sT0}, 1")
        a(f"s_add_u32 s{sHRE}, s{sHRE}, s{sT2}")
        a(f"s_mul_i32 s{sHRE}, s{sHRE}, {2*81920}")
        a(f"s_and_b32 s{sHIM}, s{sCG}, 7")
        a(f"s_mul_i32 s{sHIM}, s{sHIM}, 5")
        a(f"s_and_b32 s{sD0}, s{sHIM}, 1")
        a(f"s_lshr_b32 s{sHIM}, s{sHIM}, 1")
        a(f"s_lshl_b32 s{sHIM}, s{sHIM}, 12")
        a(f"s_add_u32 s{sHRE}, s{sHRE}, s{sHIM}")
        a(f"s_lshl_b32 s{sHIM}, s{sD0}, 9")
        a(f"s_add_u32 s{sHRE}, s{sHRE}, s{sHIM}")
        a(f"s_mul_i32 s{sD0}, s{sD0}, 3072")
        a(f"s_add_u32 s{sD0}, s{sD0}, 512")
        a(f"s_sub_u32 s{sD1}, 4096, s{sD0}")
        a(f"s_lshl_b32 s{sHIM}, s{sT3}, 11")
        a(f"s_add_u32 s{sHRE}, s{sHRE}, s{sHIM}")
        a(f"s_add_u32 s{sHRE}, s{sHRE}, {WS_H}")
        a(f"s_add_u32 s{sHIM}, s{sHRE}, 81920")
        a(f"s_lshl_b32 s{sHB}, s{sT0}, 1")
        a(f"s_add_u32 s{sHB}, s{sHB}, s{sBR}")
        a(f"s_xor_b32 s{sHA}, s{sHB}, 1")
        a(f"s_mul_i32 s{sXS}, s{sT3}, 81920")
        a(f"s_mul_i32 s{sXR}, s{sT2}, 40960")
        a(f"s_add_u32 s{sXS}, s{sXS}, s{sXR}")
        a(f"s_add_u32 s{sXS}, s{sXS}, {WS_H}")
        a(f"s_mul_i32 s{sHA}, s{sHA}, {2*81920}")
        a(f"s_mul_i32 s{sHB}, s{sHB}, {2*81920}")
        a(f"s_add_u32 s{sHA}, s{sHA}, s{sXS}")
        a(f"s_add_u32 s{sHB}, s{sHB}, s{sXS}")
        a(f"s_lshl_b32 s{sFLG}, s{sTC}, 4")
        a(f"s_add_u32 s{sFLG}, s{sFLG}, s{sCG}")
        a(f"s_lshl_b32 s{sFLG}, s{sFLG}, 2")
        a(f"s_add_u32 s{sFLG}, s{sFLG}, s{sW}")
        a(f"s_lshl_b32 s{sFLG}, s{sFLG}, 7")
        a(f"s_add_u32 s{sFLG}, s{sFLG}, {WS_FLAG}")
        a(f"s_lshl_b32 s{sPOL}, s{sT0}, 1")
        a(f"s_add_u32 s{sPOL}, s{sPOL}, s{sT2}")
        a(f"s_lshl_b32 s{sPOL}, s{sPOL}, 11")
        a(f"s_add_u32 s{sPOL}, s{sPOL}, {WS_FLAG}")
        a(f"s_lshl_b32 s{sXS}, s{sTC}, 3")
        a(f"s_and_b32 s{sT0}, s{sCG}, 7")
        a(f"s_add_u32 s{sXS}, s{sXS}, s{sT0}")
        a(f"s_lshl_b32 s{sXS}, s{sXS}, 1")
        a(f"s_add_u32 s{sXS}, s{sXS}, s{sBR}")
        a(f"s_lshl_b32 s{sXS}, s{sXS}, 2")
        a(f"s_add_u32 s{sXS}, s{sXS}, s{sW}")
        a(f"s_xor_b32 s{sXR}, s{sXS}, 4")

    def params(self):
        a = self.a
        LR, LI, DT, T0, T1, T2 = 206, 207, 208, 209, 210, 211
        P = lambda k: 100 + 2 * k
        a(f"v_lshlrev_b32 v{T0}, 3, v196")
        a(f"v_add_u32 v{T0}, {PART1}, v{T0}")
        a(f"v_mov_b64 {v2(P(16))}, 0")
        a("s_mov_b32 exec_hi, 0xffff")
        for n in range(5):
            a(f"ds_write_b64 v{T0}, {v2(P(16))} offset:{n*896}", tag="tab")
        a("s_mov_b64 exec, 0xfffff")
        a.wait(vm="par")
        a(f"v_lshlrev_b32 v{DT}, 16, v{DT}")
        a(f"v_lshlrev_b32 v{LR}, 16, v{LR}")
        a(f"v_mul_f32 v{DT}, 0x3fb8aa3b, v{DT}")
        a(f"v_exp_f32 v{DT}, v{DT}")
        a(f"v_lshlrev_b32 v{LI}, 16, v{LI}")
        a(f"v_cvt_pk_bf16_f32 v{DT}, v{DT}, v{DT}")
        a(f"v_lshlrev_b32 v{DT}, 16, v{DT}")
        a(f"v_mul_f32 v{T0}, v{DT}, v{LR}")
        a(f"v_mul_f32 v{T1}, v{DT}, v{LI}")
        a(f"v_mul_f32 v{T0}, 0x3fb8aa3b, v{T0}")
        a(f"v_mul_f32 v{T1}, 0x3e22f983, v{T1}")
        a(f"v_exp_f32 v{T0}, v{T0}")
        a(f"v_rndne_f32 v{T2}, v{T1}")
        a(f"v_sub_f32 v{T1}, v{T1}, v{T2}")
        a(f"v_cos_f32 v{T2}, v{T1}")
        a(f"v_sin_f32 v{T1}, v{T1}")
        a(f"v_mov_b32 v{P(0)}, 1.0")
        a(f"v_mov_b32 v{P(0)+1}, 0")
        a(f"v_mul_f32 v{P(1)}, v{T0}, v{T2}")
        a(f"v_mul_f32 v{P(1)+1}, v{T0}, v{T1}")
        a(f"v_mul_f32 v{T0}, v{LR}, v{LR}")
        a(f"v_fmac_f32 v{T0}, v{LI}, v{LI}")
        a(f"v_rcp_f32 v{T0}, v{T0}")
        a(f"v_add_f32 v{T1}, -1.0, v{P(1)}")
        a(f"v_mul_f32 v{P(3)}, v{T1}, v{LR}")
        a(f"v_mul_f32 v{P(3)+1}, v{P(1)+1}, v{LR}")
        a(f"v_add_f32 v{T0}, v{T0}, v{T0}")
        a(f"v_fmac_f32 v{P(3)}, v{P(1)+1}, v{LI}")
        a(f"v_fma_f32 v{P(3)+1}, -v{T1}, v{LI}, v{P(3)+1}")
        a(f"v_mul_f32 v{P(3)}, v{P(3)}, v{T0}")
        a(f"v_mul_f32 v{P(3)+1}, v{P(3)+1}, v{T0}")
        cmul(a, P(2), P(1), P(1))
        cmul(a, P(17), P(2), P(2))
        cmul(a, P(4), P(17), P(17))
        for base in (4, 7, 10, 13):
            cmul(a, P(base + 1), P(base), P(base))
            cmul(a, P(base + 2), P(base + 1), P(base))
            if base < 13:
                cmul(a, P(base + 3), P(base + 1), P(base + 1))
        for e in range(16):
            a(f"ds_write_b64 v204, {v2(P(e))} offset:{e*640}", tag="tab")
        a("s_mov_b64 exec, -1")

    def dma_stage(self, s):
        r = self.rec()
        base = (s % 4) * SLOT
        for j in range(9):
            if j in (0, 4, 8):
                r(f"s_add_u32 m0, s{sBW}, {base + 1024*j}")
            sr = SX if j < 4 else SB
            r(f"buffer_load_dwordx4 v{1+j}, {srd(sr)}, s{sK} offen offset:{1024*(j & 3)} lds", tag=f"st{s}", strict=j in (0, 4, 8))
        if s < 9:
            r(f"s_add_u32 s{sK}, s{sK}, 128")
        return r

    def c_slot(self, u):
        if u >= self.cfg.n1:
            u -= self.cfg.n1
        return ((2 + u // 4) % 4), (u % 4)

    def c_dma(self, u):
        r = self.rec()
        p, qq = self.c_slot(u)
        kl, nt = divmod(u, 5)
        r(f"s_add_u32 m0, s{sBW}, {p*SLOT + qq*2048}")
        r(f"s_add_u32 s{sK}, s{sKQ+kl}, {nt*20480}")
        r(f"buffer_load_dwordx4 v{self.VC0}, {srd(SC)}, s{sK} offen lds", tag=f"c{u}", strict=True)
        r(f"buffer_load_dwordx4 v{self.VC1}, {srd(SC)}, s{sK} offen offset:1024 lds", tag=f"c{u}")
        return r

    def c_drain(self, u):
        r = self.rec()
        p, qq = self.c_slot(u)
        r.wait(vm=f"c{u}")
        for b in range(2):
            r(f"ds_read_b128 {v4(8*u+4*b, 'a')}, v{self.VCR + 2*(p >> 1) + b} offset:{(p & 1)*SLOT + qq*2048}", tag=f"dr{u}")
        return r

    def c_stream(self, rest):
        items, cur = [], []
        for o in rest:
            cur.append(o)
            if o.dma:
                items.append(Op(lambda c=cur: run(c), tag=o.tag))
                cur = []
        assert not cur
        return items

    def cq_ops(self):
        return self.cq

    def c_take(self, n):
        r, self.cq = self.cq[:n], self.cq[n:]
        return r

    def frag_reads(self, h):
        r = self.rec()
        s, u = h >> 1, h & 1
        slot = s % 4
        F = 100 + 48 * (h & 1)
        va = 10 + 2 * (slot >> 1) + u
        vb = 14 + 2 * (slot >> 1) + u
        so = (slot & 1) * SLOT
        rd = lambda dst, vr, off: r(f"ds_read_b128 {v4(dst)}, v{vr} offset:{off}", tag=f"fr{h}")
        rd(F, va, so)
        rd(F + 8, vb, so)
        rd(F + 4, va, so + 2048)
        for k in range(1, 10):
            rd(F + 8 + 4 * k, vb, so + (k & 1) * PIECE + (k >> 1) * 1024)
        return r

    def gate_loads(self, t):
        a = self.a
        GX, GW = self.GX, self.GW
        a(f"s_lshl_b32 s{sT0}, s{sTC}, 4")
        a(f"s_add_u32 s{sT0}, s{sT0}, s{sCG}")
        a(f"s_lshl_b32 s{sT0}, s{sT0}, 2")
        a(f"s_add_u32 s{sT0}, s{sT0}, s{sW}")
        a(f"s_lshl_b32 s{sT0}, s{sT0}, 1")
        a(f"v_bfe_u32 v{t}, v0, 5, 1")
        a(f"v_add_u32 v{t}, s{sT0}, v{t}")
        a(f"v_mul_u32_u24 v{t}, 1280, v{t}")
        a(f"v_and_b32 v{t+1}, 31, v0")
        a(f"v_lshl_add_u32 v{t+2}, v{t+1}, 4, v{t}")
        a(f"v_lshl_add_u32 v{t+3}, v{t+1}, 3, v{t}")
        a(f"global_load_dwordx4 {v4(GX)}, v{t+2}, {sp(pX)}", tag="gate")
        a(f"global_load_dwordx4 {v4(GX+4)}, v{t+2}, {sp(pX)} offset:512", tag="gate")
        a(f"global_load_dwordx2 {v2(GX+8)}, v{t+3}, {sp(pX)} offset:1024", tag="gate")
        a(f"v_lshlrev_b32 v{t+2}, 4, v{t+1}")
        a(f"v_add_u32 v{t+2}, {LGW}, v{t+2}")
        a(f"v_lshlrev_b32 v{t+3}, 3, v{t+1}")
        a(f"v_add_u32 v{t+3}, {LGW + 1024}, v{t+3}")
        a(f"ds_read_b128 {v4(GW)}, v{t+2}", tag="gw")
        a(f"ds_read_b128 {v4(GW+4)}, v{t+2} offset:512", tag="gw")
        a(f"ds_read_b64 {v2(GW+8)}, v{t+3}", tag="gw")

    XS = 60

    def xs(self, i):
        return (190, 192, 194, 92, 94)[i]

    def skip_loads(self, t):
        a = self.a
        a(f"s_lshl_b32 s{sT0}, s{sTC}, 1")
        a(f"s_add_u32 s{sT0}, s{sT0}, s{sBR}")
        a(f"s_lshl_b32 s{sT0}, s{sT0}, 2")
        a(f"s_add_u32 s{sT0}, s{sT0}, s{sW}")
        a(f"s_lshl_b32 s{sT0}, s{sT0}, 4")
        a(f"s_and_b32 s{sT1}, s{sCG}, 7")
        a(f"s_mul_i32 s{sT1}, s{sT1}, 80")
        a(f"v_bfe_u32 v{t}, v0, 2, 4")
        a(f"v_and_b32 v{t+1}, 3, v0")
        a(f"v_add_u32 v{t}, s{sT0}, v{t}")
        a(f"v_mul_u32_u24 v{t}, 640, v{t}")
        a(f"v_lshl_add_u32 v{t+1}, v{t+1}, 2, s{sT1}")
        a(f"v_add_lshl_u32 v231, v{t}, v{t+1}, 1")
        for i in range(5):
            a(f"global_load_dwordx2 {v2(self.xs(i))}, v231, {sp(pX)} offset:{32*i}", tag="ep")

    def skip_terms(self):
        a = self.a
        DA, DB, t, SPK = 100, 110, 130, self.SPK
        for i in range(5):
            a(f"ds_read_b64 {v2(DA+2*i)}, v{self.DO} offset:{32*i}", tag="dk")
            a(f"ds_read_b64 {v2(DB+2*i)}, v{self.DO} offset:{160+32*i}", tag="dk")
        a.wait(vm="ep", lgkm="dk")
        for i in range(5):
            x0 = self.xs(i)
            a(f"v_lshlrev_b32 v{t}, 16, v{x0}")
            a(f"v_and_b32 v{t+1}, 0xffff0000, v{x0}")
            a(f"v_lshlrev_b32 v{t+2}, 16, v{x0+1}")
            a(f"v_and_b32 v{t+3}, 0xffff0000, v{x0+1}")
            for b, dsk in enumerate((DA + 2 * i, DB + 2 * i)):
                a(f"v_lshlrev_b32 v{t+4}, 16, v{dsk}")
                a(f"v_and_b32 v{t+5}, 0xffff0000, v{dsk}")
                a(f"v_lshlrev_b32 v{t+6}, 16, v{dsk+1}")
                a(f"v_and_b32 v{t+7}, 0xffff0000, v{dsk+1}")
                a(f"v_pk_mul_f32 {v2(t+4)}, {v2(t)}, {v2(t+4)}")
                a(f"v_pk_mul_f32 {v2(t+6)}, {v2(t+2)}, {v2(t+6)}")
                a(f"v_cvt_pk_bf16_f32 v{SPK+4*i+2*b}, v{t+4}, v{t+5}")
                a(f"v_cvt_pk_bf16_f32 v{SPK+4*i+2*b+1}, v{t+6}, v{t+7}")

    def gate(self, T):
        a = self.a
        GX, GW, FG = self.GX, self.GW, self.FG
        a(f"v_mov_b32 v{T}, 0")
        a(f"v_mov_b32 v{T+1}, 0")
        a.wait(vm="gate", lgkm="gw")
        for k in range(10):
            a(f"v_dot2_f32_bf16 v{T+(k & 1)}, v{GX+k}, v{GW+k}, v{T+(k & 1)}")
        a(f"v_mov_b32 v{FG+1}, s{sTAG}")
        a(f"v_mov_b32 v{FG+3}, s{sTAG}")
        a(f"v_add_f32 v{T}, v{T}, v{T+1}")
        for k in (8, 4, 2, 1):
            a(f"v_add_f32_dpp v{T}, v{T}, v{T} row_ror:{k} row_mask:0xf bank_mask:0xf")
        a(f"v_mov_b32 v{T+1}, v{T}")
        a(f"v_permlane16_swap_b32 v{T}, v{T+1}")
        a(f"v_add_f32 v{T}, v{T}, v{T+1}")
        a(f"v_cvt_pk_bf16_f32 v{T}, v{T}, v{T}")
        a(f"v_lshlrev_b32 v{T}, 16, v{T}")
        a(f"v_mul_f32 v{T}, 0xbfb8aa3b, v{T}")
        a(f"v_exp_f32 v{T}, v{T}")
        a(f"v_add_f32 v{T}, 1.0, v{T}")
        a(f"v_rcp_f32 v{T}, v{T}")
        a(f"v_cvt_pk_bf16_f32 v{T}, v{T}, v{T}")
        a(f"v_lshlrev_b32 v{FG}, 16, v{T}")
        a(f"v_mov_b32 v{FG+2}, v{FG}")
        a(f"v_permlane32_swap_b32 v{FG}, v{FG+2}")

    def tab_entry(self, r, dst, idx, add):
        r(f"v_cmp_eq_u32 vcc, 0, v{idx}")
        r(f"v_add_u32 v{dst}, {add}, v{idx}")
        r(f"v_mul_u32_u24 v{dst}, 640, v{dst}")
        r(f"v_add_u32 v{dst}, v{self.VP}, v{dst}")
        r(f"v_cndmask_b32 v{dst}, v{dst}, v{self.VP}, vcc")

    def tab_rd(self, r, dst, va, off, tag):
        for n in range(5):
            r(f"ds_read_b64 {v2(dst+2*n)}, v{va} offset:{off+128*n}", tag=tag)

    def shadow(self):
        L1, L2, WQ, V, MC, T, VP, Q = self.L1, self.L2, self.WQ, self.V, self.MC, self.T4, self.VP, self.Q
        S = {}
        r = self.rec()
        r(f"s_lshl_b32 s{sT0}, s{sW}, 2")
        r(f"s_sub_u32 s{sT0}, s{sTC}, s{sT0}")
        r(f"s_sub_u32 s{sT0}, s{sT0}, 1")
        r(f"v_sub_u32 v{T}, s{sT0}, v{Q}")
        r(f"v_cmp_le_i32 {sp(sT2)}, 0, v{T}")
        r(f"v_max_i32 v{T}, 0, v{T}")
        r(f"v_and_b32 v{T+1}, 3, v{T}")
        r(f"v_lshrrev_b32 v{T}, 2, v{T}")
        self.tab_entry(r, 226, T + 1, 9)
        S[2] = r
        r = self.rec()
        self.tab_entry(r, 227, T, 12)
        self.tab_entry(r, 228, Q, 3)
        r(f"v_mov_b32 v{T}, s{sW}")
        S[3] = r
        r = self.rec()
        self.tab_entry(r, 229, T, 6)
        r(f"v_and_b32 v230, 1, v{Q}")
        r(f"v_mul_u32_u24 v230, {4*640}, v230")
        r(f"v_add_u32 v230, v{VP}, v230")
        S[4] = r
        r = self.rec()
        r(f"v_sub_u32 v{T}, 3, v{Q}")
        self.tab_entry(r, T + 2, T, 3)
        self.tab_rd(r, WQ, T + 2, 0, "t1")
        S[5] = r
        r = self.rec()
        self.tab_rd(r, L2, VP, 2 * 640, "t1")
        self.tab_rd(r, L1, VP, 1 * 640, "t1")
        S[6] = r
        r = self.rec()
        r(f"v_and_b32 v2, 15, v0")
        r(f"v_lshlrev_b32 v1, 3, v2")
        r(f"v_lshlrev_b32 v2, 4, v2")
        r(f"s_lshl_b32 s{sT1}, s{sW}, 7")
        r(f"s_add_u32 s{sT1}, s{sT1}, {PART1}")
        r(f"v_add_u32 v1, s{sT1}, v1")
        r(f"v_lshrrev_b32 v7, 1, v{Q}")
        r(f"v_lshl_add_u32 v4, v7, 2, v1")
        r(f"v_add_u32 v4, 384, v4")
        r(f"v_and_b32 v6, 1, v{Q}")
        r(f"v_mul_u32_u24 v3, 896, v6")
        r(f"v_add_u32 v3, v3, v4")
        S[18] = r
        r = self.rec()
        r(f"v_bfe_u32 v232, v0, 2, 2")
        r(f"v_bfe_u32 v233, v0, 4, 1")
        r(f"v_lshl_add_u32 v232, v233, 3, v232")
        r(f"v_bfe_u32 v233, v0, 1, 1")
        r(f"v_lshlrev_b32 v234, 2, v233")
        r(f"v_xor_b32 v232, v232, v234")
        r(f"v_lshlrev_b32 v232, 4, v232")
        r(f"v_lshl_add_u32 v232, v233, 8, v232")
        r(f"v_and_b32 v233, 1, v0")
        r(f"v_lshl_add_u32 v232, v233, 3, v232")
        r(f"v_bfe_u32 v233, v0, 5, 1")
        r(f"v_lshl_add_u32 v232, v233, 9, v232")
        r(f"v_add_u32 v{self.TP}, s{sBW}, v232")
        r(f"v_xor_b32 v{self.TP+1}, 64, v{self.TP}")
        r(f"v_and_b32 v232, 31, v0")
        r(f"v_lshlrev_b32 v232, 4, v232")
        r(f"v_lshl_add_u32 v{self.HS}, v233, 10, v232")
        S[8] = r
        r = self.rec()
        r(f"s_lshr_b32 s{sT0}, s{sW}, 1")
        r(f"s_lshl_b32 s{sT0}, s{sT0}, 8")
        r(f"s_and_b32 s{sT1}, s{sW}, 1")
        r(f"s_lshl_b32 s{sT1}, s{sT1}, 3")
        r(f"s_add_u32 s{sT0}, s{sT0}, s{sT1}")
        r(f"s_add_u32 s{sT0}, s{sT0}, {PART2}")
        r(f"v_lshl_add_u32 v15, v7, 2, v2")
        r(f"v_add_u32 v15, s{sT0}, v15")
        r(f"v_lshl_add_u32 v14, v6, 9, v15")
        r(f"v_add_u32 v16, {PART2}, v2")
        r(f"v_mul_u32_u24 v17, 1280, v{Q}")
        r(f"v_add_u32 v17, v17, v2")
        r(f"v_lshlrev_b32 v6, 6, v6")
        r(f"v_xor_b32 v6, v6, v2")
        r(f"v_lshl_add_u32 v5, v{Q}, 8, v6")
        r(f"v_add_u32 v5, s{sBW}, v5")
        r(f"v_lshl_add_u32 v{T}, v{Q}, 2, s{sW}")
        r(f"v_min_u32 v{T+1}, 4, v{T}")
        r(f"v_lshl_add_u32 v{T+2}, v{T+1}, 7, v{VP}")
        r(f"ds_read_b64 {v2(T+2)}, v{T+2} offset:{7*640}", tag="t1")
        r(f"v_lshl_add_u32 v6, v{T}, 8, v2")
        r(f"v_mul_u32_u24 v7, 896, v{T+1}")
        r(f"v_add_u32 v7, v7, v{VP}")
        r(f"v_add_u32 v7, {PART1 + 384 - TAB}, v7")
        S[19] = r
        return S

    def htouch(self, k):
        a = self.a
        return Op(lambda: (a("s_mov_b32 exec_hi, 0xff"),
                           a(f"buffer_load_dword a{248+k}, v239, {srd(SWS)}, s{(sHRE, sHIM)[k]} offen", tag="pf"),
                           a("s_mov_b64 exec, -1")), dma=True)

    def gemm1(self):
        a, cfg = self.a, self.cfg
        a.wait(vm="st0")
        a("s_barrier")
        self.stamp("st0")
        run(self.frag_reads(0))
        S = self.shadow()
        queue = list(self.dma_stage(2)) + list(self.dma_stage(3))

        nu = 0
        held = []
        for h in range(20):
            s, u = h >> 1, h & 1
            if u == 1:
                if s < 9:
                    assert all(o.tag != f"st{s+1}" for o in queue)
                    a.wait(vm=f"st{s+1}", lgkm=0)
                else:
                    a.wait(lgkm=0)
                a("s_barrier")
            else:
                a.wait(lgkm=0)
            if h in (2, 4, 8, 12, 16):
                self.stamp(f"gh{h}")
            streams = []
            if h < 19:
                streams.append((self.frag_reads(h + 1), 0, 1))
            if u == 1:
                if s + 4 <= 9:
                    queue += self.dma_stage(s + 4)
                    if s + 4 == cfg.touch:
                        queue.append(Op(lambda: (a("s_mov_b64 exec, 0x1f"),
                                                 a(f"global_load_dword a250, v240, {sp(pWS)}", tag="pf"),
                                                 a("s_mov_b64 exec, -1")), dma=True))
                    if s + 4 == cfg.htouch:
                        queue.append(Op(lambda: (a("v_and_b32 v239, 63, v0"), a("v_lshrrev_b32 v238, 3, v239"), a("v_and_b32 v239, 7, v239"),
                                                 a("v_lshlrev_b32 v239, 7, v239"), a("v_lshl_add_u32 v239, v238, 11, v239"))))
                        queue.append(self.htouch(0))
                        if cfg.ht2 < 0:
                            queue.append(self.htouch(1))
                    if s + 4 == cfg.pf_at:
                        queue.append(Op(lambda: (a("s_mov_b64 exec, 0x1ffffff"),
                                                 a(f"global_load_dword a255, v242, {sp(sM)}", tag="pf"),
                                                 a("s_mov_b64 exec, -1")), dma=True, tag="pfc"))
                else:
                    for _ in range(4):
                        if nu < cfg.n1:
                            (held if cfg.hold_c else queue).extend(self.c_dma(nu))
                        nu += 1
            if h == cfg.ht2 and cfg.htouch:
                queue.append(self.htouch(1))
            pace = 5 if cfg.hold_c else cfg.pace0 if h < cfg.pace0_h else cfg.pace if h < cfg.pace_h else cfg.pace_c
            now, k = [], 0
            while queue and k < pace:
                o = queue.pop(0)
                now.append(o)
                k += o.dma
            left = {o.tag for o in queue}
            assert not (h >= 17 and any(t and t.startswith("st") for t in left))
            if now:
                streams.append((now, cfg.dma_phase, min(19.0 / len(now), cfg.maxstep)))
            if h in S:
                ops = S[h]
                streams.append((ops, 0, 19.0 / len(ops)))
            F = 100 + 48 * (h & 1)
            mf = []
            for k in range(10):
                for m in range(2):
                    d = self.acc(m, k >> 1, k & 1)
                    mf.append(f"v_mfma_f32_16x16x32_bf16 {v4(d)}, {v4(F+4*m)}, {v4(F+8+4*k)}, {'0' if h == 0 else v4(d)}")
            self.weave(mf, streams)
        self.cq = self.c_stream(queue + held)
        self.stamp("gemm1")

    def swap_reduce(self, Z, va, o1, o2):
        a = self.a
        for n in range(5):
            a(f"v_permlane32_swap_b32 v{Z+2*n}, v{Z+2*n+1}")
        for n in (4, 0, 1, 2, 3):
            a(f"v_add_f32 v{Z+2*n}, v{Z+2*n}, v{Z+2*n+1}")
            if n == 0:
                a(f"v_mov_b32 v{Z+9}, v{Z+8}")
        a(f"v_permlane16_swap_b32 v{Z+8}, v{Z+9}")
        a(f"v_permlane16_swap_b32 v{Z}, v{Z+2}")
        a(f"v_permlane16_swap_b32 v{Z+4}, v{Z+6}")
        a(f"v_add_f32 v{Z+8}, v{Z+8}, v{Z+9}")
        a(f"v_add_f32 v{Z}, v{Z}, v{Z+2}")
        a(f"v_add_f32 v{Z+4}, v{Z+4}, v{Z+6}")
        a(f"ds_write_b32 v{va+1}, v{Z+8} offset:{o2}", tag="pw")
        a(f"ds_write_b32 v{va}, v{Z}", tag="pw")
        a(f"ds_write_b32 v{va}, v{Z+4} offset:{o1}", tag="pw")

    def scan(self):
        a, cfg = self.a, self.cfg
        L1, L2, WQ, V, MC, T, VP, Q, U, FG = self.L1, self.L2, self.WQ, self.V, self.MC, self.T4, self.VP, self.Q, self.U, self.FG
        E = 180
        Z = 100
        TA, TB = 110, 114
        PL = T + 2
        a.wait(lgkm="t1")
        a.bg(self.c_take(cfg.k1), cfg.p1)
        for n in range(5):
            ur, ui = self.acc(0, n, 0), self.acc(0, n, 1)
            er, ei = ur, ui
            for k in range(1, 4):
                X = TA if k & 1 else TB
                a(f"v_pk_fma_f32 {v2(X)}, {v2(er)}, {v2(L2+2*n)}, {v2(ur+2*k)} op_sel_hi:[1,0,1]")
                a(f"v_pk_fma_f32 {v2(X+2)}, {v2(ei)}, {v2(L2+2*n)}, {v2(ui+2*k)} op_sel_hi:[1,0,1]")
                a(f"v_pk_fma_f32 {v2(X)}, {v2(ei)}, {v2(L2+2*n)}, {v2(X)} op_sel:[0,1,0] op_sel_hi:[1,1,1] neg_lo:[1,0,0] neg_hi:[1,0,0]")
                a(f"v_pk_fma_f32 {v2(X+2)}, {v2(er)}, {v2(L2+2*n)}, {v2(X+2)} op_sel:[0,1,0] op_sel_hi:[1,1,1]")
                er, ei = X, X + 2
            a(f"v_fma_f32 v{E+2*n}, v{L1+2*n}, v{er}, v{er+1}")
            a(f"v_fma_f32 v{E+2*n+1}, v{L1+2*n}, v{ei}, v{ei+1}")
            a(f"v_fma_f32 v{E+2*n}, -v{L1+2*n+1}, v{ei}, v{E+2*n}")
            a(f"v_fma_f32 v{E+2*n+1}, v{L1+2*n+1}, v{er}, v{E+2*n+1}")
            cmul(a, Z + 2 * n, E + 2 * n, WQ + 2 * n)
        a.bg_flush()
        if cfg.ht2 == 20 and cfg.htouch:
            self.htouch(1)()
        self.swap_reduce(Z, 3, 1792, 3584)
        PG = 114
        CF, L8 = L2, WQ
        a(f"v_cmp_gt_u32 vcc, 5, v{T}")
        a(f"v_mov_b32 v{PG+1}, s{sTAG}")
        a(f"v_mov_b32 v{PG+3}, s{sTAG}")
        a(f"s_mov_b64 {sp(sM)}, {sp(sT2)}")
        a.wait(lgkm=0)
        a("s_barrier")
        for k in range(4):
            a(f"ds_read_b64 {v2(120+2*k)}, v7 offset:{128*k}", tag="pr")
        r = self.rec()
        self.tab_rd(r, CF, VP, 3 * 640, "t2")
        self.tab_rd(r, L8, VP, 4 * 640, "t2")
        run(r)
        a(f"s_and_saveexec_b64 {sp(sT2)}, vcc")
        a.wait(lgkm="pr")
        cfma(a, 128, 120, PL, 122)
        cfma(a, 130, 128, PL, 124)
        cfma(a, 128, 130, PL, 126)
        a(f"v_mov_b32 v{PG}, v128")
        a(f"v_mov_b32 v{PG+2}, v129")
        a(f"buffer_store_dwordx4 {v4(PG)}, v6, {srd(SWS)}, s{sPUB} offen sc1", tag="pub")
        a(f"s_mov_b64 exec, -1")
        self.stamp("pub")

        if cfg.ht2 == 21 and cfg.htouch:
            self.htouch(1)()
        if cfg.cpf >= 2:
            run(self.code_prefetch(132, 2))
        run(self.c_take(cfg.k2a))
        a.wait(lgkm="t2")
        a.bg(self.c_take(cfg.k2), cfg.p2)
        for n in range(5):
            for j in range(8):
                ur, ui = self.acc(0, n, 0) + (j & ~1), self.acc(0, n, 1) + (j & ~1)
                o = j & 1
                d = U + 16 * n + 2 * j
                a(f"v_pk_mul_f32 {v2(d)}, {v2(CF+2*n)}, {v2(ur)} op_sel:[0,{o}] op_sel_hi:[1,{o}]")
                a(f"v_pk_fma_f32 {v2(d)}, {v2(CF+2*n)}, {v2(ui)}, {v2(d)} op_sel:[1,{o},0] op_sel_hi:[0,{o},1] neg_lo:[1,0,0]")
        self.stamp("coef")
        A_, P_, C_, MU, L8Q, L32, Y0, Y1 = 20, 30, 40, 50, 60, 70, 80, 90
        SL, G = 180, 40
        r = self.rec()
        self.tab_rd(r, MU, 230, 0, "t3")
        self.tab_rd(r, L32, VP, 7 * 640, "t3")
        for n in range(5):
            r(f"ds_read_b64 {v2(Y0+2*n)}, v1 offset:{896*n}", tag="t3")
        for n in range(5):
            r(f"ds_read_b64 {v2(Y1+2*n)}, v1 offset:{896*n+128}", tag="t3")
        self.tab_rd(r, L8Q, 228, 0, "t3")
        run(r)
        for n in range(5):
            a(f"v_mov_b64 {v2(A_+2*n)}, {v2(E+2*n)}")
        for n in range(5):
            a(f"v_permlane16_swap_b32 v{A_+2*n}, v{E+2*n}")
            a(f"v_permlane16_swap_b32 v{A_+2*n+1}, v{E+2*n+1}")
        for n in range(5):
            cfma(a, P_ + 2 * n, A_ + 2 * n, L8 + 2 * n, E + 2 * n)
        for n in range(5):
            a(f"ds_read_b64 {v2(L8+2*n)}, v1 offset:{896*n+256}", tag="t4")
        for n in range(5):
            a(f"v_mov_b64 {v2(C_+2*n)}, {v2(P_+2*n)}")
        for n in range(5):
            a(f"v_permlane32_swap_b32 v{C_+2*n}, v{P_+2*n}")
            a(f"v_permlane32_swap_b32 v{C_+2*n+1}, v{P_+2*n+1}")
        per = a.bg_pause()
        a("s_mov_b32 exec_hi, 0")
        for n in range(5):
            a(f"v_mov_b64 {v2(C_+2*n)}, 0")
        a("s_mov_b32 exec_lo, 0xffff")
        a("s_mov_b32 exec_hi, 0xffff")
        for n in range(5):
            a(f"v_mov_b64 {v2(A_+2*n)}, 0")
        a("s_mov_b64 exec, -1")
        a.bg_period = per
        a.wait(lgkm="t3")
        for n in range(5):
            cfma(a, P_ + 2 * n, C_ + 2 * n, MU + 2 * n, A_ + 2 * n)
            cfma(a, Y1 + 2 * n, Y0 + 2 * n, L32 + 2 * n, Y1 + 2 * n)
        for k in range(0, 20, 2):
            a(f"v_mov_b64 {v2(G+k)}, 0")
        a.bg_flush()
        a(f"s_mov_b32 s{sSPIN}, {cfg.spin}")

        def g_loads(tag):
            for n in range(5):
                a(f"buffer_load_dwordx4 {v4(G+4*n)}, v17, {srd(SWS)}, s{sGAT} offen offset:{256*n} sc1", tag=tag, counted=False)

        def g_check():
            a(f"v_min3_u32 v{T}, v{G+1}, v{G+3}, v{G+5}")
            a(f"v_max3_u32 v{T+1}, v{G+1}, v{G+3}, v{G+5}")
            for k in (7, 11, 15):
                a(f"v_min3_u32 v{T}, v{T}, v{G+k}, v{G+k+2}")
                a(f"v_max3_u32 v{T+1}, v{T+1}, v{G+k}, v{G+k+2}")
            a(f"v_min_u32 v{T}, v{T}, v{G+19}")
            a(f"v_max_u32 v{T+1}, v{T+1}, v{G+19}")
            a(f"v_cmp_ne_u32 vcc, s{sTAG}, v{T}")
            a(f"v_cmp_ne_u32 {sp(sT2)}, s{sTAG}, v{T+1}")
            a(f"s_or_b64 vcc, vcc, {sp(sT2)}")
        self.stamp("w1done")
        a(f"s_mov_b64 exec, {sp(sM)}")
        a("s_cbranch_execz L_g0")
        g_loads("g1")
        a("L_g0:")
        a("s_mov_b64 exec, -1")
        a.bg(self.c_take(999), cfg.p3)
        r = self.rec()
        self.tab_rd(r, A_, 226, 0, "t5")
        self.tab_rd(r, Y0, 227, 0, "t5")
        run(r)
        a.wait(lgkm="t4")
        for n in range(5):
            cfma(a, L8 + 2 * n, Y1 + 2 * n, L32 + 2 * n, L8 + 2 * n)
        r = self.rec()
        self.tab_rd(r, Y1, 229, 0, "t6")
        run(r)
        for n in range(5):
            cfma(a, P_ + 2 * n, L8 + 2 * n, L8Q + 2 * n, P_ + 2 * n)
            cmul(a, SL + 2 * n, P_ + 2 * n, CF + 2 * n)
        a.wait(lgkm="t5")
        for n in range(5):
            cmul(a, V + 2 * n, A_ + 2 * n, Y0 + 2 * n)
        a.wait(lgkm="t6")
        for n in range(5):
            cmul(a, A_ + 2 * n, L8Q + 2 * n, Y1 + 2 * n)
            cmul(a, L8 + 2 * n, A_ + 2 * n, CF + 2 * n)
        MC = L8
        a.bg_flush()
        if cfg.fast:
            a(f"v_and_b32 v94, 7, v0")
            a(f"v_lshlrev_b32 v94, 7, v94")
            a(f"s_lshl_b32 s{sT0}, s{sTC}, 1")
            a(f"s_add_u32 s{sT0}, s{sT0}, s{sBR}")
            a(f"s_lshl_b32 s{sT0}, s{sT0}, 10")
            a(f"s_add_u32 s{sT0}, s{sT0}, {WS_XCC}")
            a(f"buffer_load_dwordx2 {v2(96)}, v94, {srd(SWS)}, s{sT0} offen sc1", tag="xc")
        self.gate_loads(96)
        self.skip_loads(96)
        for u in range(cfg.n1 - cfg.ndl):
            run(self.c_drain(u))
        a.wait(vm="g1")
        a(f"s_mov_b64 exec, {sp(sM)}")
        a("s_cbranch_execz L_got")
        g_check()
        a("s_cbranch_vccz L_got")
        a("L_poll1:")
        g_loads("g1b")
        a(f"s_sub_u32 s{sSPIN}, s{sSPIN}, 1")
        a("s_waitcnt vmcnt(0)", slow=True)
        g_check()
        a(f"s_cmp_eq_u32 s{sSPIN}, 0")
        a("s_cbranch_scc1 L_got")
        a("s_cbranch_vccnz L_poll1")
        a("L_got:")
        a("s_mov_b64 exec, -1")
        self.stamp("got")
        Z2 = 60
        for n in range(5):
            a(f"v_pk_mul_f32 {v2(Z2+2*n)}, {v2(V+2*n)}, {v2(G+4*n)} op_sel_hi:[1,0]")
            a(f"v_pk_fma_f32 {v2(Z2+2*n)}, {v2(V+2*n)}, {v2(G+4*n+2)}, {v2(Z2+2*n)} op_sel:[1,0,0] op_sel_hi:[0,0,1] neg_lo:[1,0,0]")
        self.swap_reduce(Z2, 14, 1024, 2048)
        for u in range(cfg.n1 - cfg.ndl, cfg.n1):
            run(self.c_drain(u))
        a(f"v_mov_b32 v{T}, 0")
        if cfg.fast:
            a.wait(vm="xc")
            a(f"v_cmp_eq_u32 vcc, s{sLATE}, v96")
            a(f"v_cmp_eq_u32 {sp(sT2)}, s{sTAG}, v97")
            a(f"s_and_b64 vcc, vcc, {sp(sT2)}")
            a(f"s_cmp_eq_u64 vcc, exec")
            a(f"s_cselect_b32 s{sLATE}, {0 if cfg.fast == 2 else 1}, 0")
        a(f"s_cmp_eq_u32 s{sLATE}, 0")
        a.wait(lgkm=0)
        a("s_barrier")
        for n in range(5):
            a(f"ds_read_b128 {v4(20+8*n)}, v16 offset:{512*n}", tag=f"cr{n}")
            a(f"ds_read_b128 {v4(24+8*n)}, v16 offset:{512*n+256}", tag=f"cr{n}")
        if cfg.split or cfg.fast:
            a("s_cbranch_scc1 L_late")
        pol = ";POL" if cfg.fast else "sc1"
        k4, k5 = [], self.c_stream(sum((list(self.c_dma(u)) for u in range(cfg.n1, 25)), []))

        def stores(n):
            w0 = 20 + 8 * n
            for part, so in enumerate((sHRE, sHIM)):
                a.wait(lgkm=f"tp{n}{part}")
                a(f"buffer_store_dwordx4 {v4(w0+4*part)}, v{self.HS}, {srd(SWS)}, s{so} offen {pol}", tag="hst")
            if n < 4:
                a(f"s_add_u32 s{sHRE}, s{sHRE}, s{(sD0, sD1)[n & 1]}")
                a(f"s_add_u32 s{sHIM}, s{sHIM}, s{(sD0, sD1)[n & 1]}")

        def turn(n, part):
            d = 20 + 8 * n + 4 * part
            off = SLOT + ((2 * n + part) % 8) * 1024
            a(f"ds_write_b128 v5, {v4(d)} offset:{off}", tag="tw")
            for rho in range(2):
                a(f"ds_read_b64_tr_b16 {v2(d+2*rho)}, v{self.TP+rho} offset:{off}", tag=f"tp{n}{part}")

        def pass2(late):
            a.bg(list(k4), cfg.p4)
            for n in range(5):
                w0 = 20 + 8 * n
                a.wait(lgkm=f"cr{n}")
                a(f"v_pk_add_f32 {v2(w0)}, {v2(w0)}, {v2(w0+2)}")
                a(f"v_pk_add_f32 {v2(w0+4)}, {v2(w0+4)}, {v2(w0+6)}")
                a(f"v_pk_add_f32 {v2(w0)}, {v2(w0)}, {v2(w0+4)}")
                cfma(a, SL + 2 * n, w0, MC + 2 * n, SL + 2 * n)
                prev = SL + 2 * n
                for j in range(8):
                    d = U + 16 * n + 2 * j
                    cfma(a, d, prev, L1 + 2 * n, d)
                    prev = d
                    if j == cfg.st_j and n > 0 and not late:
                        stores(n - 1)
                for k in range(4):
                    d = U + 16 * n + 4 * k
                    a(f"v_cvt_pk_bf16_f32 v{w0+k}, v{d}, v{d+2}")
                turn(n, 0)
                for k in range(4):
                    d = U + 16 * n + 4 * k
                    a(f"v_cvt_pk_bf16_f32 v{w0+4+k}, -v{d+1}, -v{d+3}")
                turn(n, 1)
            if not late:
                stores(4)
            a.bg_flush()
            def stamp(name):
                if not late:
                    self.stamp(name)
                elif cfg.prof and name in self.stamp_names:
                    a("s_memtime %s" % sp(STAMP_REGS[self.stamp_names.index(name)]))
            stamp("hst")
            if late or not cfg.c_after:
                a.bg(list(k5), cfg.p5)
            self.gate(90)
            self.gemm2_setup()
            self.skip_terms()
            a.bg_flush()
            stamp("pre")
            if late:
                if cfg.split == 2:
                    a("s_barrier")
                stamp("bar")
                for n in range(5):
                    stores(n)
            stamp("lst")
            a.wait(vm="hst")
            stamp("ack")
            a(f"s_mov_b64 exec, {0xff if cfg.full else 1}")
            a(f"buffer_store_dwordx4 {v4(FG)}, v{self.VH}, {srd(SWS)}, s{sFLG} offen {pol}", tag="flag")
            a("s_mov_b64 exec, -1")
            if cfg.split == 2 and not late:
                a("s_barrier")
                stamp("bar")
            if cfg.c_after and not late:
                run(k5)

        first = len(a.ins)
        pass2(False)
        if cfg.fast:
            self.tail = ["L_late:"] + [x.text.replace(";POL", "sc1") for x in a.ins[first:]] + ["s_branch L_join"]
            a("L_join:")
        elif cfg.split:
            main = a.ins[first:]
            del a.ins[first:]
            pass2(True)
            self.tail = ["L_late:"] + [x.text for x in a.ins[first:]] + ["s_branch L_join"]
            a.ins[first:] = main
            a("L_join:")
        self.stamp("flag")

    ACCA, ACCB = 20, 100
    HF = 180
    VT = 212
    VH = 216
    GG = 218
    XO, DO, OO, EW, ER, EW2, PO, BP, PO2 = 1, 2, 3, 4, 6, 7, 8, 9, 217
    SPK = 222
    PV = 242

    def gemm2_setup(self):
        a = self.a
        VT, VH = self.VT, self.VH
        T0, T1, T2, T3 = 14, 15, 16, 17
        a(f"v_and_b32 v{VH}, 63, v0")
        a(f"v_lshlrev_b32 v{VH}, 4, v{VH}")
        a(f"v_bfe_u32 v{T0}, v0, 2, 4")
        a(f"v_and_b32 v{T1}, 3, v0")
        a(f"v_lshlrev_b32 v{self.PO2}, 7, v{T0}")
        a(f"v_bfe_u32 v{T2}, v0, 4, 2")
        a(f"v_bfe_u32 v{T3}, v0, 3, 1")
        a(f"v_lshl_add_u32 v{T2}, v{T2}, 2, v{T3}")
        a(f"s_xor_b32 s{sT0}, s{sBR}, 1")
        a(f"s_lshl_b32 s{sT0}, s{sT0}, 8")
        a(f"v_lshl_add_u32 v{self.PO}, v{T2}, 7, s{sT0}")
        a(f"v_lshlrev_b32 v{self.DO}, 3, v{T1}")
        a(f"v_add_u32 v{self.DO}, {LDK}, v{self.DO}")
        a(f"v_lshlrev_b32 v{self.OO}, 1, v231")
        a(f"v_bfe_u32 v{T2}, v{T0}, 1, 2")
        a(f"v_xor_b32 v{T2}, v{T2}, v{T1}")
        a(f"v_lshlrev_b32 v{T2}, 4, v{T2}")
        a(f"v_mul_u32_u24 v{T3}, 320, v{T0}")
        a(f"s_mul_i32 s{sT1}, s{sW}, {SLOT}")
        a(f"s_add_u32 s{sT1}, s{sT1}, 4096")
        a(f"v_add3_u32 v{self.ER}, v{T2}, v{T3}, s{sT1}")
        a(f"s_and_b32 s{sT1}, s{sW}, 1")
        a(f"s_lshl_b32 s{sT1}, s{sT1}, 7")
        a(f"v_lshrrev_b32 v{T2}, 1, v{T0}")
        a(f"v_lshl_add_u32 v{self.BP}, v{T2}, 4, s{sT1}")
        a(f"v_and_b32 v{T0}, 15, v0")
        a(f"v_bfe_u32 v{T1}, v0, 4, 2")
        a(f"v_bfe_u32 v{T2}, v{T0}, 1, 2")
        a(f"v_xor_b32 v{T2}, v{T2}, v{T1}")
        a(f"v_lshlrev_b32 v{T2}, 4, v{T2}")
        a(f"v_mul_u32_u24 v{T3}, 320, v{T0}")
        a(f"s_add_u32 s{sT1}, s{sBW}, 4096")
        a(f"v_add3_u32 v{self.EW}, v{T2}, v{T3}, s{sT1}")
        a(f"v_add_u32 v{self.EW2}, {2*SLOT}, v{self.EW}")

    def h_loads(self, s):
        r = self.rec()
        base = sHA if s < 10 else sHB
        f, F = self.h_buf(s)
        if s in (0, 10):
            r(f"s_add_u32 s{sK}, s{base}, s{sROT}")
            r(f"s_add_u32 s{sEND}, s{base}, 40960")
        for b in range(4):
            r(f"buffer_load_dwordx4 {v4(F+4*b, f)}, v{self.VH}, {srd(SWS)}, s{sK} offen offset:{1024*b} {self.cfg.hpol}", tag=f"h{s}")
        if s not in (9, 19):
            r(f"s_add_u32 s{sK}, s{sK}, 4096")
            if s & 1 and self.cfg.rot:
                r.group(f"s_cmp_eq_u32 s{sK}, s{sEND}", f"s_cselect_b32 s{sK}, s{base}, s{sK}")
        return r

    def h_buf(self, s):
        return (("v", self.HF), ("v", self.HF + 16), ("a", 200), ("a", 216), ("a", 232))[s % 5]

    def part_writes(self, base):
        r = self.rec()
        for nt in range(5):
            for mt in range(4):
                r(f"ds_write_b128 v{self.EW2 if mt >> 1 else self.EW}, {v4(base + 16*nt + 4*mt)} offset:{(mt & 1)*SLOT + 64*nt}", tag="ew")
        return r

    def part_reads(self, base, tag):
        r = self.rec()
        for i in range(5):
            for wp in range(4):
                r(f"ds_read_b128 {v4(base+16*i+4*wp)}, v{self.ER} offset:{wp*PIECE + 64*i}", tag=f"{tag}{i}")
        return r

    def gemm2(self):
        a, cfg = self.a, self.cfg
        GG, PV, SPK, T = self.GG, self.PV, self.SPK, self.T4
        A, B = self.ACCA, self.ACCB
        if cfg.cpf >= 3:
            run(self.code_prefetch(140, 3))
        a(f"s_mov_b32 s{sSPIN}, {cfg.spin}")

        def p_load(tag, po=self.PO, counted=True):
            a(f"buffer_load_dwordx4 {v4(PV)}, v{po}, {srd(SWS)}, s{sPOL} offen sc1", tag=tag, counted=counted)

        def p_check():
            a(f"v_cmp_ne_u32 vcc, s{sTAG}, v{PV+1}")
            a(f"v_cmp_ne_u32 {sp(sT2)}, s{sTAG}, v{PV+3}")
            a(f"s_or_b64 vcc, vcc, {sp(sT2)}")
        self.stamp("w3done")
        if cfg.pwait:
            a.wait(vm="c24")
        po1 = self.PO if cfg.split else self.PO2
        p_load("g2", po1)
        a.wait(vm=0)
        p_check()
        a("s_cbranch_vccz L_got2")
        a("L_poll2:")
        if cfg.nap:
            a(f"s_sleep {cfg.nap}")
        p_load("g2b", po1)
        a(f"s_sub_u32 s{sSPIN}, s{sSPIN}, 1")
        a.wait(vm=0)
        p_check()
        a(f"s_cmp_eq_u32 s{sSPIN}, 0")
        a("s_cbranch_scc1 L_got2")
        a("s_cbranch_vccnz L_poll2")
        a("L_got2:")
        self.stamp("got2")
        for s in range(4):
            run(self.h_loads(s))
        a(f"s_mul_i32 s{sT0}, s{sXS}, 5120")
        a(f"s_add_u32 s{sT0}, s{sT0}, {WS_XCH}")
        a(f"s_mul_i32 s{sT1}, s{sXR}, 5120")
        a(f"s_add_u32 s{sT1}, s{sT1}, {WS_XCH}")
        a(f"s_lshl_b32 s{sXS}, s{sXS}, 7")
        a(f"s_add_u32 s{sXS}, s{sXS}, {WS_XF}")
        a(f"s_lshl_b32 s{sXR}, s{sXR}, 7")
        a(f"s_add_u32 s{sXR}, s{sXR}, {WS_XF}")
        a(f"s_mov_b32 s{sPUB}, s{sT0}")
        a(f"s_mov_b32 s{sGAT}, s{sT1}")
        a(f"s_add_u32 s{sHRE}, s{sT0}, 4096")
        a(f"s_add_u32 s{sHIM}, s{sT1}, 4096")
        a(f"s_mov_b32 s{sSPIN}, {cfg.spin}")
        a.wait(vm="h0", lgkm=0)
        self.stamp("h0")
        rb = self.rec()
        rb(f"ds_bpermute_b32 v{T}, v{self.BP}, v{PV}", tag="bp")
        rb(f"ds_bpermute_b32 v{T+1}, v{self.BP}, v{PV+2}", tag="bp")
        r0 = self.rec()
        r0.wait(lgkm="bp")
        r0(f"v_and_b32 v{T+2}, 4, v0")
        r0(f"v_cmp_ne_u32 vcc, 0, v{T+2}")
        r0(f"v_cndmask_b32 v{GG}, v{T}, v{T+1}, vcc", strict=True)
        r0(f"v_sub_f32 v{GG+1}, 1.0, v{GG}")
        r0(f"v_cvt_pk_bf16_f32 v{GG+1}, v{GG+1}, v{GG+1}")
        r0(f"v_lshlrev_b32 v{GG+1}, 16, v{GG+1}")
        r0.group(f"s_cmp_eq_u32 s{sBR}, 1", "s_cselect_b64 vcc, -1, 0")
        r0(f"v_cndmask_b32 v{GG+2}, v{GG}, v{GG+1}, vcc", strict=True)
        r0(f"v_cndmask_b32 v{GG+3}, v{GG+1}, v{GG}, vcc")
        r0(f"v_mov_b32 v{T+2}, s{sTAG}")
        r0(f"v_mov_b32 v{T+3}, 0")
        rs = self.rec()
        for i in range(5):
            b = A + 16 * i
            if cfg.pks:
                for e in (0, 2):
                    rs(f"v_pk_add_f32 {v2(b+e)}, {v2(b+e)}, {v2(b+4+e)}")
                    rs(f"v_pk_add_f32 {v2(b+8+e)}, {v2(b+8+e)}, {v2(b+12+e)}")
                for e in (0, 2):
                    rs(f"v_pk_add_f32 {v2(b+e)}, {v2(b+e)}, {v2(b+8+e)}")
            else:
                for e in range(4):
                    rs(f"v_add_f32 v{b+e}, v{b+e}, v{b+4+e}")
                    rs(f"v_add_f32 v{b+8+e}, v{b+8+e}, v{b+12+e}")
                for e in range(4):
                    rs(f"v_add_f32 v{b+e}, v{b+e}, v{b+8+e}")
            so, off = (sPUB, 1024 * i) if i < 4 else (sHRE, 0)
            rs(f"buffer_store_dwordx4 {v4(b)}, v{self.VH}, {srd(SWS)}, s{so} offen offset:{off} sc1", tag="xs")
        rk = self.rec()
        for i in range(5):
            sk, t = A + 16 * i + 4, A + 16 * i + 8
            for b in range(2):
                s0 = SPK + 4 * i + 2 * b
                rk(f"v_lshlrev_b32 v{t}, 16, v{s0}")
                rk(f"v_and_b32 v{t+1}, 0xffff0000, v{s0}")
                rk(f"v_lshlrev_b32 v{t+2}, 16, v{s0+1}")
                rk(f"v_and_b32 v{t+3}, 0xffff0000, v{s0+1}")
                for e in range(4):
                    rk(f"v_mul_f32 v{sk+e}, v{GG}, v{t+e}" if b == 0 else f"v_fmac_f32 v{sk+e}, v{GG+1}, v{t+e}")
        wa = self.part_writes(A)
        wb = self.part_writes(B)
        b1 = cfg.b1

        def mfmas(s, nt):
            kk = s % 10
            base = A if s < 10 else B
            f, F = self.h_buf(s)
            cr = 8 * (5 * (kk >> 1) + nt) + 4 * (kk & 1)
            return [f"v_mfma_f32_16x16x32_bf16 {v4(base+16*nt+4*mt)}, {v4(cr, 'a')}, {v4(F+4*mt, f)}, "
                    f"{'0' if kk == 0 else v4(base+16*nt+4*mt)}" for mt in range(4)]

        def xflag():
            a.wait(vm="xs")
            a(f"s_mov_b64 exec, {0xff if cfg.full else 1}")
            a(f"buffer_store_dwordx4 {v4(self.FG)}, v{self.VH}, {srd(SWS)}, s{sXS} offen sc1", tag="xf")
            a("s_mov_b64 exec, -1")

        for s in (0, 1, 2, 3, 4, 5, 6, 7, 10, 11, 12, 13, 14, 15, 16, 17):
            streams = []
            if s == b1:
                a.wait(vm=f"h{s}", lgkm=0)
                a("s_barrier")
            elif s == b1 + 1 or s == 3:
                a.wait(vm=f"h{s}", lgkm=0)
            else:
                a.wait(vm=f"h{s}")
            if s == b1 + 3:
                a("s_barrier")
            if s == 10:
                self.stamp("passA")
            elif s > 0:
                self.stamp(f"s{s}")
            if s == cfg.tb_at:
                rt = self.rec()
                rt(f"s_and_b32 s{sT0}, s{sCG}, 7")
                rt(f"s_mul_i32 s{sT0}, s{sT0}, 5120")
                rt(f"s_add_u32 s{sT0}, s{sT0}, s{sHB}")
                rt(f"v_lshlrev_b32 v{self.PO}, 3, v{self.VH}")
                rt.append(Op(lambda: (a("s_mov_b32 exec_hi, 0xff"),
                                      a(f"buffer_load_dword a247, v{self.PO}, {srd(SWS)}, s{sT0} offen {cfg.hpol}", tag="pf"),
                                      a("s_mov_b64 exec, -1"))))
                streams.append((rt, 9, 2))
            if s == cfg.p2_at and cfg.split:
                p_load("g3", self.PO2)
            if s == 6 and cfg.split:
                a.wait(vm="g3")
                p_check()
                a("s_cbranch_vccz L_got4")
                a("L_poll4:")
                p_load("g3b", self.PO2, False)
                a(f"s_sub_u32 s{sSPIN}, s{sSPIN}, 1")
                a("s_waitcnt vmcnt(0)", slow=True)
                p_check()
                a(f"s_cmp_eq_u32 s{sSPIN}, 0")
                a("s_cbranch_scc1 L_got4")
                a("s_cbranch_vccnz L_poll4")
                a("L_got4:")
                a(f"s_mov_b32 s{sSPIN}, {cfg.spin}")
            if s == cfg.xf_at:
                xflag()
            if s % 10 != 7:
                if s < 3:
                    if s == 0:
                        drains = self.rec()
                        for u in range(cfg.n1, 25):
                            drains += self.c_drain(u)[1:]
                        assert 2 * (cfg.n1 // 5) >= 3
                    k = -(-len(drains) // (3 - s))
                    now, drains = drains[:k], drains[k:]
                    streams.append((now, 2, 17.0 / len(now)))
                if s + 4 < 20:
                    streams.append((self.h_loads(s + 4), cfg.hd0, cfg.hds))
                if s == 6:
                    streams.append((rb, 10, 1))
                if 10 <= s < b1 or (s == 10 and wa):
                    streams.append((wa, 0, 3))
                    wa = []
                if s == b1:
                    assert not wa
                    streams.append((self.part_reads(A, "ra"), 0, 1))
                if s in (b1 + 1, b1 + 2):
                    half = len(rs) * 3 // 5 if s == b1 + 1 else len(rs)
                    now, rs = rs[:half], rs[half:]
                    streams.append((now, 0, 19.0 / len(now)))
                if b1 + 3 <= s and cfg.rk_in:
                    now, rk = rk[:cfg.rk_in], rk[cfg.rk_in:]
                    if now:
                        streams.append((now, 8, 12.0 / len(now)))
                self.weave(sum((mfmas(s, nt) for nt in range(5)), []), streams)
                continue
            order = [(0, 0), (1, 0), (2, 0), (0, 1), (1, 1), (2, 1), (0, 2), (1, 2), (2, 2),
                     (3, 0), (3, 1), (3, 2), (4, 0), (4, 1), (4, 2)]
            mf = sum((mfmas(s + d, nt) for nt, d in order), [])
            pins = {11: lambda s=s: a.wait(vm=f"h{s+1}"), 23: lambda s=s: a.wait(vm=f"h{s+2}")}
            w = wa if s == 7 else wb
            nin = cfg.nwin
            streams.append((w[:12], 31, cfg.wstep))
            streams.append((w[12:nin], max(51, 31 + 12 * cfg.wstep), 2))
            if s == 7:
                wa = w[nin:]
                streams.append((self.h_loads(11), cfg.hd0, cfg.hds))
                h12, h13 = self.h_loads(12), self.h_loads(13)
                for g in range(4):
                    pins[51 + g] = h12[g]
                    pins[55 + g] = (lambda g=g: (h12[4](), h13[0]())) if g == 0 else h13[g]
                last = h13[4:]
                streams.append((r0, 19, 1))
                pins[59] = lambda: (run(last), run(wa if b1 == 10 else []))
            else:
                wb = w[nin:]
                r3 = self.rec()
                r3(f"buffer_load_dword v{PV}, v{T+3}, {srd(SWS)}, s{sXR} offen offset:4 sc1", tag="xp")
                streams.append((r3, cfg.xp_gap, 1))
                if cfg.rk_in:
                    now, rk = rk[:cfg.rk_in], rk[cfg.rk_in:]
                    if now:
                        streams.append((now, 18, 12.0 / len(now)))
            if s == 7 and cfg.prof:
                for g in (9, 11, 23, 30, 39, 41, 50, 58):
                    old = pins.get(g, lambda: None)
                    pins[g] = lambda g=g, old=old: (old(), self.stamp(f"s{700+g}"))
            self.weave(mf, streams, pins)
            if s == 7 and b1 == 10:
                wa = []
        assert not rs
        self.stamp("gemm2")

        def recv():
            for i in range(5):
                so, off = (sGAT, 1024 * i) if i < 4 else (sHIM, 0)
                a(f"buffer_load_dwordx4 {v4(A+16*i)}, v{self.VH}, {srd(SWS)}, s{so} offen offset:{off} sc1", tag=f"xr{i}")
        per = -(-len(rk) // max(len(wb), 1))
        for w in wb:
            w()
            now, rk = rk[:per], rk[per:]
            run(now)
        run(rk)
        a.wait(vm="xp")
        a(f"v_cmp_ne_u32 vcc, s{sTAG}, v{PV}")
        a("s_cbranch_vccz L_got3")
        a("L_poll3:")
        a(f"buffer_load_dword v{PV}, v{T+3}, {srd(SWS)}, s{sXR} offen offset:4 sc1", tag="xpb")
        a(f"s_sub_u32 s{sSPIN}, s{sSPIN}, 1")
        a.wait(vm=0)
        a(f"v_cmp_ne_u32 vcc, s{sTAG}, v{PV}")
        a(f"s_cmp_eq_u32 s{sSPIN}, 0")
        a("s_cbranch_scc1 L_got3")
        a("s_cbranch_vccnz L_poll3")
        a("L_got3:")
        recv()
        self.stamp("got3")
        a.wait(lgkm=0)
        a("s_barrier")
        run(self.part_reads(B, "rb"))
        for i in range(5):
            b, rv, sk = B + 16 * i, A + 16 * i, A + 16 * i + 4
            a.wait(lgkm=f"rb{i}")
            for hf in range(2):
                a(f"v_pk_add_f32 {v2(b+2*hf)}, {v2(b+2*hf)}, {v2(b+4+2*hf)}")
                a(f"v_pk_add_f32 {v2(b+8+2*hf)}, {v2(b+8+2*hf)}, {v2(b+12+2*hf)}")
            for hf in range(2):
                a(f"v_pk_add_f32 {v2(b+2*hf)}, {v2(b+2*hf)}, {v2(b+8+2*hf)}")
            for hf in range(2):
                a(f"v_pk_fma_f32 {v2(sk+2*hf)}, {v2(b+2*hf)}, {v2(GG+2)}, {v2(sk+2*hf)} op_sel_hi:[1,0,1]")
        for i in range(5):
            rv, sk = A + 16 * i, A + 16 * i + 4
            a.wait(vm=f"xr{i}")
            for hf in range(2):
                a(f"v_pk_fma_f32 {v2(sk+2*hf)}, {v2(rv+2*hf)}, {v2(GG+2)}, {v2(sk+2*hf)} op_sel:[0,1,0] op_sel_hi:[1,1,1]")
            a(f"buffer_store_dwordx4 {v4(sk)}, v{self.OO}, {srd(SOUT)}, 0 offen offset:{64*i} {cfg.opol}", tag="out")
        self.stamp("outst")
        a(f"s_xor_b32 s{sT0}, s{sTC}, 15")
        a(f"s_or_b32 s{sT0}, s{sT0}, s{sCG}")
        a(f"s_or_b32 s{sT0}, s{sT0}, s{sW}")
        a("s_cbranch_scc1 L_noep")
        a("s_mov_b64 exec, 1")
        a(f"buffer_store_dword v{T+2}, v{T+3}, {srd(SWS)}, 0 offen offset:{WS_EPOCH}", counted=False)
        a("s_mov_b64 exec, -1")
        a("L_noep:")

    def finish(self):
        a = self.a
        if self.cfg.prof:
            a.wait(vm=0)
            self.stamp("end")
            self.stamp("rt1")
            a("s_waitcnt lgkmcnt(0)")
            a(f"s_lshl_b32 s{sT0}, s2, 2")
            a(f"s_add_u32 s{sT0}, s{sT0}, s{sW}")
            a(f"s_lshl_b32 s{sT0}, s{sT0}, 7")
            a(f"s_add_u32 s{sT0}, s{sT0}, {WS_PROF}")
            a("v_mov_b32 v6, 0")
            a("s_mov_b64 exec, 1")
            for k in range(self.nstamp):
                a(f"v_mov_b32 v7, s{STAMP_REGS[k]}")
                a(f"buffer_store_dword v7, v6, {srd(SWS)}, s{sT0} offen offset:{4*k}")
            a(f"s_getreg_b32 s{sT1}, hwreg(HW_REG_XCC_ID)")
            a(f"v_mov_b32 v7, s{sT1}")
            a(f"buffer_store_dword v7, v6, {srd(SWS)}, s{sT0} offen offset:124")
            a(f"v_mov_b32 v7, s{sLATE}")
            a(f"buffer_store_dword v7, v6, {srd(SWS)}, s{sT0} offen offset:120")
        a("L_end:")
        a("s_endpgm")

    def build(self):
        self.prologue()
        self.gemm1()
        self.scan()
        self.gemm2()
        self.finish()
        errs = self.a.check_waits()
        for e in errs:
            print("WAIT ERROR:", e, file=sys.stderr)
        assert not errs
        for t in self.tail:
            self.a(t)
        self.a("L_last:")
        self.a("s_endpgm")
        n = self.a.fix_hazards(verbose=self.cfg.verbose)
        if self.cfg.align:
            print("aligned:", self.a.align8(self.cfg.align), file=sys.stderr)
        print("wait states inserted:", n, " instructions:", len(self.a.ins), file=sys.stderr)
        ref = open(os.path.join(os.path.dirname(os.path.abspath(__file__)), "..", "cdna_kernels", NAME + ".s.ref")).read()
        head = []
        for line in ref.split("\n"):
            if line.startswith("; @launch"):
                break
            head.append(line)
        txt = "\n".join(head) + f"\n; @launch grid=(256,1,1) block=(256,1,1) lds={LDS_BYTES}\n"
        txt += f""".amdgcn_target "amdgcn-amd-amdhsa--gfx950"
.text
.globl {NAME}_kernel
.p2align 8
.type {NAME}_kernel,@function
{NAME}_kernel:
"""
        txt += self.a.text().replace(" ;POL", "")
        txt += f""".section .rodata,"a"
.p2align 6
.amdhsa_kernel {NAME}_kernel
  .amdhsa_next_free_vgpr 512
  .amdhsa_next_free_sgpr 102
  .amdhsa_accum_offset 256
  .amdhsa_group_segment_fixed_size 0
  .amdhsa_kernarg_size 176
  .amdhsa_user_sgpr_count 2
  .amdhsa_user_sgpr_kernarg_segment_ptr 1
  .amdhsa_system_sgpr_workgroup_id_x 1
  .amdhsa_float_denorm_mode_32 3
.end_amdhsa_kernel
"""
        return txt


def main():
    p = argparse.ArgumentParser()
    p.add_argument("-o", default=None)
    for name, default in dict(prof=0, pf=2, pf_at=99, pace0=5, pace0_h=8, pace=5, pace_c=0, pace_h=16, cap=2, k1=6, p1=14, k2a=1, k2=12, p2=16,
                              k3=10, p3=10, k4=0, p4=22, ew_lag=5, xf_at=16, split=0, tb_at=-1, fast=0, pwait=0, n1=14, ndl=3, st_j=2, c_after=1, align=100, remap=0, pfc0=0, htouch=0, ht2=-1, hold_c=0, order=1, touch=9, full=1, p5=12, dr_early=0, rk_in=16, pks=0, b1=10, nwin=16, xp_gap=40, hd0=1, hds=3, cpf=1, abl=0, nap=0, rot=1, p2_at=4, spin=20000, verbose=0).items():
        p.add_argument("--" + name, type=int, default=default)
    p.add_argument("--maxstep", type=float, default=20)
    p.add_argument("--wstep", type=float, default=2)
    p.add_argument("--dma_phase", type=float, default=1)
    p.add_argument("--hpol", default="sc1")
    p.add_argument("--opol", default="")
    p.add_argument("--only", default="")
    p.add_argument("--nostamp", default="karg,dma0,dma1,coef,w3done,gh2,gh4,gh8,gh12,gh16,pre,bar,lst,ack,got3")
    cfg = p.parse_args()
    g = Gen(cfg)
    txt = g.build()
    out = cfg.o or os.path.join(os.path.dirname(os.path.abspath(__file__)), "..", "cdna_kernels", NAME + ".s")
    open(out, "w").write(txt)
    if cfg.prof:
        open(out + ".stamps", "w").write("\n".join(g.stamp_names))


if __name__ == "__main__":
    main()
```

```python
import sys, os, argparse, math
sys.path.insert(0, os.path.dirname(os.path.abspath(__file__)))
from asmlib import Asm, Ins

NAME = "gated_mix__ssm_conv_s5__ssm_conv_s5__prompt"

WS_EPOCH = 0
WS_FLAG = 4096
WS_XF = 135168
WS_CARRY = 266240
WS_XCC = 593920
WS_H = 655360
WS_XCH = WS_H + 10485760
WS_PROF = WS_XCH + 5242880
WS_USED = WS_PROF + 1024 * 128

SLOT = 36864
PIECE = 9216
TOP = 4 * SLOT
TAB = TOP
PART1 = TOP + 10240
PART2 = TAB + 6400
LGW = PART1 + 4480
LDK = LGW + 1280
LDS_BYTES = 163840

sSPIN, sTC, sCG, sLATE, sBR, sW, sBW, sTAG, sK = 3, 4, 5, 6, 7, 8, 9, 10, 11
sT0, sT1, sT2, sT3 = 12, 13, 14, 15
SX, SB, SC, SWS, SOUT = 16, 20, 24, 32, 36
sPUB, sGAT, sHRE, sHIM = 28, 29, 30, 31
KA = 40
pX, pLre, pLim, pBre, pBim, pCre, pCim, pDT, pDA = 40, 42, 44, 46, 48, 50, 52, 54, 56
pDB, pGW, pOUT, pWS = 74, 76, 78, 80
sM = 58
sFLG, sPOL, sHA, sHB, sXS, sXR = 82, 83, 84, 85, 86, 87
sKQ, sROT, sEND = 60, 65, 66
STAMP_REGS = list(range(88, 102, 2)) + [42, 44, 46, 48, 50, 52, 54, 68, 70, 72]


def srd(b):
    return "s[%d:%d]" % (b, b + 3)


def sp(b):
    return "s[%d:%d]" % (b, b + 1)


def v2(b):
    return "v[%d:%d]" % (b, b + 1)


def v4(b, f="v"):
    return "%s[%d:%d]" % (f, b, b + 3)


class Op:
    __slots__ = ("f", "strict", "dma", "tag")

    def __init__(self, f, strict=False, dma=False, tag=None):
        self.f, self.strict, self.dma, self.tag = f, strict, dma, tag

    def __call__(self):
        self.f()


class Rec(list):
    def __init__(self, a):
        super().__init__()
        self.a = a

    def __call__(self, text, tag=None, counted=True, strict=False):
        self.append(Op(lambda: self.a(text, tag, counted), strict, text.startswith(("buffer_", "global_")), tag))

    def wait(self, vm=None, lgkm=None):
        self.append(Op(lambda: self.a.wait(vm, lgkm)))

    def group(self, *texts):
        self.append(Op(lambda: [self.a(t) for t in texts]))


def cmul(a, d, x, y):
    a(f"v_pk_mul_f32 {v2(d)}, {v2(x)}, {v2(y)} op_sel_hi:[1,0]")
    a(f"v_pk_fma_f32 {v2(d)}, {v2(x)}, {v2(y)}, {v2(d)} op_sel:[1,1,0] op_sel_hi:[0,1,1] neg_lo:[1,0,0]")


def cfma(a, d, x, y, c):
    a(f"v_pk_fma_f32 {v2(d)}, {v2(x)}, {v2(y)}, {v2(c)} op_sel_hi:[1,0,1]")
    a(f"v_pk_fma_f32 {v2(d)}, {v2(x)}, {v2(y)}, {v2(d)} op_sel:[1,1,0] op_sel_hi:[0,1,1] neg_lo:[1,0,0]")


def run(ops):
    for o in ops:
        o()


class Gen:
    def __init__(self, cfg):
        self.cfg = cfg
        self.a = Asm()
        self.nstamp = 0
        self.stamp_names = []
        self.tail = []

    def rec(self):
        return Rec(self.a)

    def stamp(self, name):
        if not self.cfg.prof:
            return
        if self.cfg.only:
            if name not in self.cfg.only.split(",") + ["rt0", "start", "end", "rt1"]:
                return
        elif name in self.cfg.nostamp.split(",") or (name[0] == "s" and name[1:].isdigit()):
            return
        op = "s_memrealtime" if name.startswith("rt") else "s_memtime"
        self.a("%s %s" % (op, sp(STAMP_REGS[self.nstamp])))
        self.stamp_names.append(name)
        self.nstamp += 1

    def weave(self, mf, streams, pins=None):
        n = len(mf)
        load = [0] * n
        slots = [[] for _ in range(n)]
        for ops, start, step in streams:
            prev = -1
            for k, op in enumerate(ops):
                g = max(int(start + k * step), prev + (1 if op.strict else 0), 0)
                while g < n - 1 and load[g] >= self.cfg.cap:
                    g += 1
                g = min(g, n - 1)
                slots[g].append(op)
                load[g] += 1
                prev = g
        for g in range(n):
            self.a(mf[g])
            run(slots[g])
            if pins and g in pins:
                pins[g]()

    ACC = 20
    GX, GW = 70, 80
    L1, L2, WQ, V, MC = 196, 206, 216, 232, 190
    T4 = 246
    VP, Q = 250, 251
    FG = 252
    VC0, VC1 = 18, 19
    VCR = 10
    U = 100

    def acc(self, m, n, part):
        return self.ACC + (n * 2 + part) * 8 + 4 * m

    def prologue(self):
        a, cfg = self.a, self.cfg
        a(f"s_load_dwordx16 s[{KA}:{KA+15}], s[0:1], 0")
        a(f"s_load_dwordx16 s[{KA+16}:{KA+31}], s[0:1], 64")
        a(f"s_load_dwordx8 s[{KA+32}:{KA+39}], s[0:1], 128")
        a(f"s_load_dwordx2 {sp(pWS)}, s[0:1], 168")
        a("s_cmp_ge_u32 s2, 0x100")
        a("s_cbranch_scc1 L_end")
        if cfg.cpf == 0:
            a(f"s_getpc_b64 {sp(sT0)}")
            a("L_pc0:")
            a("v_lshlrev_b32 v18, 7, v0")
            a("v_min_u32 v19, L_last-L_pc0, v18")
            a(f"global_load_dword v243, v19, {sp(sT0)}", tag="pf")
        self.stamp("rt0")
        self.stamp("start")
        a("v_lshrrev_b32 v18, 6, v0")
        a(f"s_and_b32 s{sT2}, s2, 7")
        a(f"s_lshr_b32 s{sT3}, s2, 3")
        a(f"v_readfirstlane_b32 s{sW}, v18")
        if cfg.cpf:
            run(self.code_prefetch(18, 1))
        L, R8, SL, F0, T0, T1, C = 196, 197, 198, 199, 246, 247, 248
        Q = self.Q
        a(f"s_lshr_b32 s{sTC}, s{sT2}, 1")
        if cfg.remap:
            a(f"s_lshr_b32 s{sT0}, s{sTC}, 1")
            a(f"s_xor_b32 s{sTC}, s{sTC}, s{sT0}")
        a(f"s_lshl_b32 s{sTC}, s{sTC}, 2")
        a(f"s_lshr_b32 s{sT0}, s{sT3}, 3")
        a(f"s_add_u32 s{sTC}, s{sTC}, s{sT0}")
        a(f"s_and_b32 s{sBR}, s{sT2}, 1")
        a(f"s_and_b32 s{sT1}, s{sT3}, 7")
        a(f"s_lshl_b32 s{sCG}, s{sBR}, 3")
        a(f"s_add_u32 s{sCG}, s{sCG}, s{sT1}")
        a(f"s_mov_b32 s{sK}, 0")
        a(f"v_and_b32 v{L}, 63, v0")
        a(f"v_lshrrev_b32 v{R8}, 3, v{L}")
        a(f"v_and_b32 v{SL}, 7, v{L}")
        a(f"v_lshrrev_b32 v{Q}, 4, v{L}")
        a(f"v_xor_b32 v{F0}, v{Q}, v{SL}")
        a(f"v_lshlrev_b32 v{F0}, 4, v{F0}")
        a(f"v_lshrrev_b32 v{T0}, 5, v{L}")
        a(f"v_and_b32 v{T1}, 3, v{R8}")
        a(f"v_lshl_add_u32 v{T0}, v{T0}, 3, v{T1}")
        a(f"v_mul_u32_u24 v{T0}, 1280, v{T0}")
        a(f"v_xor_b32 v{T1}, 64, v{F0}")
        a(f"v_add_u32 v1, v{T0}, v{F0}")
        a(f"v_add_u32 v2, v{T0}, v{T1}")
        a(f"v_add_u32 v2, {16*1280-1024}, v2")
        a(f"v_add_u32 v3, {4*1280-2048}, v1")
        a(f"v_add_u32 v4, {4*1280-2048}, v2")
        a(f"v_mul_u32_u24 v{T0}, 1280, v{R8}")
        a(f"v_add_u32 v{self.VC0}, v{T0}, v{F0}")
        a(f"v_add_u32 v{self.VC1}, v{T0}, v{T1}")
        a(f"v_add_u32 v{self.VC1}, {8*1280}, v{self.VC1}")
        a(f"s_mul_i32 s{sBW}, s{sW}, {PIECE}")
        a(f"s_bitcmp1_b32 s{sW}, 1")
        a(f"s_cselect_b64 vcc, -1, 0")
        a(f"s_mul_i32 s{sT1}, s{sT1}, 80")
        a(f"s_mul_i32 s{sT0}, s{sW}, 20")
        a(f"v_cndmask_b32 v5, v{self.VC0}, v{self.VC1}, vcc")
        for n in range(1, 5):
            a(f"v_add_u32 v{5+n}, {n*16*1280 - 1024*(n & 3)}, v5")
        a(f"v_add_u32 v{self.VC1}, -1024, v{self.VC1}")
        a(f"v_min_u32 v{T0}, 19, v{L}")
        a(f"v_add_u32 v204, s{sT0}, v{T0}")
        a(f"v_add_lshl_u32 v{T0}, v204, s{sT1}, 1")
        a(f"s_mul_i32 s{sT1}, s{sT1}, 1280")
        a(f"s_lshl_b32 s{sT0}, s{sTC}, 2")
        a(f"s_add_u32 s{sT0}, s{sT0}, s{sW}")
        a(f"s_mul_i32 s{sT0}, s{sT0}, {32*1280}")
        a(f"s_lshl_b32 s{sPUB}, s{sT3}, 2")
        a(f"s_add_u32 s{sPUB}, s{sPUB}, s{sW}")
        a(f"s_lshl_b32 s{sGAT}, s{sT2}, 7")
        a(f"s_add_u32 s{sGAT}, s{sGAT}, s{sPUB}")
        a(f"s_mul_i32 s{sGAT}, s{sGAT}, 2560")
        a(f"s_bfe_u32 s{sHRE}, s{sT2}, 0x10001")
        a(f"s_lshl_b32 s{sHRE}, s{sHRE}, 7")
        a(f"s_add_u32 s{sHRE}, s{sHRE}, s{sPUB}")
        a(f"s_mul_i32 s{sHRE}, s{sHRE}, 3200")
        a(f"v_lshlrev_b32 v241, 7, v{L}")
        a(f"s_lshl_b32 s{sHIM}, s2, 2")
        a(f"s_add_u32 s{sHIM}, s{sHIM}, s{sW}")
        a(f"s_mul_i32 s{sHIM}, s{sHIM}, 640")
        a(f"s_add_u32 s{sHIM}, s{sHIM}, {WS_FLAG}")
        a(f"v_add_u32 v240, s{sHIM}, v241")
        a(f"v_add_u32 v242, s{sHRE}, v241")
        a(f"v_add_u32 v241, s{sGAT}, v241")
        a(f"s_mov_b32 s{SX+3}, 0x20000")
        a(f"s_mov_b32 s{SB+3}, 0x20000")
        a(f"s_sub_u32 s{SX+2}, 2621440, s{sT0}")
        a(f"s_sub_u32 s{SB+2}, 819200, s{sT1}")
        a("s_waitcnt lgkmcnt(0)")
        self.stamp("karg")
        a(f"s_add_u32 s{SX}, s{pX}, s{sT0}")
        a(f"s_addc_u32 s{SX+1}, s{pX+1}, 0")
        a(f"s_cmp_eq_u32 s{sBR}, 1")
        for p in (pBre, pBim, pLre, pLim, pDT, pCre, pCim):
            a(f"s_cselect_b64 {sp(p)}, {sp(p+18)}, {sp(p)}")
        a(f"s_bitcmp1_b32 s{sW}, 0")
        a(f"s_cselect_b64 {sp(SB)}, {sp(pBim)}, {sp(pBre)}")
        a(f"s_cselect_b64 {sp(SC)}, {sp(pCim)}, {sp(pCre)}")
        a(f"s_add_u32 s{SB}, s{SB}, s{sT1}")
        a(f"s_addc_u32 s{SB+1}, s{SB+1}, 0")
        a(f"global_load_ushort v206, v{T0}, {sp(pLre)}", tag="par")
        a(f"global_load_ushort v207, v{T0}, {sp(pLim)}", tag="par")
        a(f"global_load_ushort v208, v{T0}, {sp(pDT)}", tag="par")

        def prefetch():
            a(f"s_bitcmp1_b32 s{sT2}, 2")
            a(f"s_cselect_b64 {sp(SWS)}, {sp(pBim)}, {sp(pBre)}")
            a(f"s_cselect_b64 {sp(sM)}, {sp(pCim)}, {sp(pCre)}")
            a("s_mov_b64 exec, 0xfffff")
            a(f"global_load_dword v244, v241, {sp(pX)}", tag="pf")
            a("s_mov_b64 exec, 0x1ffffff")
            a(f"global_load_dword v245, v242, {sp(SWS)}", tag="pf")
            if cfg.touch == 1:
                a("s_mov_b64 exec, 0x1f")
                a(f"global_load_dword v243, v240, {sp(pWS)}", tag="pf")
            a("s_mov_b64 exec, -1")
        if cfg.pf == 1:
            prefetch()
        if cfg.pfc0:
            a(f"s_bitcmp1_b32 s{sT2}, 2")
            a(f"s_cselect_b64 {sp(sM)}, {sp(pCim)}, {sp(pCre)}")
            a("s_mov_b64 exec, 0x1ffffff")
            a(f"global_load_dword a255, v242, {sp(sM)}", tag="pf")
            a("s_mov_b64 exec, -1")
        run(self.dma_stage(0))
        if cfg.pf == 2:
            prefetch()
        a(f"s_load_dword s{sTAG}, {sp(pWS)}, {WS_EPOCH}")
        self.stamp("dma0")
        a(f"v_lshlrev_b32 v204, 3, v204")
        a(f"v_add_u32 v204, {TAB}, v204")
        a(f"v_and_b32 v{C}, 15, v{L}")
        a(f"v_lshrrev_b32 v{T0}, 1, v{C}")
        a(f"v_xor_b32 v{T0}, v{T0}, v{Q}")
        a(f"v_lshlrev_b32 v{T0}, 4, v{T0}")
        a(f"v_lshl_add_u32 v{T1}, v{C}, 7, v{T0}")
        a(f"v_add_u32 v10, s{sBW}, v{T1}")
        a(f"v_xor_b32 v11, 64, v10")
        a(f"v_add_u32 v12, {2*SLOT}, v10")
        a(f"v_add_u32 v13, {2*SLOT}, v11")
        a(f"v_and_b32 v{T1}, 7, v{C}")
        a(f"v_lshl_add_u32 v{T0}, v{T1}, 7, v{T0}")
        a(f"v_lshrrev_b32 v{T1}, 3, v{C}")
        a(f"v_mul_u32_u24 v{T1}, {2*PIECE}, v{T1}")
        a(f"v_add_u32 v{T0}, 4096, v{T0}")
        a(f"v_add_u32 v14, v{T0}, v{T1}")
        a(f"v_xor_b32 v15, 64, v14")
        a(f"v_add_u32 v16, {2*SLOT}, v14")
        a(f"v_add_u32 v17, {2*SLOT}, v15")
        a(f"v_lshlrev_b32 v{self.VP}, 3, v{C}")
        a(f"v_add_u32 v{self.VP}, {TAB}, v{self.VP}")
        a(f"s_lshr_b32 s{sT0}, s{sW}, 1")
        a(f"s_mul_i32 s{sT0}, s{sT0}, 640")
        a(f"s_add_u32 s{sT0}, s{sT0}, s{sT1}")
        a(f"s_add_u32 s{SC}, s{SC}, s{sT0}")
        a(f"s_addc_u32 s{SC+1}, s{SC+1}, 0")
        a(f"s_sub_u32 s{SC+2}, 819200, s{sT0}")
        a(f"s_mov_b32 s{SC+3}, 0x20000")
        a(f"s_mov_b32 s{SWS}, s{pWS}")
        a(f"s_mov_b32 s{SWS+1}, s{pWS+1}")
        a(f"s_mov_b32 s{SWS+2}, {WS_USED}")
        a(f"s_mov_b32 s{SWS+3}, 0x20000")
        a(f"s_mov_b32 s{SOUT}, s{pOUT}")
        a(f"s_mov_b32 s{SOUT+1}, s{pOUT+1}")
        a(f"s_mov_b32 s{SOUT+2}, 5242880")
        a(f"s_mov_b32 s{SOUT+3}, 0x20000")
        if cfg.rot:
            a(f"s_and_b32 s{sT0}, s{sCG}, 7")
            if cfg.rot == 1:
                a(f"s_and_b32 s{sT2}, s{sTC}, 3")
                a(f"s_add_u32 s{sT0}, s{sT0}, s{sT2}")
            for _ in range(2 if cfg.rot == 1 else 1):
                a(f"s_sub_u32 s{sT2}, s{sT0}, 5")
                a(f"s_cselect_b32 s{sT0}, s{sT0}, s{sT2}")
        else:
            a(f"s_mov_b32 s{sT0}, 0")
        a(f"s_lshl_b32 s{sROT}, s{sT0}, 13")
        a(f"s_lshl_b32 s{sKQ}, s{sT0}, 7")
        for k in range(1, 5):
            a(f"s_add_u32 s{sKQ+k}, s{sKQ+k-1}, 128")
            a(f"s_cmp_eq_u32 s{sKQ+k}, 640")
            a(f"s_cselect_b32 s{sKQ+k}, 0, s{sKQ+k}")
        if cfg.fast:
            cfg.split = 0
        a(f"s_lshr_b32 s{sLATE}, s{sW}, 1")
        a(f"s_xor_b32 s{sLATE}, s{sLATE}, s{sBR}")
        a(f"s_mul_i32 s{sT0}, s{sW}, 320")
        a(f"v_lshl_add_u32 v236, v{L}, 4, s{sT0}")
        a(f"s_add_u32 s{sEND}, s{sT0}, {LGW}")
        a(f"s_and_b32 s{sT0}, s{sCG}, 7")
        a(f"s_mul_i32 s{sT0}, s{sT0}, 160")
        a(f"v_lshl_add_u32 v237, v{L}, 4, s{sT0}")
        a(f"s_bitcmp1_b32 s{sW}, 0")
        a(f"s_cselect_b64 {sp(68)}, {sp(pDB)}, {sp(pDA)}")
        a(f"s_cselect_b32 s67, 160, 0")
        a(f"s_add_u32 s67, s67, {LDK}")
        self.ws_offsets()
        if cfg.order == 0:
            run(self.dma_stage(1))
            self.params()
        else:
            self.params()
            run(self.dma_stage(1))
        a("s_waitcnt lgkmcnt(0)")
        a(f"s_mul_i32 s{sTAG}, s{sTAG}, 0x9E3779B1")
        a(f"s_add_u32 s{sTAG}, s{sTAG}, 0x7F4A7C15")
        if cfg.fast:
            a(f"s_getreg_b32 s{sLATE}, hwreg(HW_REG_XCC_ID, 0, 4)")
            a(f"s_lshl_b32 s{sT0}, s{sTC}, 4")
            a(f"s_add_u32 s{sT0}, s{sT0}, s{sCG}")
            a(f"s_lshl_b32 s{sT0}, s{sT0}, 7")
            a(f"s_add_u32 s{sT0}, s{sT0}, {WS_XCC}")
            a(f"v_mov_b32 v246, s{sLATE}")
            a(f"v_mov_b32 v247, s{sTAG}")
            a(f"v_lshlrev_b32 v248, 3, v196")
            a("s_mov_b64 exec, 0xffff")
            a(f"buffer_store_dwordx2 {v2(246)}, v248, {srd(SWS)}, s{sT0} offen sc1", tag="xcc")
        a(f"s_mov_b32 m0, s{sEND}")
        a("s_mov_b64 exec, 0xfffff")
        a(f"global_load_lds_dwordx4 v236, {sp(pGW)}", tag="small")
        a(f"s_mov_b32 m0, s67")
        a("s_mov_b64 exec, 0x3ff")
        a(f"global_load_lds_dwordx4 v237, {sp(68)}", tag="small")
        a("s_mov_b64 exec, -1")
        self.stamp("dma1")

    def code_prefetch(self, t, k):
        a = self.a
        r = self.rec()
        r(f"s_lshr_b32 s{sT0}, s2, 3")
        r(f"s_lshl_b32 s{sT0}, s{sT0}, 2")
        r(f"s_add_u32 s{sT0}, s{sT0}, s{sW}")
        r(f"s_lshl_b32 s{sT0}, s{sT0}, 8")
        r(f"v_and_b32 v{t}, 1, v0")
        r(f"v_lshl_add_u32 v{t}, v{t}, 7, s{sT0}")
        r.append(Op(lambda: (a(f"s_getpc_b64 {sp(sT0)}"), a(f"L_pc{k}:"), a(f"v_min_u32 v{t}, L_last-L_pc{k}, v{t}"),
                             a("s_mov_b64 exec, 3"), a(f"global_load_dword a{255-k}, v{t}, {sp(sT0)}", tag="pf"),
                             a("s_mov_b64 exec, -1")), dma=True))
        return r

    def ws_offsets(self):
        a = self.a
        a(f"s_lshl_b32 s{sT0}, s{sCG}, 4")
        a(f"s_add_u32 s{sPUB}, s{sT0}, s{sTC}")
        a(f"s_mul_i32 s{sPUB}, s{sPUB}, 1280")
        a(f"s_add_u32 s{sPUB}, s{sPUB}, {WS_CARRY}")
        a(f"s_lshl_b32 s{sT2}, s{sW}, 2")
        a(f"s_add_u32 s{sGAT}, s{sT0}, s{sT2}")
        a(f"s_mul_i32 s{sGAT}, s{sGAT}, 1280")
        a(f"s_add_u32 s{sGAT}, s{sGAT}, {WS_CARRY}")
        a(f"s_lshl_b32 s{sT0}, s{sTC}, 1")
        a(f"s_add_u32 s{sT0}, s{sT0}, s{sBR}")
        a(f"s_lshr_b32 s{sT2}, s{sW}, 1")
        a(f"s_and_b32 s{sT3}, s{sW}, 1")
        a(f"s_lshl_b32 s{sHRE}, s{sT0}, 1")
        a(f"s_add_u32 s{sHRE}, s{sHRE}, s{sT2}")
        a(f"s_mul_i32 s{sHRE}, s{sHRE}, {2*81920}")
        a(f"s_and_b32 s{sHIM}, s{sCG}, 7")
        a(f"s_mul_i32 s{sHIM}, s{sHIM}, 10240")
        a(f"s_add_u32 s{sHRE}, s{sHRE}, s{sHIM}")
        a(f"s_lshl_b32 s{sHIM}, s{sT3}, 10")
        a(f"s_add_u32 s{sHRE}, s{sHRE}, s{sHIM}")
        a(f"s_add_u32 s{sHRE}, s{sHRE}, {WS_H}")
        a(f"s_add_u32 s{sHIM}, s{sHRE}, 81920")
        a(f"s_lshl_b32 s{sHB}, s{sT0}, 1")
        a(f"s_add_u32 s{sHB}, s{sHB}, s{sBR}")
        a(f"s_xor_b32 s{sHA}, s{sHB}, 1")
        a(f"s_mul_i32 s{sXS}, s{sT3}, 81920")
        a(f"s_mul_i32 s{sXR}, s{sT2}, 40960")
        a(f"s_add_u32 s{sXS}, s{sXS}, s{sXR}")
        a(f"s_add_u32 s{sXS}, s{sXS}, {WS_H}")
        a(f"s_mul_i32 s{sHA}, s{sHA}, {2*81920}")
        a(f"s_mul_i32 s{sHB}, s{sHB}, {2*81920}")
        a(f"s_add_u32 s{sHA}, s{sHA}, s{sXS}")
        a(f"s_add_u32 s{sHB}, s{sHB}, s{sXS}")
        a(f"s_lshl_b32 s{sFLG}, s{sTC}, 4")
        a(f"s_add_u32 s{sFLG}, s{sFLG}, s{sCG}")
        a(f"s_lshl_b32 s{sFLG}, s{sFLG}, 2")
        a(f"s_add_u32 s{sFLG}, s{sFLG}, s{sW}")
        a(f"s_lshl_b32 s{sFLG}, s{sFLG}, 7")
        a(f"s_add_u32 s{sFLG}, s{sFLG}, {WS_FLAG}")
        a(f"s_lshl_b32 s{sPOL}, s{sT0}, 1")
        a(f"s_add_u32 s{sPOL}, s{sPOL}, s{sT2}")
        a(f"s_lshl_b32 s{sPOL}, s{sPOL}, 11")
        a(f"s_add_u32 s{sPOL}, s{sPOL}, {WS_FLAG}")
        a(f"s_lshl_b32 s{sXS}, s{sTC}, 3")
        a(f"s_and_b32 s{sT0}, s{sCG}, 7")
        a(f"s_add_u32 s{sXS}, s{sXS}, s{sT0}")
        a(f"s_lshl_b32 s{sXS}, s{sXS}, 1")
        a(f"s_add_u32 s{sXS}, s{sXS}, s{sBR}")
        a(f"s_lshl_b32 s{sXS}, s{sXS}, 2")
        a(f"s_add_u32 s{sXS}, s{sXS}, s{sW}")
        a(f"s_xor_b32 s{sXR}, s{sXS}, 4")

    def params(self):
        a = self.a
        LR, LI, DT, T0, T1, T2 = 206, 207, 208, 209, 210, 211
        P = lambda k: 100 + 2 * k
        a(f"v_lshlrev_b32 v{T0}, 3, v196")
        a(f"v_add_u32 v{T0}, {PART1}, v{T0}")
        a(f"v_mov_b64 {v2(P(16))}, 0")
        a("s_mov_b32 exec_hi, 0xffff")
        for n in range(5):
            a(f"ds_write_b64 v{T0}, {v2(P(16))} offset:{n*896}", tag="tab")
        a("s_mov_b64 exec, 0xfffff")
        a.wait(vm="par")
        a(f"v_lshlrev_b32 v{DT}, 16, v{DT}")
        a(f"v_lshlrev_b32 v{LR}, 16, v{LR}")
        a(f"v_mul_f32 v{DT}, 0x3fb8aa3b, v{DT}")
        a(f"v_exp_f32 v{DT}, v{DT}")
        a(f"v_lshlrev_b32 v{LI}, 16, v{LI}")
        a(f"v_cvt_pk_bf16_f32 v{DT}, v{DT}, v{DT}")
        a(f"v_lshlrev_b32 v{DT}, 16, v{DT}")
        a(f"v_mul_f32 v{T0}, v{DT}, v{LR}")
        a(f"v_mul_f32 v{T1}, v{DT}, v{LI}")
        a(f"v_mul_f32 v{T0}, 0x3fb8aa3b, v{T0}")
        a(f"v_mul_f32 v{T1}, 0x3e22f983, v{T1}")
        a(f"v_exp_f32 v{T0}, v{T0}")
        a(f"v_rndne_f32 v{T2}, v{T1}")
        a(f"v_sub_f32 v{T1}, v{T1}, v{T2}")
        a(f"v_cos_f32 v{T2}, v{T1}")
        a(f"v_sin_f32 v{T1}, v{T1}")
        a(f"v_mov_b32 v{P(0)}, 1.0")
        a(f"v_mov_b32 v{P(0)+1}, 0")
        a(f"v_mul_f32 v{P(1)}, v{T0}, v{T2}")
        a(f"v_mul_f32 v{P(1)+1}, v{T0}, v{T1}")
        a(f"v_mul_f32 v{T0}, v{LR}, v{LR}")
        a(f"v_fmac_f32 v{T0}, v{LI}, v{LI}")
        a(f"v_rcp_f32 v{T0}, v{T0}")
        a(f"v_add_f32 v{T1}, -1.0, v{P(1)}")
        a(f"v_mul_f32 v{P(3)}, v{T1}, v{LR}")
        a(f"v_mul_f32 v{P(3)+1}, v{P(1)+1}, v{LR}")
        a(f"v_add_f32 v{T0}, v{T0}, v{T0}")
        a(f"v_fmac_f32 v{P(3)}, v{P(1)+1}, v{LI}")
        a(f"v_fma_f32 v{P(3)+1}, -v{T1}, v{LI}, v{P(3)+1}")
        a(f"v_mul_f32 v{P(3)}, v{P(3)}, v{T0}")
        a(f"v_mul_f32 v{P(3)+1}, v{P(3)+1}, v{T0}")
        cmul(a, P(2), P(1), P(1))
        cmul(a, P(17), P(2), P(2))
        cmul(a, P(4), P(17), P(17))
        for base in (4, 7, 10, 13):
            cmul(a, P(base + 1), P(base), P(base))
            cmul(a, P(base + 2), P(base + 1), P(base))
            if base < 13:
                cmul(a, P(base + 3), P(base + 1), P(base + 1))
        for e in range(16):
            a(f"ds_write_b64 v204, {v2(P(e))} offset:{e*640}", tag="tab")
        a("s_mov_b64 exec, -1")

    def dma_stage(self, s):
        r = self.rec()
        base = (s % 4) * SLOT
        for j in range(9):
            if j in (0, 4, 8):
                r(f"s_add_u32 m0, s{sBW}, {base + 1024*j}")
            sr = SX if j < 4 else SB
            r(f"buffer_load_dwordx4 v{1+j}, {srd(sr)}, s{sK} offen offset:{1024*(j & 3)} lds", tag=f"st{s}", strict=j in (0, 4, 8))
        if s < 9:
            r(f"s_add_u32 s{sK}, s{sK}, 128")
        return r

    def c_slot(self, u):
        u %= 16
        return ((2 + u // 4) % 4), (u % 4)

    def c_dma(self, u):
        r = self.rec()
        p, qq = self.c_slot(u)
        kl, nt = divmod(u, 5)
        if u >= 16:
            r.wait(lgkm=f"dr{u-16}")
        r(f"s_add_u32 m0, s{sBW}, {p*SLOT + qq*2048}")
        r(f"s_add_u32 s{sK}, s{sKQ+kl}, {nt*20480}")
        r(f"buffer_load_dwordx4 v{self.VC0}, {srd(SC)}, s{sK} offen lds", tag=f"c{u}", strict=True)
        r(f"buffer_load_dwordx4 v{self.VC1}, {srd(SC)}, s{sK} offen offset:1024 lds", tag=f"c{u}")
        return r

    def c_drain(self, u):
        r = self.rec()
        p, qq = self.c_slot(u)
        r.wait(vm=f"c{u}")
        for b in range(2):
            r(f"ds_read_b128 {v4(8*u+4*b, 'a')}, v{self.VCR + 2*(p >> 1) + b} offset:{(p & 1)*SLOT + qq*2048}", tag=f"dr{u}")
        return r

    def c_stream(self, rest):
        ops = list(rest)
        for u in range(16, 25):
            ops += self.c_drain(u - 16) if u == 16 else []
            ops += self.c_dma(u)[:-1]
            if u < 24:
                ops += self.c_drain(u - 15)
            ops += self.c_dma(u)[-1:]
        items, cur = [], []
        for o in ops:
            cur.append(o)
            if o.dma:
                items.append(Op(lambda c=cur: run(c)))
                cur = []
        assert not cur
        return items

    def c_take(self, n):
        r, self.cq = self.cq[:n], self.cq[n:]
        return r

    def frag_reads(self, h):
        r = self.rec()
        s, u = h >> 1, h & 1
        slot = s % 4
        F = 100 + 48 * (h & 1)
        va = 10 + 2 * (slot >> 1) + u
        vb = 14 + 2 * (slot >> 1) + u
        so = (slot & 1) * SLOT
        rd = lambda dst, vr, off: r(f"ds_read_b128 {v4(dst)}, v{vr} offset:{off}", tag=f"fr{h}")
        rd(F, va, so)
        rd(F + 8, vb, so)
        rd(F + 4, va, so + 2048)
        for k in range(1, 10):
            rd(F + 8 + 4 * k, vb, so + (k & 1) * PIECE + (k >> 1) * 1024)
        return r

    def gate_loads(self, t):
        a = self.a
        GX, GW = self.GX, self.GW
        a(f"s_lshl_b32 s{sT0}, s{sTC}, 4")
        a(f"s_add_u32 s{sT0}, s{sT0}, s{sCG}")
        a(f"s_lshl_b32 s{sT0}, s{sT0}, 2")
        a(f"s_add_u32 s{sT0}, s{sT0}, s{sW}")
        a(f"s_lshl_b32 s{sT0}, s{sT0}, 1")
        a(f"v_bfe_u32 v{t}, v0, 5, 1")
        a(f"v_add_u32 v{t}, s{sT0}, v{t}")
        a(f"v_mul_u32_u24 v{t}, 1280, v{t}")
        a(f"v_and_b32 v{t+1}, 31, v0")
        a(f"v_lshl_add_u32 v{t+2}, v{t+1}, 4, v{t}")
        a(f"v_lshl_add_u32 v{t+3}, v{t+1}, 3, v{t}")
        a(f"global_load_dwordx4 {v4(GX)}, v{t+2}, {sp(pX)}", tag="gate")
        a(f"global_load_dwordx4 {v4(GX+4)}, v{t+2}, {sp(pX)} offset:512", tag="gate")
        a(f"global_load_dwordx2 {v2(GX+8)}, v{t+3}, {sp(pX)} offset:1024", tag="gate")
        a(f"v_lshlrev_b32 v{t+2}, 4, v{t+1}")
        a(f"v_add_u32 v{t+2}, {LGW}, v{t+2}")
        a(f"v_lshlrev_b32 v{t+3}, 3, v{t+1}")
        a(f"v_add_u32 v{t+3}, {LGW + 1024}, v{t+3}")
        a(f"ds_read_b128 {v4(GW)}, v{t+2}", tag="gw")
        a(f"ds_read_b128 {v4(GW+4)}, v{t+2} offset:512", tag="gw")
        a(f"ds_read_b64 {v2(GW+8)}, v{t+3}", tag="gw")

    XS = 60

    def xs(self, i):
        return (190, 192, 194, 242, 244)[i]

    def skip_loads(self, t):
        a = self.a
        a(f"s_lshl_b32 s{sT0}, s{sTC}, 1")
        a(f"s_add_u32 s{sT0}, s{sT0}, s{sBR}")
        a(f"s_lshl_b32 s{sT0}, s{sT0}, 2")
        a(f"s_add_u32 s{sT0}, s{sT0}, s{sW}")
        a(f"s_lshl_b32 s{sT0}, s{sT0}, 4")
        a(f"s_and_b32 s{sT1}, s{sCG}, 7")
        a(f"s_mul_i32 s{sT1}, s{sT1}, 80")
        a(f"v_bfe_u32 v{t}, v0, 2, 4")
        a(f"v_and_b32 v{t+1}, 3, v0")
        a(f"v_add_u32 v{t}, s{sT0}, v{t}")
        a(f"v_mul_u32_u24 v{t}, 640, v{t}")
        a(f"v_lshl_add_u32 v{t+1}, v{t+1}, 2, s{sT1}")
        a(f"v_add_lshl_u32 v231, v{t}, v{t+1}, 1")
        for i in range(5):
            a(f"global_load_dwordx2 {v2(self.xs(i))}, v231, {sp(pX)} offset:{32*i}", tag="ep")

    def skip_terms(self):
        a = self.a
        DA, DB, t, SPK = 100, 110, 130, self.SPK
        for i in range(5):
            a(f"ds_read_b64 {v2(DA+2*i)}, v{self.DO} offset:{32*i}", tag="dk")
            a(f"ds_read_b64 {v2(DB+2*i)}, v{self.DO} offset:{160+32*i}", tag="dk")
        a.wait(vm="ep", lgkm="dk")
        for i in (3, 4, 0, 1, 2):
            x0 = self.xs(i)
            a(f"v_lshlrev_b32 v{t}, 16, v{x0}")
            a(f"v_and_b32 v{t+1}, 0xffff0000, v{x0}")
            a(f"v_lshlrev_b32 v{t+2}, 16, v{x0+1}")
            a(f"v_and_b32 v{t+3}, 0xffff0000, v{x0+1}")
            for b, dsk in enumerate((DA + 2 * i, DB + 2 * i)):
                a(f"v_lshlrev_b32 v{t+4}, 16, v{dsk}")
                a(f"v_and_b32 v{t+5}, 0xffff0000, v{dsk}")
                a(f"v_lshlrev_b32 v{t+6}, 16, v{dsk+1}")
                a(f"v_and_b32 v{t+7}, 0xffff0000, v{dsk+1}")
                a(f"v_pk_mul_f32 {v2(t+4)}, {v2(t)}, {v2(t+4)}")
                a(f"v_pk_mul_f32 {v2(t+6)}, {v2(t+2)}, {v2(t+6)}")
                a(f"v_cvt_pk_bf16_f32 v{SPK+4*i+2*b}, v{t+4}, v{t+5}")
                a(f"v_cvt_pk_bf16_f32 v{SPK+4*i+2*b+1}, v{t+6}, v{t+7}")

    def gate(self, T):
        a = self.a
        GX, GW, FG = self.GX, self.GW, self.FG
        a(f"v_mov_b32 v{T}, 0")
        a(f"v_mov_b32 v{T+1}, 0")
        a.wait(vm="gate", lgkm="gw")
        for k in range(10):
            a(f"v_dot2_f32_bf16 v{T+(k & 1)}, v{GX+k}, v{GW+k}, v{T+(k & 1)}")
        a(f"v_mov_b32 v{FG+1}, s{sTAG}")
        a(f"v_mov_b32 v{FG+3}, s{sTAG}")
        a(f"v_add_f32 v{T}, v{T}, v{T+1}")
        for k in (8, 4, 2, 1):
            a(f"v_add_f32_dpp v{T}, v{T}, v{T} row_ror:{k} row_mask:0xf bank_mask:0xf")
        a(f"v_mov_b32 v{T+1}, v{T}")
        a(f"v_permlane16_swap_b32 v{T}, v{T+1}")
        a(f"v_add_f32 v{T}, v{T}, v{T+1}")
        a(f"v_cvt_pk_bf16_f32 v{T}, v{T}, v{T}")
        a(f"v_lshlrev_b32 v{T}, 16, v{T}")
        a(f"v_mul_f32 v{T}, 0xbfb8aa3b, v{T}")
        a(f"v_exp_f32 v{T}, v{T}")
        a(f"v_add_f32 v{T}, 1.0, v{T}")
        a(f"v_rcp_f32 v{T}, v{T}")
        a(f"v_cvt_pk_bf16_f32 v{T}, v{T}, v{T}")
        a(f"v_lshlrev_b32 v{FG}, 16, v{T}")
        a(f"v_mov_b32 v{FG+2}, v{FG}")
        a(f"v_permlane32_swap_b32 v{FG}, v{FG+2}")

    def tab_entry(self, r, dst, idx, add):
        r(f"v_cmp_eq_u32 vcc, 0, v{idx}")
        r(f"v_add_u32 v{dst}, {add}, v{idx}")
        r(f"v_mul_u32_u24 v{dst}, 640, v{dst}")
        r(f"v_add_u32 v{dst}, v{self.VP}, v{dst}")
        r(f"v_cndmask_b32 v{dst}, v{dst}, v{self.VP}, vcc")

    def tab_rd(self, r, dst, va, off, tag):
        for n in range(5):
            r(f"ds_read_b64 {v2(dst+2*n)}, v{va} offset:{off+128*n}", tag=tag)

    def shadow(self):
        L1, L2, WQ, V, MC, T, VP, Q = self.L1, self.L2, self.WQ, self.V, self.MC, self.T4, self.VP, self.Q
        S = {}
        r = self.rec()
        r(f"s_lshl_b32 s{sT0}, s{sW}, 2")
        r(f"s_sub_u32 s{sT0}, s{sTC}, s{sT0}")
        r(f"s_sub_u32 s{sT0}, s{sT0}, 1")
        r(f"v_sub_u32 v{T}, s{sT0}, v{Q}")
        r(f"v_cmp_le_i32 {sp(sT2)}, 0, v{T}")
        r(f"v_max_i32 v{T}, 0, v{T}")
        r(f"v_and_b32 v{T+1}, 3, v{T}")
        r(f"v_lshrrev_b32 v{T}, 2, v{T}")
        self.tab_entry(r, 226, T + 1, 9)
        S[2] = r
        r = self.rec()
        self.tab_entry(r, 227, T, 12)
        self.tab_entry(r, 228, Q, 3)
        r(f"v_mov_b32 v{T}, s{sW}")
        S[3] = r
        r = self.rec()
        self.tab_entry(r, 229, T, 6)
        r(f"v_and_b32 v230, 1, v{Q}")
        r(f"v_mul_u32_u24 v230, {4*640}, v230")
        r(f"v_add_u32 v230, v{VP}, v230")
        S[4] = r
        r = self.rec()
        r(f"v_sub_u32 v{T}, 3, v{Q}")
        self.tab_entry(r, T + 2, T, 3)
        self.tab_rd(r, WQ, T + 2, 0, "t1")
        S[5] = r
        r = self.rec()
        self.tab_rd(r, L2, VP, 2 * 640, "t1")
        self.tab_rd(r, L1, VP, 1 * 640, "t1")
        S[6] = r
        r = self.rec()
        r(f"v_and_b32 v2, 15, v0")
        r(f"v_lshlrev_b32 v1, 3, v2")
        r(f"v_lshlrev_b32 v2, 4, v2")
        r(f"s_lshl_b32 s{sT1}, s{sW}, 7")
        r(f"s_add_u32 s{sT1}, s{sT1}, {PART1}")
        r(f"v_add_u32 v1, s{sT1}, v1")
        r(f"v_lshrrev_b32 v7, 1, v{Q}")
        r(f"v_lshl_add_u32 v4, v7, 2, v1")
        r(f"v_add_u32 v4, 384, v4")
        r(f"v_and_b32 v6, 1, v{Q}")
        r(f"v_mul_u32_u24 v3, 896, v6")
        r(f"v_add_u32 v3, v3, v4")
        S[18] = r
        r = self.rec()
        r(f"s_lshr_b32 s{sT0}, s{sW}, 1")
        r(f"s_lshl_b32 s{sT0}, s{sT0}, 8")
        r(f"s_and_b32 s{sT1}, s{sW}, 1")
        r(f"s_lshl_b32 s{sT1}, s{sT1}, 3")
        r(f"s_add_u32 s{sT0}, s{sT0}, s{sT1}")
        r(f"s_add_u32 s{sT0}, s{sT0}, {PART2}")
        r(f"v_lshl_add_u32 v15, v7, 2, v2")
        r(f"v_add_u32 v15, s{sT0}, v15")
        r(f"v_lshl_add_u32 v14, v6, 9, v15")
        r(f"v_add_u32 v16, {PART2}, v2")
        r(f"v_mul_u32_u24 v17, 1280, v{Q}")
        r(f"v_add_u32 v17, v17, v2")
        r(f"v_lshlrev_b32 v6, 6, v6")
        r(f"v_xor_b32 v6, v6, v2")
        r(f"v_lshl_add_u32 v5, v{Q}, 8, v6")
        r(f"v_lshl_add_u32 v{T}, v{Q}, 2, s{sW}")
        r(f"v_min_u32 v{T+1}, 4, v{T}")
        r(f"v_lshl_add_u32 v{T+2}, v{T+1}, 7, v{VP}")
        r(f"ds_read_b64 {v2(T+2)}, v{T+2} offset:{7*640}", tag="t1")
        r(f"v_lshl_add_u32 v6, v{T}, 8, v2")
        r(f"v_mul_u32_u24 v7, 896, v{T+1}")
        r(f"v_add_u32 v7, v7, v{VP}")
        r(f"v_add_u32 v7, {PART1 + 384 - TAB}, v7")
        S[19] = r
        return S

    def htouch(self, k):
        a = self.a
        return Op(lambda: (a("s_mov_b32 exec_hi, 0xff"),
                           a(f"buffer_load_dword a{248+k}, v239, {srd(SWS)}, s{(sHRE, sHIM)[k]} offen", tag="pf"),
                           a("s_mov_b64 exec, -1")), dma=True)

    def gemm1(self):
        a, cfg = self.a, self.cfg
        a.wait(vm="st0")
        a("s_barrier")
        self.stamp("st0")
        run(self.frag_reads(0))
        S = self.shadow()
        queue = list(self.dma_stage(2)) + list(self.dma_stage(3))

        nu = 0
        held = []
        for h in range(20):
            s, u = h >> 1, h & 1
            if u == 1:
                if s < 9:
                    assert all(o.tag != f"st{s+1}" for o in queue)
                    a.wait(vm=f"st{s+1}", lgkm=0)
                else:
                    a.wait(lgkm=0)
                a("s_barrier")
            else:
                a.wait(lgkm=0)
            if h in (2, 4, 8, 12, 16):
                self.stamp(f"gh{h}")
            streams = []
            if h < 19:
                streams.append((self.frag_reads(h + 1), 0, 1))
            if u == 1:
                if s + 4 <= 9:
                    queue += self.dma_stage(s + 4)
                    if s + 4 == cfg.touch:
                        queue.append(Op(lambda: (a("s_mov_b64 exec, 0x1f"),
                                                 a(f"global_load_dword a250, v240, {sp(pWS)}", tag="pf"),
                                                 a("s_mov_b64 exec, -1")), dma=True))
                    if s + 4 == cfg.htouch:
                        queue.append(Op(lambda: (a("v_and_b32 v239, 63, v0"), a("v_lshrrev_b32 v238, 3, v239"), a("v_and_b32 v239, 7, v239"),
                                                 a("v_lshlrev_b32 v239, 7, v239"), a("v_lshl_add_u32 v239, v238, 11, v239"))))
                        queue.append(self.htouch(0))
                        if cfg.ht2 < 0:
                            queue.append(self.htouch(1))
                    if s + 4 == cfg.pf_at:
                        queue.append(Op(lambda: (a("s_mov_b64 exec, 0x1ffffff"),
                                                 a(f"global_load_dword a255, v242, {sp(sM)}", tag="pf"),
                                                 a("s_mov_b64 exec, -1")), dma=True, tag="pfc"))
                else:
                    for _ in range(4):
                        (held if cfg.hold_c else queue).extend(self.c_dma(nu))
                        nu += 1
            if h == cfg.ht2 and cfg.htouch:
                queue.append(self.htouch(1))
            pace = 5 if cfg.hold_c else cfg.pace0 if h < cfg.pace0_h else cfg.pace if h < cfg.pace_h else cfg.pace_c
            now, k = [], 0
            while queue and k < pace:
                o = queue.pop(0)
                now.append(o)
                k += o.dma
            left = {o.tag for o in queue}
            assert not (h >= 17 and any(t and t.startswith("st") for t in left))
            if now:
                streams.append((now, cfg.dma_phase, min(19.0 / len(now), cfg.maxstep)))
            if h in S:
                ops = S[h]
                streams.append((ops, 0, 19.0 / len(ops)))
            F = 100 + 48 * (h & 1)
            mf = []
            for k in range(10):
                for m in range(2):
                    d = self.acc(m, k >> 1, k & 1)
                    mf.append(f"v_mfma_f32_16x16x32_bf16 {v4(d)}, {v4(F+4*m)}, {v4(F+8+4*k)}, {'0' if h == 0 else v4(d)}")
            self.weave(mf, streams)
        self.cq = self.c_stream(queue + held)
        self.stamp("gemm1")

    def swap_reduce(self, Z, va, o1, o2):
        a = self.a
        for n in range(5):
            a(f"v_permlane32_swap_b32 v{Z+2*n}, v{Z+2*n+1}")
        for n in (4, 0, 1, 2, 3):
            a(f"v_add_f32 v{Z+2*n}, v{Z+2*n}, v{Z+2*n+1}")
            if n == 0:
                a(f"v_mov_b32 v{Z+9}, v{Z+8}")
        a(f"v_permlane16_swap_b32 v{Z+8}, v{Z+9}")
        a(f"v_permlane16_swap_b32 v{Z}, v{Z+2}")
        a(f"v_permlane16_swap_b32 v{Z+4}, v{Z+6}")
        a(f"v_add_f32 v{Z+8}, v{Z+8}, v{Z+9}")
        a(f"v_add_f32 v{Z}, v{Z}, v{Z+2}")
        a(f"v_add_f32 v{Z+4}, v{Z+4}, v{Z+6}")
        a(f"ds_write_b32 v{va+1}, v{Z+8} offset:{o2}", tag="pw")
        a(f"ds_write_b32 v{va}, v{Z}", tag="pw")
        a(f"ds_write_b32 v{va}, v{Z+4} offset:{o1}", tag="pw")

    def scan(self):
        a, cfg = self.a, self.cfg
        L1, L2, WQ, V, MC, T, VP, Q, U, FG = self.L1, self.L2, self.WQ, self.V, self.MC, self.T4, self.VP, self.Q, self.U, self.FG
        E = 180
        Z = 100
        TA, TB = 110, 114
        PL = T + 2
        a.wait(lgkm="t1")
        a.bg(self.c_take(cfg.k1), cfg.p1)
        for n in range(5):
            ur, ui = self.acc(0, n, 0), self.acc(0, n, 1)
            er, ei = ur, ui
            for k in range(1, 4):
                X = TA if k & 1 else TB
                a(f"v_pk_fma_f32 {v2(X)}, {v2(er)}, {v2(L2+2*n)}, {v2(ur+2*k)} op_sel_hi:[1,0,1]")
                a(f"v_pk_fma_f32 {v2(X+2)}, {v2(ei)}, {v2(L2+2*n)}, {v2(ui+2*k)} op_sel_hi:[1,0,1]")
                a(f"v_pk_fma_f32 {v2(X)}, {v2(ei)}, {v2(L2+2*n)}, {v2(X)} op_sel:[0,1,0] op_sel_hi:[1,1,1] neg_lo:[1,0,0] neg_hi:[1,0,0]")
                a(f"v_pk_fma_f32 {v2(X+2)}, {v2(er)}, {v2(L2+2*n)}, {v2(X+2)} op_sel:[0,1,0] op_sel_hi:[1,1,1]")
                er, ei = X, X + 2
            a(f"v_fma_f32 v{E+2*n}, v{L1+2*n}, v{er}, v{er+1}")
            a(f"v_fma_f32 v{E+2*n+1}, v{L1+2*n}, v{ei}, v{ei+1}")
            a(f"v_fma_f32 v{E+2*n}, -v{L1+2*n+1}, v{ei}, v{E+2*n}")
            a(f"v_fma_f32 v{E+2*n+1}, v{L1+2*n+1}, v{er}, v{E+2*n+1}")
            cmul(a, Z + 2 * n, E + 2 * n, WQ + 2 * n)
        a.bg_flush()
        if cfg.ht2 == 20 and cfg.htouch:
            self.htouch(1)()
        self.swap_reduce(Z, 3, 1792, 3584)
        PG = 114
        CF, L8 = L2, WQ
        a(f"v_cmp_gt_u32 vcc, 5, v{T}")
        a(f"v_mov_b32 v{PG+1}, s{sTAG}")
        a(f"v_mov_b32 v{PG+3}, s{sTAG}")
        a(f"s_mov_b64 {sp(sM)}, {sp(sT2)}")
        a.wait(lgkm=0)
        a("s_barrier")
        for k in range(4):
            a(f"ds_read_b64 {v2(120+2*k)}, v7 offset:{128*k}", tag="pr")
        r = self.rec()
        self.tab_rd(r, CF, VP, 3 * 640, "t2")
        self.tab_rd(r, L8, VP, 4 * 640, "t2")
        run(r)
        a(f"s_and_saveexec_b64 {sp(sT2)}, vcc")
        a.wait(lgkm="pr")
        cfma(a, 128, 120, PL, 122)
        cfma(a, 130, 128, PL, 124)
        cfma(a, 128, 130, PL, 126)
        a(f"v_mov_b32 v{PG}, v128")
        a(f"v_mov_b32 v{PG+2}, v129")
        a(f"buffer_store_dwordx4 {v4(PG)}, v6, {srd(SWS)}, s{sPUB} offen sc1", tag="pub")
        a(f"s_mov_b64 exec, -1")
        self.stamp("pub")

        if cfg.ht2 == 21 and cfg.htouch:
            self.htouch(1)()
        if cfg.cpf >= 2:
            run(self.code_prefetch(132, 2))
        run(self.c_take(cfg.k2a))
        a.wait(lgkm="t2")
        a.bg(self.c_take(cfg.k2), cfg.p2)
        for n in range(5):
            for j in range(8):
                ur, ui = self.acc(0, n, 0) + (j & ~1), self.acc(0, n, 1) + (j & ~1)
                o = j & 1
                d = U + 16 * n + 2 * j
                a(f"v_pk_mul_f32 {v2(d)}, {v2(CF+2*n)}, {v2(ur)} op_sel:[0,{o}] op_sel_hi:[1,{o}]")
                a(f"v_pk_fma_f32 {v2(d)}, {v2(CF+2*n)}, {v2(ui)}, {v2(d)} op_sel:[1,{o},0] op_sel_hi:[0,{o},1] neg_lo:[1,0,0]")
        self.stamp("coef")
        A_, P_, C_, MU, L8Q, L32, Y0, Y1 = 20, 30, 40, 50, 60, 70, 80, 90
        SL, G = 180, 40
        r = self.rec()
        self.tab_rd(r, MU, 230, 0, "t3")
        self.tab_rd(r, L32, VP, 7 * 640, "t3")
        for n in range(5):
            r(f"ds_read_b64 {v2(Y0+2*n)}, v1 offset:{896*n}", tag="t3")
        for n in range(5):
            r(f"ds_read_b64 {v2(Y1+2*n)}, v1 offset:{896*n+128}", tag="t3")
        self.tab_rd(r, L8Q, 228, 0, "t3")
        run(r)
        for n in range(5):
            a(f"v_mov_b64 {v2(A_+2*n)}, {v2(E+2*n)}")
        for n in range(5):
            a(f"v_permlane16_swap_b32 v{A_+2*n}, v{E+2*n}")
            a(f"v_permlane16_swap_b32 v{A_+2*n+1}, v{E+2*n+1}")
        for n in range(5):
            cfma(a, P_ + 2 * n, A_ + 2 * n, L8 + 2 * n, E + 2 * n)
        for n in range(5):
            a(f"ds_read_b64 {v2(L8+2*n)}, v1 offset:{896*n+256}", tag="t4")
        for n in range(5):
            a(f"v_mov_b64 {v2(C_+2*n)}, {v2(P_+2*n)}")
        for n in range(5):
            a(f"v_permlane32_swap_b32 v{C_+2*n}, v{P_+2*n}")
            a(f"v_permlane32_swap_b32 v{C_+2*n+1}, v{P_+2*n+1}")
        per = a.bg_pause()
        a("s_mov_b32 exec_hi, 0")
        for n in range(5):
            a(f"v_mov_b64 {v2(C_+2*n)}, 0")
        a("s_mov_b32 exec_lo, 0xffff")
        a("s_mov_b32 exec_hi, 0xffff")
        for n in range(5):
            a(f"v_mov_b64 {v2(A_+2*n)}, 0")
        a("s_mov_b64 exec, -1")
        a.bg_period = per
        a.wait(lgkm="t3")
        for n in range(5):
            cfma(a, P_ + 2 * n, C_ + 2 * n, MU + 2 * n, A_ + 2 * n)
            cfma(a, Y1 + 2 * n, Y0 + 2 * n, L32 + 2 * n, Y1 + 2 * n)
        for k in range(0, 20, 2):
            a(f"v_mov_b64 {v2(G+k)}, 0")
        a.bg_flush()
        a(f"s_mov_b32 s{sSPIN}, {cfg.spin}")

        def g_loads(tag):
            for n in range(5):
                a(f"buffer_load_dwordx4 {v4(G+4*n)}, v17, {srd(SWS)}, s{sGAT} offen offset:{256*n} sc1", tag=tag, counted=False)

        def g_check():
            a(f"v_min3_u32 v{T}, v{G+1}, v{G+3}, v{G+5}")
            a(f"v_max3_u32 v{T+1}, v{G+1}, v{G+3}, v{G+5}")
            for k in (7, 11, 15):
                a(f"v_min3_u32 v{T}, v{T}, v{G+k}, v{G+k+2}")
                a(f"v_max3_u32 v{T+1}, v{T+1}, v{G+k}, v{G+k+2}")
            a(f"v_min_u32 v{T}, v{T}, v{G+19}")
            a(f"v_max_u32 v{T+1}, v{T+1}, v{G+19}")
            a(f"v_cmp_ne_u32 vcc, s{sTAG}, v{T}")
            a(f"v_cmp_ne_u32 {sp(sT2)}, s{sTAG}, v{T+1}")
            a(f"s_or_b64 vcc, vcc, {sp(sT2)}")
        self.stamp("w1done")
        a(f"s_mov_b64 exec, {sp(sM)}")
        a("s_cbranch_execz L_g0")
        g_loads("g1")
        a("L_g0:")
        a("s_mov_b64 exec, -1")
        a.bg(self.c_take(cfg.k3), cfg.p3)
        r = self.rec()
        self.tab_rd(r, A_, 226, 0, "t5")
        self.tab_rd(r, Y0, 227, 0, "t5")
        run(r)
        a.wait(lgkm="t4")
        for n in range(5):
            cfma(a, L8 + 2 * n, Y1 + 2 * n, L32 + 2 * n, L8 + 2 * n)
        r = self.rec()
        self.tab_rd(r, Y1, 229, 0, "t6")
        run(r)
        for n in range(5):
            cfma(a, P_ + 2 * n, L8 + 2 * n, L8Q + 2 * n, P_ + 2 * n)
            cmul(a, SL + 2 * n, P_ + 2 * n, CF + 2 * n)
        a.wait(lgkm="t5")
        for n in range(5):
            cmul(a, V + 2 * n, A_ + 2 * n, Y0 + 2 * n)
        a.wait(lgkm="t6")
        for n in range(5):
            cmul(a, A_ + 2 * n, L8Q + 2 * n, Y1 + 2 * n)
            cmul(a, L8 + 2 * n, A_ + 2 * n, CF + 2 * n)
        MC = L8
        a.bg_flush()
        if cfg.fast:
            a(f"v_and_b32 v94, 7, v0")
            a(f"v_lshlrev_b32 v94, 7, v94")
            a(f"s_lshl_b32 s{sT0}, s{sTC}, 1")
            a(f"s_add_u32 s{sT0}, s{sT0}, s{sBR}")
            a(f"s_lshl_b32 s{sT0}, s{sT0}, 10")
            a(f"s_add_u32 s{sT0}, s{sT0}, {WS_XCC}")
            a(f"buffer_load_dwordx2 {v2(96)}, v94, {srd(SWS)}, s{sT0} offen sc1", tag="xc")
        self.gate_loads(90)
        self.skip_loads(90)
        a.wait(vm="g1")
        a(f"s_mov_b64 exec, {sp(sM)}")
        a("s_cbranch_execz L_got")
        g_check()
        a("s_cbranch_vccz L_got")
        a("L_poll1:")
        g_loads("g1b")
        a(f"s_sub_u32 s{sSPIN}, s{sSPIN}, 1")
        a("s_waitcnt vmcnt(0)", slow=True)
        g_check()
        a(f"s_cmp_eq_u32 s{sSPIN}, 0")
        a("s_cbranch_scc1 L_got")
        a("s_cbranch_vccnz L_poll1")
        a("L_got:")
        a("s_mov_b64 exec, -1")
        self.stamp("got")
        Z2 = 60
        for n in range(5):
            a(f"v_pk_mul_f32 {v2(Z2+2*n)}, {v2(V+2*n)}, {v2(G+4*n)} op_sel_hi:[1,0]")
            a(f"v_pk_fma_f32 {v2(Z2+2*n)}, {v2(V+2*n)}, {v2(G+4*n+2)}, {v2(Z2+2*n)} op_sel:[1,0,0] op_sel_hi:[0,0,1] neg_lo:[1,0,0]")
        self.swap_reduce(Z2, 14, 1024, 2048)
        a(f"v_mov_b32 v{T}, 0")
        if cfg.fast:
            a.wait(vm="xc")
            a(f"v_cmp_eq_u32 vcc, s{sLATE}, v96")
            a(f"v_cmp_eq_u32 {sp(sT2)}, s{sTAG}, v97")
            a(f"s_and_b64 vcc, vcc, {sp(sT2)}")
            a(f"s_cmp_eq_u64 vcc, exec")
            a(f"s_cselect_b32 s{sLATE}, {0 if cfg.fast == 2 else 1}, 0")
        a(f"s_cmp_eq_u32 s{sLATE}, 0")
        a.wait(lgkm=0)
        a("s_barrier")
        for n in range(5):
            a(f"ds_read_b128 {v4(20+8*n)}, v16 offset:{512*n}", tag=f"cr{n}")
            a(f"ds_read_b128 {v4(24+8*n)}, v16 offset:{512*n+256}", tag=f"cr{n}")
        if cfg.split or cfg.fast:
            a("s_cbranch_scc1 L_late")
        pol = ";POL" if cfg.fast else "sc1"
        k4, k5 = self.c_take(cfg.k4), self.c_take(999)

        def stores(n):
            w0 = 20 + 8 * n
            for part, so in enumerate((sHRE, sHIM)):
                yield f"buffer_store_dwordx4 {v4(w0+4*part)}, v5, {srd(SWS)}, s{so} offen offset:{2048*(n & 1)} {pol}"

        def step(n):
            if n in (1, 3):
                a(f"s_add_u32 s{sHRE}, s{sHRE}, 4096")
                a(f"s_add_u32 s{sHIM}, s{sHIM}, 4096")

        def pass2(late):
            a.bg(list(k4), cfg.p4)
            for n in range(5):
                w0 = 20 + 8 * n
                a.wait(lgkm=f"cr{n}")
                a(f"v_pk_add_f32 {v2(w0)}, {v2(w0)}, {v2(w0+2)}")
                a(f"v_pk_add_f32 {v2(w0+4)}, {v2(w0+4)}, {v2(w0+6)}")
                a(f"v_pk_add_f32 {v2(w0)}, {v2(w0)}, {v2(w0+4)}")
                cfma(a, SL + 2 * n, w0, MC + 2 * n, SL + 2 * n)
                prev = SL + 2 * n
                for j in range(8):
                    d = U + 16 * n + 2 * j
                    cfma(a, d, prev, L1 + 2 * n, d)
                    prev = d
                st = list(stores(n))
                for k in range(4):
                    d = U + 16 * n + 4 * k
                    a(f"v_cvt_pk_bf16_f32 v{w0+k}, v{d}, v{d+2}")
                if not late:
                    a(st[0], tag="hst")
                for k in range(4):
                    d = U + 16 * n + 4 * k
                    a(f"v_cvt_pk_bf16_f32 v{w0+4+k}, -v{d+1}, -v{d+3}")
                if not late:
                    a(st[1], tag="hst")
                    step(n)
            a.bg_flush()
            def stamp(name):
                if not late:
                    self.stamp(name)
                elif cfg.prof and name in self.stamp_names:
                    a("s_memtime %s" % sp(STAMP_REGS[self.stamp_names.index(name)]))
            stamp("hst")
            if late or not cfg.c_after:
                a.bg(list(k5), cfg.p5)
            self.gate(90)
            self.gemm2_setup()
            self.skip_terms()
            a.bg_flush()
            if late or cfg.dr_early:
                for u in range(9, 25):
                    run(self.c_drain(u))
            stamp("pre")
            if late:
                if cfg.split == 2:
                    a("s_barrier")
                stamp("bar")
                for n in range(5):
                    for st in stores(n):
                        a(st, tag="hst")
                    step(n)
            stamp("lst")
            a.wait(vm="hst")
            stamp("ack")
            a(f"s_mov_b64 exec, {0xff if cfg.full else 1}")
            a(f"buffer_store_dwordx4 {v4(FG)}, v{self.VH}, {srd(SWS)}, s{sFLG} offen {pol}", tag="flag")
            a("s_mov_b64 exec, -1")
            if cfg.split == 2 and not late:
                a("s_barrier")
                stamp("bar")
            if cfg.c_after and not late:
                run(k5)
            if not (late or cfg.dr_early):
                for u in range(9, 25):
                    run(self.c_drain(u))
        first = len(a.ins)
        pass2(False)
        if cfg.fast:
            self.tail = ["L_late:"] + [x.text.replace(";POL", "sc1") for x in a.ins[first:]] + ["s_branch L_join"]
            a("L_join:")
        elif cfg.split:
            main = a.ins[first:]
            del a.ins[first:]
            pass2(True)
            self.tail = ["L_late:"] + [x.text for x in a.ins[first:]] + ["s_branch L_join"]
            a.ins[first:] = main
            a("L_join:")
        self.stamp("flag")

    ACCA, ACCB = 20, 100
    HF = 180
    VT = 212
    VH = 216
    GG = 218
    XO, DO, OO, EW, ER, EW2, PO, BP, PO2 = 1, 2, 3, 4, 6, 7, 8, 9, 217
    SPK = 222
    PV = 242

    def gemm2_setup(self):
        a = self.a
        VT, VH = self.VT, self.VH
        T0, T1, T2, T3 = 14, 15, 16, 17
        a(f"v_bfe_u32 v{T0}, v0, 2, 2")
        a(f"v_bfe_u32 v{T1}, v0, 4, 1")
        a(f"v_lshl_add_u32 v{T0}, v{T1}, 3, v{T0}")
        a(f"v_bfe_u32 v{T1}, v0, 1, 1")
        a(f"v_lshlrev_b32 v{T2}, 2, v{T1}")
        a(f"v_xor_b32 v{T0}, v{T0}, v{T2}")
        a(f"v_lshlrev_b32 v{T0}, 4, v{T0}")
        a(f"v_lshl_add_u32 v{T0}, v{T1}, 8, v{T0}")
        a(f"v_and_b32 v{T1}, 1, v0")
        a(f"v_lshl_add_u32 v{T0}, v{T1}, 3, v{T0}")
        a(f"v_bfe_u32 v{T1}, v0, 5, 1")
        a(f"v_lshl_add_u32 v{T0}, v{T1}, 11, v{T0}")
        a(f"v_add_u32 v{VT}, s{sBW}, v{T0}")
        a(f"v_xor_b32 v{VT+1}, 64, v{VT}")
        a(f"v_add_u32 v{VT+2}, {2*SLOT}, v{VT}")
        a(f"v_add_u32 v{VT+3}, {2*SLOT}, v{VT+1}")
        a(f"v_and_b32 v{VH}, 63, v0")
        a(f"v_lshlrev_b32 v{VH}, 4, v{VH}")
        a(f"v_bfe_u32 v{T0}, v0, 2, 4")
        a(f"v_and_b32 v{T1}, 3, v0")
        a(f"v_lshlrev_b32 v{self.PO2}, 7, v{T0}")
        a(f"v_bfe_u32 v{T2}, v0, 4, 2")
        a(f"v_bfe_u32 v{T3}, v0, 3, 1")
        a(f"v_lshl_add_u32 v{T2}, v{T2}, 2, v{T3}")
        a(f"s_xor_b32 s{sT0}, s{sBR}, 1")
        a(f"s_lshl_b32 s{sT0}, s{sT0}, 8")
        a(f"v_lshl_add_u32 v{self.PO}, v{T2}, 7, s{sT0}")
        a(f"v_lshlrev_b32 v{self.DO}, 3, v{T1}")
        a(f"v_add_u32 v{self.DO}, {LDK}, v{self.DO}")
        a(f"v_lshlrev_b32 v{self.OO}, 1, v231")
        a(f"v_bfe_u32 v{T2}, v{T0}, 1, 2")
        a(f"v_xor_b32 v{T2}, v{T2}, v{T1}")
        a(f"v_lshlrev_b32 v{T2}, 4, v{T2}")
        a(f"v_mul_u32_u24 v{T3}, 320, v{T0}")
        a(f"s_mul_i32 s{sT1}, s{sW}, {SLOT}")
        a(f"s_add_u32 s{sT1}, s{sT1}, 4096")
        a(f"v_add3_u32 v{self.ER}, v{T2}, v{T3}, s{sT1}")
        a(f"s_and_b32 s{sT1}, s{sW}, 1")
        a(f"s_lshl_b32 s{sT1}, s{sT1}, 7")
        a(f"v_lshrrev_b32 v{T2}, 1, v{T0}")
        a(f"v_lshl_add_u32 v{self.BP}, v{T2}, 4, s{sT1}")
        a(f"v_and_b32 v{T0}, 15, v0")
        a(f"v_bfe_u32 v{T1}, v0, 4, 2")
        a(f"v_bfe_u32 v{T2}, v{T0}, 1, 2")
        a(f"v_xor_b32 v{T2}, v{T2}, v{T1}")
        a(f"v_lshlrev_b32 v{T2}, 4, v{T2}")
        a(f"v_mul_u32_u24 v{T3}, 320, v{T0}")
        a(f"s_add_u32 s{sT1}, s{sBW}, 4096")
        a(f"v_add3_u32 v{self.EW}, v{T2}, v{T3}, s{sT1}")
        a(f"v_add_u32 v{self.EW2}, {2*SLOT}, v{self.EW}")

    def h_dma(self, s):
        r = self.rec()
        base = sHA if s < 10 else sHB
        if s in (0, 10):
            r(f"s_add_u32 s{sK}, s{base}, s{sROT}")
            r(f"s_add_u32 s{sEND}, s{base}, 40960")
        r(f"s_add_u32 m0, s{sBW}, {(s % 4)*SLOT}")
        for b in range(4):
            if self.cfg.abl == 1 and s >= 4 and b > 0:
                continue
            if self.cfg.abl == 2 and s >= 4:
                r(f"buffer_load_dwordx4 v{self.VH}, {srd(SWS)}, s{sHA} offen offset:{1024*b} {self.cfg.hpol} lds", tag=f"h{s}", strict=b == 0)
                continue
            r(f"buffer_load_dwordx4 v{self.VH}, {srd(SWS)}, s{sK} offen offset:{1024*b} {self.cfg.hpol} lds", tag=f"h{s}", strict=b == 0)
        if s not in (9, 19):
            r(f"s_add_u32 s{sK}, s{sK}, 4096")
            if s & 1 and self.cfg.rot:
                r.group(f"s_cmp_eq_u32 s{sK}, s{sEND}", f"s_cselect_b32 s{sK}, s{base}, s{sK}")
        return r

    def h_reads(self, s):
        r = self.rec()
        p = s % 4
        f, F = self.h_buf(s)
        for mt in range(4):
            for rho in range(2):
                off = (p & 1) * SLOT + (mt >> 1) * 1024 + (mt & 1) * 512
                d = F + 4 * mt + 2 * rho
                r(f"ds_read_b64_tr_b16 {f}[{d}:{d+1}], v{self.VT + 2*(p >> 1) + rho} offset:{off}", tag=f"hr{s}")
        return r

    def h_buf(self, s):
        if s % 10 >= 8:
            return "a", 200 + 16 * (s % 10 - 8)
        return "v", self.HF + 16 * (s & 1)

    def part_writes(self, base):
        r = self.rec()
        for nt in range(5):
            for mt in range(4):
                r(f"ds_write_b128 v{self.EW2 if mt >> 1 else self.EW}, {v4(base + 16*nt + 4*mt)} offset:{(mt & 1)*SLOT + 64*nt}", tag="ew")
        return r

    def part_reads(self, base, tag):
        r = self.rec()
        for i in range(5):
            for wp in range(4):
                r(f"ds_read_b128 {v4(base+16*i+4*wp)}, v{self.ER} offset:{wp*PIECE + 64*i}", tag=f"{tag}{i}")
        return r

    def gemm2(self):
        a, cfg = self.a, self.cfg
        GG, PV, SPK, T = self.GG, self.PV, self.SPK, self.T4
        A, B = self.ACCA, self.ACCB
        if cfg.cpf >= 3:
            run(self.code_prefetch(140, 3))
        a(f"s_mov_b32 s{sSPIN}, {cfg.spin}")

        def p_load(tag, po=self.PO, counted=True):
            a(f"buffer_load_dwordx4 {v4(PV)}, v{po}, {srd(SWS)}, s{sPOL} offen sc1", tag=tag, counted=counted)

        def p_check():
            a(f"v_cmp_ne_u32 vcc, s{sTAG}, v{PV+1}")
            a(f"v_cmp_ne_u32 {sp(sT2)}, s{sTAG}, v{PV+3}")
            a(f"s_or_b64 vcc, vcc, {sp(sT2)}")
        self.stamp("w3done")
        po1 = self.PO if cfg.split else self.PO2
        p_load("g2", po1)
        a.wait(vm=0)
        p_check()
        a("s_cbranch_vccz L_got2")
        a("L_poll2:")
        if cfg.nap:
            a(f"s_sleep {cfg.nap}")
        p_load("g2b", po1)
        a(f"s_sub_u32 s{sSPIN}, s{sSPIN}, 1")
        a.wait(vm=0)
        p_check()
        a(f"s_cmp_eq_u32 s{sSPIN}, 0")
        a("s_cbranch_scc1 L_got2")
        a("s_cbranch_vccnz L_poll2")
        a("L_got2:")
        a.wait(lgkm=0)
        self.stamp("got2")
        for s in range(4):
            run(self.h_dma(s))
        a(f"s_mul_i32 s{sT0}, s{sXS}, 5120")
        a(f"s_add_u32 s{sT0}, s{sT0}, {WS_XCH}")
        a(f"s_mul_i32 s{sT1}, s{sXR}, 5120")
        a(f"s_add_u32 s{sT1}, s{sT1}, {WS_XCH}")
        a(f"s_lshl_b32 s{sXS}, s{sXS}, 7")
        a(f"s_add_u32 s{sXS}, s{sXS}, {WS_XF}")
        a(f"s_lshl_b32 s{sXR}, s{sXR}, 7")
        a(f"s_add_u32 s{sXR}, s{sXR}, {WS_XF}")
        a(f"s_mov_b32 s{sPUB}, s{sT0}")
        a(f"s_mov_b32 s{sGAT}, s{sT1}")
        a(f"s_add_u32 s{sHRE}, s{sT0}, 4096")
        a(f"s_add_u32 s{sHIM}, s{sT1}, 4096")
        a(f"s_mov_b32 s{sSPIN}, {cfg.spin}")
        a.wait(vm="h0")
        self.stamp("h0")
        run(self.h_reads(0))
        rb = self.rec()
        rb(f"ds_bpermute_b32 v{T}, v{self.BP}, v{PV}", tag="bp")
        rb(f"ds_bpermute_b32 v{T+1}, v{self.BP}, v{PV+2}", tag="bp")
        r0 = self.rec()
        r0.wait(lgkm="bp")
        r0(f"v_and_b32 v{T+2}, 4, v0")
        r0(f"v_cmp_ne_u32 vcc, 0, v{T+2}")
        r0(f"v_cndmask_b32 v{GG}, v{T}, v{T+1}, vcc", strict=True)
        r0(f"v_sub_f32 v{GG+1}, 1.0, v{GG}")
        r0(f"v_cvt_pk_bf16_f32 v{GG+1}, v{GG+1}, v{GG+1}")
        r0(f"v_lshlrev_b32 v{GG+1}, 16, v{GG+1}")
        r0.group(f"s_cmp_eq_u32 s{sBR}, 1", "s_cselect_b64 vcc, -1, 0")
        r0(f"v_cndmask_b32 v{GG+2}, v{GG}, v{GG+1}, vcc", strict=True)
        r0(f"v_cndmask_b32 v{GG+3}, v{GG+1}, v{GG}, vcc")
        r0(f"v_mov_b32 v{T+2}, s{sTAG}")
        r0(f"v_mov_b32 v{T+3}, 0")
        rs = self.rec()
        for i in range(5):
            b = A + 16 * i
            if cfg.pks:
                for e in (0, 2):
                    rs(f"v_pk_add_f32 {v2(b+e)}, {v2(b+e)}, {v2(b+4+e)}")
                    rs(f"v_pk_add_f32 {v2(b+8+e)}, {v2(b+8+e)}, {v2(b+12+e)}")
                for e in (0, 2):
                    rs(f"v_pk_add_f32 {v2(b+e)}, {v2(b+e)}, {v2(b+8+e)}")
            else:
                for e in range(4):
                    rs(f"v_add_f32 v{b+e}, v{b+e}, v{b+4+e}")
                    rs(f"v_add_f32 v{b+8+e}, v{b+8+e}, v{b+12+e}")
                for e in range(4):
                    rs(f"v_add_f32 v{b+e}, v{b+e}, v{b+8+e}")
            so, off = (sPUB, 1024 * i) if i < 4 else (sHRE, 0)
            rs(f"buffer_store_dwordx4 {v4(b)}, v{self.VH}, {srd(SWS)}, s{so} offen offset:{off} sc1", tag="xs")
        rk = self.rec()
        for i in range(5):
            sk, t = A + 16 * i + 4, A + 16 * i + 8
            for b in range(2):
                s0 = SPK + 4 * i + 2 * b
                rk(f"v_lshlrev_b32 v{t}, 16, v{s0}")
                rk(f"v_and_b32 v{t+1}, 0xffff0000, v{s0}")
                rk(f"v_lshlrev_b32 v{t+2}, 16, v{s0+1}")
                rk(f"v_and_b32 v{t+3}, 0xffff0000, v{s0+1}")
                for e in range(4):
                    rk(f"v_mul_f32 v{sk+e}, v{GG}, v{t+e}" if b == 0 else f"v_fmac_f32 v{sk+e}, v{GG+1}, v{t+e}")
        wa = self.part_writes(A)
        wb = self.part_writes(B)
        b1 = cfg.b1

        def mfmas(s, nt):
            kk = s % 10
            base = A if s < 10 else B
            f, F = self.h_buf(s)
            cr = 8 * (5 * (kk >> 1) + nt) + 4 * (kk & 1)
            return [f"v_mfma_f32_16x16x32_bf16 {v4(base+16*nt+4*mt)}, {v4(cr, 'a')}, {v4(F+4*mt, f)}, "
                    f"{'0' if kk == 0 else v4(base+16*nt+4*mt)}" for mt in range(4)]

        def xflag():
            a.wait(vm="xs")
            a(f"s_mov_b64 exec, {0xff if cfg.full else 1}")
            a(f"buffer_store_dwordx4 {v4(self.FG)}, v{self.VH}, {srd(SWS)}, s{sXS} offen sc1", tag="xf")
            a("s_mov_b64 exec, -1")

        for s in (0, 1, 2, 3, 4, 5, 6, 7, 10, 11, 12, 13, 14, 15, 16, 17):
            streams = []
            if s == b1:
                a.wait(vm=f"h{s+1}", lgkm=0)
                a("s_barrier")
            elif s == b1 + 1:
                a.wait(vm=f"h{s+1}", lgkm=0)
            else:
                a.wait(vm=f"h{s+1}", lgkm=f"hr{s}")
            if s == b1 + 3:
                a("s_barrier")
            if s == 10:
                self.stamp("passA")
            elif s > 0:
                self.stamp(f"s{s}")
            if s == cfg.tb_at:
                rt = self.rec()
                rt(f"s_and_b32 s{sT0}, s{sCG}, 7")
                rt(f"s_mul_i32 s{sT0}, s{sT0}, 5120")
                rt(f"s_add_u32 s{sT0}, s{sT0}, s{sHB}")
                rt(f"v_lshlrev_b32 v{self.PO}, 3, v{self.VH}")
                rt.append(Op(lambda: (a("s_mov_b32 exec_hi, 0xff"),
                                      a(f"buffer_load_dword a247, v{self.PO}, {srd(SWS)}, s{sT0} offen {cfg.hpol}", tag="pf"),
                                      a("s_mov_b64 exec, -1"))))
                streams.append((rt, 9, 2))
            if s == cfg.p2_at and cfg.split:
                p_load("g3", self.PO2)
            if s == 6 and cfg.split:
                a.wait(vm="g3")
                p_check()
                a("s_cbranch_vccz L_got4")
                a("L_poll4:")
                p_load("g3b", self.PO2, False)
                a(f"s_sub_u32 s{sSPIN}, s{sSPIN}, 1")
                a("s_waitcnt vmcnt(0)", slow=True)
                p_check()
                a(f"s_cmp_eq_u32 s{sSPIN}, 0")
                a("s_cbranch_scc1 L_got4")
                a("s_cbranch_vccnz L_poll4")
                a("L_got4:")
                a(f"s_mov_b32 s{sSPIN}, {cfg.spin}")
            if s == cfg.xf_at:
                xflag()
            streams.append((self.h_reads(s + 1), 0, 1))
            if s % 10 != 7:
                if s + 4 < 20:
                    streams.append((self.h_dma(s + 4), cfg.hd0, cfg.hds))
                if s == 6:
                    streams.append((rb, 10, 1))
                if 10 <= s < b1 or (s == 10 and wa):
                    streams.append((wa, 0, 3))
                    wa = []
                if s == b1:
                    assert not wa
                    streams.append((self.part_reads(A, "ra"), 0, 1))
                if s in (b1 + 1, b1 + 2):
                    half = len(rs) * 3 // 5 if s == b1 + 1 else len(rs)
                    now, rs = rs[:half], rs[half:]
                    streams.append((now, 0, 19.0 / len(now)))
                if b1 + 3 <= s and cfg.rk_in:
                    now, rk = rk[:cfg.rk_in], rk[cfg.rk_in:]
                    if now:
                        streams.append((now, 8, 12.0 / len(now)))
                self.weave(sum((mfmas(s, nt) for nt in range(5)), []), streams)
                continue
            order = [(0, 0), (1, 0), (2, 0), (0, 1), (1, 1), (2, 1), (0, 2), (1, 2), (2, 2),
                     (3, 0), (3, 1), (3, 2), (4, 0), (4, 1), (4, 2)]
            mf = sum((mfmas(s + d, nt) for nt, d in order), [])
            r2 = self.rec()
            r2.wait(vm=f"h{s+2}")
            streams.append((list(r2) + list(self.h_reads(s + 2)), 10, 1))
            pins = {11: lambda s=s: a.wait(lgkm=f"hr{s+1}"), 23: lambda s=s: a.wait(lgkm=f"hr{s+2}")}
            w = wa if s == 7 else wb
            nin = cfg.nwin
            streams.append((w[:12], 31, cfg.wstep))
            streams.append((w[12:nin], max(51, 31 + 12 * cfg.wstep), 2))
            if s == 7:
                wa = w[nin:]
                for d in range(3):
                    streams.append((self.h_dma(s + 4 + d), cfg.hd0 + 20 * d + (4 if d == 2 else 0), cfg.hds))
                r3 = self.rec()
                r3.wait(vm="h10")
                streams.append((list(r3) + list(self.h_reads(10)), 40, 1))
                streams.append((r0, 19, 1))
                if b1 == 10:
                    pins[59] = lambda: run(wa)
            else:
                wb = w[nin:]
                r3 = self.rec()
                r3(f"buffer_load_dword v{PV}, v{T+3}, {srd(SWS)}, s{sXR} offen offset:4 sc1", tag="xp")
                streams.append((r3, cfg.xp_gap, 1))
                if cfg.rk_in:
                    now, rk = rk[:cfg.rk_in], rk[cfg.rk_in:]
                    if now:
                        streams.append((now, 18, 12.0 / len(now)))
            self.weave(mf, streams, pins)
            if s == 7 and b1 == 10:
                wa = []
        assert not rs
        self.stamp("gemm2")

        def recv():
            for i in range(5):
                so, off = (sGAT, 1024 * i) if i < 4 else (sHIM, 0)
                a(f"buffer_load_dwordx4 {v4(A+16*i)}, v{self.VH}, {srd(SWS)}, s{so} offen offset:{off} sc1", tag=f"xr{i}")
        per = -(-len(rk) // max(len(wb), 1))
        for w in wb:
            w()
            now, rk = rk[:per], rk[per:]
            run(now)
        run(rk)
        a.wait(vm="xp")
        a(f"v_cmp_ne_u32 vcc, s{sTAG}, v{PV}")
        a("s_cbranch_vccz L_got3")
        a("L_poll3:")
        a(f"buffer_load_dword v{PV}, v{T+3}, {srd(SWS)}, s{sXR} offen offset:4 sc1", tag="xpb")
        a(f"s_sub_u32 s{sSPIN}, s{sSPIN}, 1")
        a.wait(vm=0)
        a(f"v_cmp_ne_u32 vcc, s{sTAG}, v{PV}")
        a(f"s_cmp_eq_u32 s{sSPIN}, 0")
        a("s_cbranch_scc1 L_got3")
        a("s_cbranch_vccnz L_poll3")
        a("L_got3:")
        recv()
        self.stamp("got3")
        a.wait(lgkm=0)
        a("s_barrier")
        run(self.part_reads(B, "rb"))
        for i in range(5):
            b, rv, sk = B + 16 * i, A + 16 * i, A + 16 * i + 4
            a.wait(lgkm=f"rb{i}")
            for hf in range(2):
                a(f"v_pk_add_f32 {v2(b+2*hf)}, {v2(b+2*hf)}, {v2(b+4+2*hf)}")
                a(f"v_pk_add_f32 {v2(b+8+2*hf)}, {v2(b+8+2*hf)}, {v2(b+12+2*hf)}")
            for hf in range(2):
                a(f"v_pk_add_f32 {v2(b+2*hf)}, {v2(b+2*hf)}, {v2(b+8+2*hf)}")
            for hf in range(2):
                a(f"v_pk_fma_f32 {v2(sk+2*hf)}, {v2(b+2*hf)}, {v2(GG+2)}, {v2(sk+2*hf)} op_sel_hi:[1,0,1]")
        for i in range(5):
            rv, sk = A + 16 * i, A + 16 * i + 4
            a.wait(vm=f"xr{i}")
            for hf in range(2):
                a(f"v_pk_fma_f32 {v2(sk+2*hf)}, {v2(rv+2*hf)}, {v2(GG+2)}, {v2(sk+2*hf)} op_sel:[0,1,0] op_sel_hi:[1,1,1]")
            a(f"buffer_store_dwordx4 {v4(sk)}, v{self.OO}, {srd(SOUT)}, 0 offen offset:{64*i} {cfg.opol}", tag="out")
        self.stamp("outst")
        a(f"s_xor_b32 s{sT0}, s{sTC}, 15")
        a(f"s_or_b32 s{sT0}, s{sT0}, s{sCG}")
        a(f"s_or_b32 s{sT0}, s{sT0}, s{sW}")
        a("s_cbranch_scc1 L_noep")
        a("s_mov_b64 exec, 1")
        a(f"buffer_store_dword v{T+2}, v{T+3}, {srd(SWS)}, 0 offen offset:{WS_EPOCH}", counted=False)
        a("s_mov_b64 exec, -1")
        a("L_noep:")

    def finish(self):
        a = self.a
        if self.cfg.prof:
            a.wait(vm=0)
            self.stamp("end")
            self.stamp("rt1")
            a("s_waitcnt lgkmcnt(0)")
            a(f"s_lshl_b32 s{sT0}, s2, 2")
            a(f"s_add_u32 s{sT0}, s{sT0}, s{sW}")
            a(f"s_lshl_b32 s{sT0}, s{sT0}, 7")
            a(f"s_add_u32 s{sT0}, s{sT0}, {WS_PROF}")
            a("v_mov_b32 v6, 0")
            a("s_mov_b64 exec, 1")
            for k in range(self.nstamp):
                a(f"v_mov_b32 v7, s{STAMP_REGS[k]}")
                a(f"buffer_store_dword v7, v6, {srd(SWS)}, s{sT0} offen offset:{4*k}")
            a(f"s_getreg_b32 s{sT1}, hwreg(HW_REG_XCC_ID)")
            a(f"v_mov_b32 v7, s{sT1}")
            a(f"buffer_store_dword v7, v6, {srd(SWS)}, s{sT0} offen offset:124")
            a(f"v_mov_b32 v7, s{sLATE}")
            a(f"buffer_store_dword v7, v6, {srd(SWS)}, s{sT0} offen offset:120")
        a("L_end:")
        a("s_endpgm")

    def build(self):
        self.prologue()
        self.gemm1()
        self.scan()
        self.gemm2()
        self.finish()
        errs = self.a.check_waits()
        for e in errs:
            print("WAIT ERROR:", e, file=sys.stderr)
        assert not errs
        for t in self.tail:
            self.a(t)
        self.a("L_last:")
        self.a("s_endpgm")
        n = self.a.fix_hazards(verbose=self.cfg.verbose)
        if self.cfg.align:
            print("aligned:", self.a.align8(self.cfg.align), file=sys.stderr)
        print("wait states inserted:", n, " instructions:", len(self.a.ins), file=sys.stderr)
        ref = open(os.path.join(os.path.dirname(os.path.abspath(__file__)), "..", "cdna_kernels", NAME + ".s.ref")).read()
        head = []
        for line in ref.split("\n"):
            if line.startswith("; @launch"):
                break
            head.append(line)
        txt = "\n".join(head) + f"\n; @launch grid=(256,1,1) block=(256,1,1) lds={LDS_BYTES}\n"
        txt += f""".amdgcn_target "amdgcn-amd-amdhsa--gfx950"
.text
.globl {NAME}_kernel
.p2align 8
.type {NAME}_kernel,@function
{NAME}_kernel:
"""
        txt += self.a.text().replace(" ;POL", "")
        txt += f""".section .rodata,"a"
.p2align 6
.amdhsa_kernel {NAME}_kernel
  .amdhsa_next_free_vgpr 512
  .amdhsa_next_free_sgpr 102
  .amdhsa_accum_offset 256
  .amdhsa_group_segment_fixed_size 0
  .amdhsa_kernarg_size 176
  .amdhsa_user_sgpr_count 2
  .amdhsa_user_sgpr_kernarg_segment_ptr 1
  .amdhsa_system_sgpr_workgroup_id_x 1
  .amdhsa_float_denorm_mode_32 3
.end_amdhsa_kernel
"""
        return txt


def main():
    p = argparse.ArgumentParser()
    p.add_argument("-o", default=None)
    for name, default in dict(prof=0, pf=2, pf_at=99, pace0=5, pace0_h=8, pace=5, pace_c=0, pace_h=16, cap=2, k1=6, p1=14, k2a=1, k2=14, p2=14,
                              k3=10, p3=10, k4=0, p4=22, ew_lag=5, xf_at=14, split=0, tb_at=-1, fast=0, c_after=1, align=100, remap=0, pfc0=0, htouch=0, ht2=-1, hold_c=0, order=1, touch=9, full=1, p5=12, dr_early=0, rk_in=16, pks=0, b1=10, nwin=13, xp_gap=20, hd0=1, hds=3, cpf=1, abl=0, nap=0, rot=1, p2_at=4, spin=20000, verbose=0).items():
        p.add_argument("--" + name, type=int, default=default)
    p.add_argument("--maxstep", type=float, default=20)
    p.add_argument("--wstep", type=float, default=2.4)
    p.add_argument("--dma_phase", type=float, default=1)
    p.add_argument("--hpol", default="sc1")
    p.add_argument("--opol", default="")
    p.add_argument("--only", default="")
    p.add_argument("--nostamp", default="karg,dma0,dma1,coef,w3done,gh2,gh4,gh8,gh12,gh16,pre,bar,lst,ack")
    cfg = p.parse_args()
    g = Gen(cfg)
    txt = g.build()
    out = cfg.o or os.path.join(os.path.dirname(os.path.abspath(__file__)), "..", "cdna_kernels", NAME + ".s")
    open(out, "w").write(txt)
    if cfg.prof:
        open(out + ".stamps", "w").write("\n".join(g.stamp_names))


if __name__ == "__main__":
    main()
```

```python
import sys, os, argparse, math
sys.path.insert(0, os.path.dirname(os.path.abspath(__file__)))
from asmlib import Asm, Ins

NAME = "gated_mix__ssm_conv_s5__ssm_conv_s5__prompt"

WS_EPOCH = 0
WS_FLAG = 4096
WS_XF = 135168
WS_CARRY = 266240
WS_XCC = 593920
WS_H = 655360
WS_XCH = WS_H + 10485760
WS_PROF = WS_XCH + 5242880
WS_USED = WS_PROF + 1024 * 128

SLOT = 36864
PIECE = 9216
TOP = 4 * SLOT
TAB = TOP
PART1 = TOP + 10240
PART2 = TAB + 6400
LGW = PART1 + 4480
LDK = LGW + 1280
LDS_BYTES = 163840

sSPIN, sTC, sCG, sLATE, sBR, sW, sBW, sTAG, sK = 3, 4, 5, 6, 7, 8, 9, 10, 11
sT0, sT1, sT2, sT3 = 12, 13, 14, 15
SX, SB, SC, SWS, SOUT = 16, 20, 24, 32, 36
sPUB, sGAT, sHRE, sHIM = 28, 29, 30, 31
KA = 40
pX, pLre, pLim, pBre, pBim, pCre, pCim, pDT, pDA = 40, 42, 44, 46, 48, 50, 52, 54, 56
pDB, pGW, pOUT, pWS = 74, 76, 78, 80
sM = 58
sFLG, sPOL, sHA, sHB, sXS, sXR = 82, 83, 84, 85, 86, 87
sD0, sD1 = 72, 73
sKQ, sROT, sEND = 60, 65, 66
STAMP_REGS = list(range(88, 102, 2)) + [42, 44, 46, 48, 50, 52, 54, 68, 70]


def srd(b):
    return "s[%d:%d]" % (b, b + 3)


def sp(b):
    return "s[%d:%d]" % (b, b + 1)


def v2(b):
    return "v[%d:%d]" % (b, b + 1)


def v4(b, f="v"):
    return "%s[%d:%d]" % (f, b, b + 3)


class Op:
    __slots__ = ("f", "strict", "dma", "tag")

    def __init__(self, f, strict=False, dma=False, tag=None):
        self.f, self.strict, self.dma, self.tag = f, strict, dma, tag

    def __call__(self):
        self.f()


class Rec(list):
    def __init__(self, a):
        super().__init__()
        self.a = a

    def __call__(self, text, tag=None, counted=True, strict=False):
        self.append(Op(lambda: self.a(text, tag, counted), strict, text.startswith(("buffer_", "global_")), tag))

    def wait(self, vm=None, lgkm=None):
        self.append(Op(lambda: self.a.wait(vm, lgkm)))

    def group(self, *texts):
        self.append(Op(lambda: [self.a(t) for t in texts]))


def cmul(a, d, x, y):
    a(f"v_pk_mul_f32 {v2(d)}, {v2(x)}, {v2(y)} op_sel_hi:[1,0]")
    a(f"v_pk_fma_f32 {v2(d)}, {v2(x)}, {v2(y)}, {v2(d)} op_sel:[1,1,0] op_sel_hi:[0,1,1] neg_lo:[1,0,0]")


def cfma(a, d, x, y, c):
    a(f"v_pk_fma_f32 {v2(d)}, {v2(x)}, {v2(y)}, {v2(c)} op_sel_hi:[1,0,1]")
    a(f"v_pk_fma_f32 {v2(d)}, {v2(x)}, {v2(y)}, {v2(d)} op_sel:[1,1,0] op_sel_hi:[0,1,1] neg_lo:[1,0,0]")


def run(ops):
    for o in ops:
        o()


class Gen:
    def __init__(self, cfg):
        self.cfg = cfg
        self.a = Asm()
        self.nstamp = 0
        self.stamp_names = []
        self.tail = []

    def rec(self):
        return Rec(self.a)

    def stamp(self, name):
        if not self.cfg.prof:
            return
        if self.cfg.only:
            if name not in self.cfg.only.split(",") + ["rt0", "start", "end", "rt1"]:
                return
        elif name in self.cfg.nostamp.split(",") or (name[0] == "s" and name[1:].isdigit()):
            return
        op = "s_memrealtime" if name.startswith("rt") else "s_memtime"
        self.a("%s %s" % (op, sp(STAMP_REGS[self.nstamp])))
        self.stamp_names.append(name)
        self.nstamp += 1

    def weave(self, mf, streams, pins=None):
        n = len(mf)
        load = [0] * n
        slots = [[] for _ in range(n)]
        for ops, start, step in streams:
            prev = -1
            for k, op in enumerate(ops):
                g = max(int(start + k * step), prev + (1 if op.strict else 0), 0)
                while g < n - 1 and load[g] >= self.cfg.cap:
                    g += 1
                g = min(g, n - 1)
                slots[g].append(op)
                load[g] += 1
                prev = g
        for g in range(n):
            self.a(mf[g])
            run(slots[g])
            if pins and g in pins:
                pins[g]()

    ACC = 20
    GX, GW = 70, 80
    L1, L2, WQ, V, MC = 196, 206, 216, 232, 190
    T4 = 246
    VP, Q = 250, 251
    FG = 252
    TP, HS = 244, 243
    VC0, VC1 = 18, 19
    VCR = 10
    U = 100

    def acc(self, m, n, part):
        return self.ACC + (n * 2 + part) * 8 + 4 * m

    def prologue(self):
        a, cfg = self.a, self.cfg
        a(f"s_load_dwordx16 s[{KA}:{KA+15}], s[0:1], 0")
        a(f"s_load_dwordx16 s[{KA+16}:{KA+31}], s[0:1], 64")
        a(f"s_load_dwordx8 s[{KA+32}:{KA+39}], s[0:1], 128")
        a(f"s_load_dwordx2 {sp(pWS)}, s[0:1], 168")
        a("s_cmp_ge_u32 s2, 0x100")
        a("s_cbranch_scc1 L_end")
        if cfg.cpf == 0:
            a(f"s_getpc_b64 {sp(sT0)}")
            a("L_pc0:")
            a("v_lshlrev_b32 v18, 7, v0")
            a("v_min_u32 v19, L_last-L_pc0, v18")
            a(f"global_load_dword v243, v19, {sp(sT0)}", tag="pf")
        self.stamp("rt0")
        self.stamp("start")
        a("v_lshrrev_b32 v18, 6, v0")
        a(f"s_and_b32 s{sT2}, s2, 7")
        a(f"s_lshr_b32 s{sT3}, s2, 3")
        a(f"v_readfirstlane_b32 s{sW}, v18")
        if cfg.cpf:
            run(self.code_prefetch(18, 1))
        L, R8, SL, F0, T0, T1, C = 196, 197, 198, 199, 246, 247, 248
        Q = self.Q
        a(f"s_lshr_b32 s{sTC}, s{sT2}, 1")
        if cfg.remap:
            a(f"s_lshr_b32 s{sT0}, s{sTC}, 1")
            a(f"s_xor_b32 s{sTC}, s{sTC}, s{sT0}")
        a(f"s_lshl_b32 s{sTC}, s{sTC}, 2")
        a(f"s_lshr_b32 s{sT0}, s{sT3}, 3")
        a(f"s_add_u32 s{sTC}, s{sTC}, s{sT0}")
        a(f"s_and_b32 s{sBR}, s{sT2}, 1")
        a(f"s_and_b32 s{sT1}, s{sT3}, 7")
        a(f"s_lshl_b32 s{sCG}, s{sBR}, 3")
        a(f"s_add_u32 s{sCG}, s{sCG}, s{sT1}")
        a(f"s_mov_b32 s{sK}, 0")
        a(f"v_and_b32 v{L}, 63, v0")
        a(f"v_lshrrev_b32 v{R8}, 3, v{L}")
        a(f"v_and_b32 v{SL}, 7, v{L}")
        a(f"v_lshrrev_b32 v{Q}, 4, v{L}")
        a(f"v_xor_b32 v{F0}, v{Q}, v{SL}")
        a(f"v_lshlrev_b32 v{F0}, 4, v{F0}")
        a(f"v_lshrrev_b32 v{T0}, 5, v{L}")
        a(f"v_and_b32 v{T1}, 3, v{R8}")
        a(f"v_lshl_add_u32 v{T0}, v{T0}, 3, v{T1}")
        a(f"v_mul_u32_u24 v{T0}, 1280, v{T0}")
        a(f"v_xor_b32 v{T1}, 64, v{F0}")
        a(f"v_add_u32 v1, v{T0}, v{F0}")
        a(f"v_add_u32 v2, v{T0}, v{T1}")
        a(f"v_add_u32 v2, {16*1280-1024}, v2")
        a(f"v_add_u32 v3, {4*1280-2048}, v1")
        a(f"v_add_u32 v4, {4*1280-2048}, v2")
        a(f"v_mul_u32_u24 v{T0}, 1280, v{R8}")
        a(f"v_add_u32 v{self.VC0}, v{T0}, v{F0}")
        a(f"v_add_u32 v{self.VC1}, v{T0}, v{T1}")
        a(f"v_add_u32 v{self.VC1}, {8*1280}, v{self.VC1}")
        a(f"s_mul_i32 s{sBW}, s{sW}, {PIECE}")
        a(f"s_bitcmp1_b32 s{sW}, 1")
        a(f"s_cselect_b64 vcc, -1, 0")
        a(f"s_mul_i32 s{sT1}, s{sT1}, 80")
        a(f"s_mul_i32 s{sT0}, s{sW}, 20")
        a(f"v_cndmask_b32 v5, v{self.VC0}, v{self.VC1}, vcc")
        for n in range(1, 5):
            a(f"v_add_u32 v{5+n}, {n*16*1280 - 1024*(n & 3)}, v5")
        a(f"v_add_u32 v{self.VC1}, -1024, v{self.VC1}")
        a(f"v_min_u32 v{T0}, 19, v{L}")
        a(f"v_add_u32 v204, s{sT0}, v{T0}")
        a(f"v_add_lshl_u32 v{T0}, v204, s{sT1}, 1")
        a(f"s_mul_i32 s{sT1}, s{sT1}, 1280")
        a(f"s_lshl_b32 s{sT0}, s{sTC}, 2")
        a(f"s_add_u32 s{sT0}, s{sT0}, s{sW}")
        a(f"s_mul_i32 s{sT0}, s{sT0}, {32*1280}")
        a(f"s_lshl_b32 s{sPUB}, s{sT3}, 2")
        a(f"s_add_u32 s{sPUB}, s{sPUB}, s{sW}")
        a(f"s_lshl_b32 s{sGAT}, s{sT2}, 7")
        a(f"s_add_u32 s{sGAT}, s{sGAT}, s{sPUB}")
        a(f"s_mul_i32 s{sGAT}, s{sGAT}, 2560")
        a(f"s_bfe_u32 s{sHRE}, s{sT2}, 0x10001")
        a(f"s_lshl_b32 s{sHRE}, s{sHRE}, 7")
        a(f"s_add_u32 s{sHRE}, s{sHRE}, s{sPUB}")
        a(f"s_mul_i32 s{sHRE}, s{sHRE}, 3200")
        a(f"v_lshlrev_b32 v241, 7, v{L}")
        a(f"s_lshl_b32 s{sHIM}, s2, 2")
        a(f"s_add_u32 s{sHIM}, s{sHIM}, s{sW}")
        a(f"s_mul_i32 s{sHIM}, s{sHIM}, 640")
        a(f"s_add_u32 s{sHIM}, s{sHIM}, {WS_FLAG}")
        a(f"v_add_u32 v240, s{sHIM}, v241")
        a(f"v_add_u32 v242, s{sHRE}, v241")
        a(f"v_add_u32 v241, s{sGAT}, v241")
        a(f"s_mov_b32 s{SX+3}, 0x20000")
        a(f"s_mov_b32 s{SB+3}, 0x20000")
        a(f"s_sub_u32 s{SX+2}, 2621440, s{sT0}")
        a(f"s_sub_u32 s{SB+2}, 819200, s{sT1}")
        a("s_waitcnt lgkmcnt(0)")
        self.stamp("karg")
        a(f"s_add_u32 s{SX}, s{pX}, s{sT0}")
        a(f"s_addc_u32 s{SX+1}, s{pX+1}, 0")
        a(f"s_cmp_eq_u32 s{sBR}, 1")
        for p in (pBre, pBim, pLre, pLim, pDT, pCre, pCim):
            a(f"s_cselect_b64 {sp(p)}, {sp(p+18)}, {sp(p)}")
        a(f"s_bitcmp1_b32 s{sW}, 0")
        a(f"s_cselect_b64 {sp(SB)}, {sp(pBim)}, {sp(pBre)}")
        a(f"s_cselect_b64 {sp(SC)}, {sp(pCim)}, {sp(pCre)}")
        a(f"s_add_u32 s{SB}, s{SB}, s{sT1}")
        a(f"s_addc_u32 s{SB+1}, s{SB+1}, 0")
        a(f"global_load_ushort v206, v{T0}, {sp(pLre)}", tag="par")
        a(f"global_load_ushort v207, v{T0}, {sp(pLim)}", tag="par")
        a(f"global_load_ushort v208, v{T0}, {sp(pDT)}", tag="par")

        def prefetch():
            a(f"s_bitcmp1_b32 s{sT2}, 2")
            a(f"s_cselect_b64 {sp(SWS)}, {sp(pBim)}, {sp(pBre)}")
            a(f"s_cselect_b64 {sp(sM)}, {sp(pCim)}, {sp(pCre)}")
            a("s_mov_b64 exec, 0xfffff")
            a(f"global_load_dword v244, v241, {sp(pX)}", tag="pf")
            a("s_mov_b64 exec, 0x1ffffff")
            a(f"global_load_dword v245, v242, {sp(SWS)}", tag="pf")
            if cfg.touch == 1:
                a("s_mov_b64 exec, 0x1f")
                a(f"global_load_dword v243, v240, {sp(pWS)}", tag="pf")
            a("s_mov_b64 exec, -1")
        if cfg.pf == 1:
            prefetch()
        if cfg.pfc0:
            a(f"s_bitcmp1_b32 s{sT2}, 2")
            a(f"s_cselect_b64 {sp(sM)}, {sp(pCim)}, {sp(pCre)}")
            a("s_mov_b64 exec, 0x1ffffff")
            a(f"global_load_dword a255, v242, {sp(sM)}", tag="pf")
            a("s_mov_b64 exec, -1")
        run(self.dma_stage(0))
        if cfg.pf == 2:
            prefetch()
        a(f"s_load_dword s{sTAG}, {sp(pWS)}, {WS_EPOCH}")
        self.stamp("dma0")
        a(f"v_lshlrev_b32 v204, 3, v204")
        a(f"v_add_u32 v204, {TAB}, v204")
        a(f"v_and_b32 v{C}, 15, v{L}")
        a(f"v_lshrrev_b32 v{T0}, 1, v{C}")
        a(f"v_xor_b32 v{T0}, v{T0}, v{Q}")
        a(f"v_lshlrev_b32 v{T0}, 4, v{T0}")
        a(f"v_lshl_add_u32 v{T1}, v{C}, 7, v{T0}")
        a(f"v_add_u32 v10, s{sBW}, v{T1}")
        a(f"v_xor_b32 v11, 64, v10")
        a(f"v_add_u32 v12, {2*SLOT}, v10")
        a(f"v_add_u32 v13, {2*SLOT}, v11")
        a(f"v_and_b32 v{T1}, 7, v{C}")
        a(f"v_lshl_add_u32 v{T0}, v{T1}, 7, v{T0}")
        a(f"v_lshrrev_b32 v{T1}, 3, v{C}")
        a(f"v_mul_u32_u24 v{T1}, {2*PIECE}, v{T1}")
        a(f"v_add_u32 v{T0}, 4096, v{T0}")
        a(f"v_add_u32 v14, v{T0}, v{T1}")
        a(f"v_xor_b32 v15, 64, v14")
        a(f"v_add_u32 v16, {2*SLOT}, v14")
        a(f"v_add_u32 v17, {2*SLOT}, v15")
        a(f"v_lshlrev_b32 v{self.VP}, 3, v{C}")
        a(f"v_add_u32 v{self.VP}, {TAB}, v{self.VP}")
        a(f"s_lshr_b32 s{sT0}, s{sW}, 1")
        a(f"s_mul_i32 s{sT0}, s{sT0}, 640")
        a(f"s_add_u32 s{sT0}, s{sT0}, s{sT1}")
        a(f"s_add_u32 s{SC}, s{SC}, s{sT0}")
        a(f"s_addc_u32 s{SC+1}, s{SC+1}, 0")
        a(f"s_sub_u32 s{SC+2}, 819200, s{sT0}")
        a(f"s_mov_b32 s{SC+3}, 0x20000")
        a(f"s_mov_b32 s{SWS}, s{pWS}")
        a(f"s_mov_b32 s{SWS+1}, s{pWS+1}")
        a(f"s_mov_b32 s{SWS+2}, {WS_USED}")
        a(f"s_mov_b32 s{SWS+3}, 0x20000")
        a(f"s_mov_b32 s{SOUT}, s{pOUT}")
        a(f"s_mov_b32 s{SOUT+1}, s{pOUT+1}")
        a(f"s_mov_b32 s{SOUT+2}, 5242880")
        a(f"s_mov_b32 s{SOUT+3}, 0x20000")
        if cfg.rot:
            a(f"s_and_b32 s{sT0}, s{sCG}, 7")
            if cfg.rot == 1:
                a(f"s_and_b32 s{sT2}, s{sTC}, 3")
                a(f"s_add_u32 s{sT0}, s{sT0}, s{sT2}")
            for _ in range(2 if cfg.rot == 1 else 1):
                a(f"s_sub_u32 s{sT2}, s{sT0}, 5")
                a(f"s_cselect_b32 s{sT0}, s{sT0}, s{sT2}")
        else:
            a(f"s_mov_b32 s{sT0}, 0")
        a(f"s_lshl_b32 s{sROT}, s{sT0}, 13")
        a(f"s_lshl_b32 s{sKQ}, s{sT0}, 7")
        for k in range(1, 5):
            a(f"s_add_u32 s{sKQ+k}, s{sKQ+k-1}, 128")
            a(f"s_cmp_eq_u32 s{sKQ+k}, 640")
            a(f"s_cselect_b32 s{sKQ+k}, 0, s{sKQ+k}")
        if cfg.fast:
            cfg.split = 0
        a(f"s_lshr_b32 s{sLATE}, s{sW}, 1")
        a(f"s_xor_b32 s{sLATE}, s{sLATE}, s{sBR}")
        a(f"s_mul_i32 s{sT0}, s{sW}, 320")
        a(f"v_lshl_add_u32 v236, v{L}, 4, s{sT0}")
        a(f"s_add_u32 s{sEND}, s{sT0}, {LGW}")
        a(f"s_and_b32 s{sT0}, s{sCG}, 7")
        a(f"s_mul_i32 s{sT0}, s{sT0}, 160")
        a(f"v_lshl_add_u32 v237, v{L}, 4, s{sT0}")
        a(f"s_bitcmp1_b32 s{sW}, 0")
        a(f"s_cselect_b64 {sp(68)}, {sp(pDB)}, {sp(pDA)}")
        a(f"s_cselect_b32 s67, 160, 0")
        a(f"s_add_u32 s67, s67, {LDK}")
        self.ws_offsets()
        if cfg.order == 0:
            run(self.dma_stage(1))
            self.params()
        else:
            self.params()
            run(self.dma_stage(1))
        a("s_waitcnt lgkmcnt(0)")
        a(f"s_mul_i32 s{sTAG}, s{sTAG}, 0x9E3779B1")
        a(f"s_add_u32 s{sTAG}, s{sTAG}, 0x7F4A7C15")
        if cfg.fast:
            a(f"s_getreg_b32 s{sLATE}, hwreg(HW_REG_XCC_ID, 0, 4)")
            a(f"s_lshl_b32 s{sT0}, s{sTC}, 4")
            a(f"s_add_u32 s{sT0}, s{sT0}, s{sCG}")
            a(f"s_lshl_b32 s{sT0}, s{sT0}, 7")
            a(f"s_add_u32 s{sT0}, s{sT0}, {WS_XCC}")
            a(f"v_mov_b32 v246, s{sLATE}")
            a(f"v_mov_b32 v247, s{sTAG}")
            a(f"v_lshlrev_b32 v248, 3, v196")
            a("s_mov_b64 exec, 0xffff")
            a(f"buffer_store_dwordx2 {v2(246)}, v248, {srd(SWS)}, s{sT0} offen sc1", tag="xcc")
        a(f"s_mov_b32 m0, s{sEND}")
        a("s_mov_b64 exec, 0xfffff")
        a(f"global_load_lds_dwordx4 v236, {sp(pGW)}", tag="small")
        a(f"s_mov_b32 m0, s67")
        a("s_mov_b64 exec, 0x3ff")
        a(f"global_load_lds_dwordx4 v237, {sp(68)}", tag="small")
        a("s_mov_b64 exec, -1")
        self.stamp("dma1")

    def code_prefetch(self, t, k):
        a = self.a
        r = self.rec()
        r(f"s_lshr_b32 s{sT0}, s2, 3")
        r(f"s_lshl_b32 s{sT0}, s{sT0}, 2")
        r(f"s_add_u32 s{sT0}, s{sT0}, s{sW}")
        r(f"s_lshl_b32 s{sT0}, s{sT0}, 8")
        r(f"v_and_b32 v{t}, 1, v0")
        r(f"v_lshl_add_u32 v{t}, v{t}, 7, s{sT0}")
        r.append(Op(lambda: (a(f"s_getpc_b64 {sp(sT0)}"), a(f"L_pc{k}:"), a(f"v_min_u32 v{t}, L_last-L_pc{k}, v{t}"),
                             a("s_mov_b64 exec, 3"), a(f"global_load_dword a{255-k}, v{t}, {sp(sT0)}", tag="pf"),
                             a("s_mov_b64 exec, -1")), dma=True))
        return r

    def ws_offsets(self):
        a = self.a
        a(f"s_lshl_b32 s{sT0}, s{sCG}, 4")
        a(f"s_add_u32 s{sPUB}, s{sT0}, s{sTC}")
        a(f"s_mul_i32 s{sPUB}, s{sPUB}, 1280")
        a(f"s_add_u32 s{sPUB}, s{sPUB}, {WS_CARRY}")
        a(f"s_lshl_b32 s{sT2}, s{sW}, 2")
        a(f"s_add_u32 s{sGAT}, s{sT0}, s{sT2}")
        a(f"s_mul_i32 s{sGAT}, s{sGAT}, 1280")
        a(f"s_add_u32 s{sGAT}, s{sGAT}, {WS_CARRY}")
        a(f"s_lshl_b32 s{sT0}, s{sTC}, 1")
        a(f"s_add_u32 s{sT0}, s{sT0}, s{sBR}")
        a(f"s_lshr_b32 s{sT2}, s{sW}, 1")
        a(f"s_and_b32 s{sT3}, s{sW}, 1")
        a(f"s_lshl_b32 s{sHRE}, s{sT0}, 1")
        a(f"s_add_u32 s{sHRE}, s{sHRE}, s{sT2}")
        a(f"s_mul_i32 s{sHRE}, s{sHRE}, {2*81920}")
        a(f"s_and_b32 s{sHIM}, s{sCG}, 7")
        a(f"s_mul_i32 s{sHIM}, s{sHIM}, 5")
        a(f"s_and_b32 s{sD0}, s{sHIM}, 1")
        a(f"s_lshr_b32 s{sHIM}, s{sHIM}, 1")
        a(f"s_lshl_b32 s{sHIM}, s{sHIM}, 12")
        a(f"s_add_u32 s{sHRE}, s{sHRE}, s{sHIM}")
        a(f"s_lshl_b32 s{sHIM}, s{sD0}, 9")
        a(f"s_add_u32 s{sHRE}, s{sHRE}, s{sHIM}")
        a(f"s_mul_i32 s{sD0}, s{sD0}, 3072")
        a(f"s_add_u32 s{sD0}, s{sD0}, 512")
        a(f"s_sub_u32 s{sD1}, 4096, s{sD0}")
        a(f"s_lshl_b32 s{sHIM}, s{sT3}, 11")
        a(f"s_add_u32 s{sHRE}, s{sHRE}, s{sHIM}")
        a(f"s_add_u32 s{sHRE}, s{sHRE}, {WS_H}")
        a(f"s_add_u32 s{sHIM}, s{sHRE}, 81920")
        a(f"s_lshl_b32 s{sHB}, s{sT0}, 1")
        a(f"s_add_u32 s{sHB}, s{sHB}, s{sBR}")
        a(f"s_xor_b32 s{sHA}, s{sHB}, 1")
        a(f"s_mul_i32 s{sXS}, s{sT3}, 81920")
        a(f"s_mul_i32 s{sXR}, s{sT2}, 40960")
        a(f"s_add_u32 s{sXS}, s{sXS}, s{sXR}")
        a(f"s_add_u32 s{sXS}, s{sXS}, {WS_H}")
        a(f"s_mul_i32 s{sHA}, s{sHA}, {2*81920}")
        a(f"s_mul_i32 s{sHB}, s{sHB}, {2*81920}")
        a(f"s_add_u32 s{sHA}, s{sHA}, s{sXS}")
        a(f"s_add_u32 s{sHB}, s{sHB}, s{sXS}")
        a(f"s_lshl_b32 s{sFLG}, s{sTC}, 4")
        a(f"s_add_u32 s{sFLG}, s{sFLG}, s{sCG}")
        a(f"s_lshl_b32 s{sFLG}, s{sFLG}, 2")
        a(f"s_add_u32 s{sFLG}, s{sFLG}, s{sW}")
        a(f"s_lshl_b32 s{sFLG}, s{sFLG}, 7")
        a(f"s_add_u32 s{sFLG}, s{sFLG}, {WS_FLAG}")
        a(f"s_lshl_b32 s{sPOL}, s{sT0}, 1")
        a(f"s_add_u32 s{sPOL}, s{sPOL}, s{sT2}")
        a(f"s_lshl_b32 s{sPOL}, s{sPOL}, 11")
        a(f"s_add_u32 s{sPOL}, s{sPOL}, {WS_FLAG}")
        a(f"s_lshl_b32 s{sXS}, s{sTC}, 3")
        a(f"s_and_b32 s{sT0}, s{sCG}, 7")
        a(f"s_add_u32 s{sXS}, s{sXS}, s{sT0}")
        a(f"s_lshl_b32 s{sXS}, s{sXS}, 1")
        a(f"s_add_u32 s{sXS}, s{sXS}, s{sBR}")
        a(f"s_lshl_b32 s{sXS}, s{sXS}, 2")
        a(f"s_add_u32 s{sXS}, s{sXS}, s{sW}")
        a(f"s_xor_b32 s{sXR}, s{sXS}, 4")

    def params(self):
        a = self.a
        LR, LI, DT, T0, T1, T2 = 206, 207, 208, 209, 210, 211
        P = lambda k: 100 + 2 * k
        a(f"v_lshlrev_b32 v{T0}, 3, v196")
        a(f"v_add_u32 v{T0}, {PART1}, v{T0}")
        a(f"v_mov_b64 {v2(P(16))}, 0")
        a("s_mov_b32 exec_hi, 0xffff")
        for n in range(5):
            a(f"ds_write_b64 v{T0}, {v2(P(16))} offset:{n*896}", tag="tab")
        a("s_mov_b64 exec, 0xfffff")
        a.wait(vm="par")
        a(f"v_lshlrev_b32 v{DT}, 16, v{DT}")
        a(f"v_lshlrev_b32 v{LR}, 16, v{LR}")
        a(f"v_mul_f32 v{DT}, 0x3fb8aa3b, v{DT}")
        a(f"v_exp_f32 v{DT}, v{DT}")
        a(f"v_lshlrev_b32 v{LI}, 16, v{LI}")
        a(f"v_cvt_pk_bf16_f32 v{DT}, v{DT}, v{DT}")
        a(f"v_lshlrev_b32 v{DT}, 16, v{DT}")
        a(f"v_mul_f32 v{T0}, v{DT}, v{LR}")
        a(f"v_mul_f32 v{T1}, v{DT}, v{LI}")
        a(f"v_mul_f32 v{T0}, 0x3fb8aa3b, v{T0}")
        a(f"v_mul_f32 v{T1}, 0x3e22f983, v{T1}")
        a(f"v_exp_f32 v{T0}, v{T0}")
        a(f"v_rndne_f32 v{T2}, v{T1}")
        a(f"v_sub_f32 v{T1}, v{T1}, v{T2}")
        a(f"v_cos_f32 v{T2}, v{T1}")
        a(f"v_sin_f32 v{T1}, v{T1}")
        a(f"v_mov_b32 v{P(0)}, 1.0")
        a(f"v_mov_b32 v{P(0)+1}, 0")
        a(f"v_mul_f32 v{P(1)}, v{T0}, v{T2}")
        a(f"v_mul_f32 v{P(1)+1}, v{T0}, v{T1}")
        a(f"v_mul_f32 v{T0}, v{LR}, v{LR}")
        a(f"v_fmac_f32 v{T0}, v{LI}, v{LI}")
        a(f"v_rcp_f32 v{T0}, v{T0}")
        a(f"v_add_f32 v{T1}, -1.0, v{P(1)}")
        a(f"v_mul_f32 v{P(3)}, v{T1}, v{LR}")
        a(f"v_mul_f32 v{P(3)+1}, v{P(1)+1}, v{LR}")
        a(f"v_add_f32 v{T0}, v{T0}, v{T0}")
        a(f"v_fmac_f32 v{P(3)}, v{P(1)+1}, v{LI}")
        a(f"v_fma_f32 v{P(3)+1}, -v{T1}, v{LI}, v{P(3)+1}")
        a(f"v_mul_f32 v{P(3)}, v{P(3)}, v{T0}")
        a(f"v_mul_f32 v{P(3)+1}, v{P(3)+1}, v{T0}")
        cmul(a, P(2), P(1), P(1))
        cmul(a, P(17), P(2), P(2))
        cmul(a, P(4), P(17), P(17))
        for base in (4, 7, 10, 13):
            cmul(a, P(base + 1), P(base), P(base))
            cmul(a, P(base + 2), P(base + 1), P(base))
            if base < 13:
                cmul(a, P(base + 3), P(base + 1), P(base + 1))
        for e in range(16):
            a(f"ds_write_b64 v204, {v2(P(e))} offset:{e*640}", tag="tab")
        a("s_mov_b64 exec, -1")

    def dma_stage(self, s):
        r = self.rec()
        base = (s % 4) * SLOT
        for j in range(9):
            if j in (0, 4, 8):
                r(f"s_add_u32 m0, s{sBW}, {base + 1024*j}")
            sr = SX if j < 4 else SB
            r(f"buffer_load_dwordx4 v{1+j}, {srd(sr)}, s{sK} offen offset:{1024*(j & 3)} lds", tag=f"st{s}", strict=j in (0, 4, 8))
        if s < 9:
            r(f"s_add_u32 s{sK}, s{sK}, 128")
        return r

    def c_slot(self, u):
        u %= 16
        return ((2 + u // 4) % 4), (u % 4)

    def c_dma(self, u):
        r = self.rec()
        p, qq = self.c_slot(u)
        kl, nt = divmod(u, 5)
        if u >= 16:
            r.wait(lgkm=f"dr{u-16}")
        r(f"s_add_u32 m0, s{sBW}, {p*SLOT + qq*2048}")
        r(f"s_add_u32 s{sK}, s{sKQ+kl}, {nt*20480}")
        r(f"buffer_load_dwordx4 v{self.VC0}, {srd(SC)}, s{sK} offen lds", tag=f"c{u}", strict=True)
        r(f"buffer_load_dwordx4 v{self.VC1}, {srd(SC)}, s{sK} offen offset:1024 lds", tag=f"c{u}")
        return r

    def c_drain(self, u):
        r = self.rec()
        p, qq = self.c_slot(u)
        r.wait(vm=f"c{u}")
        for b in range(2):
            r(f"ds_read_b128 {v4(8*u+4*b, 'a')}, v{self.VCR + 2*(p >> 1) + b} offset:{(p & 1)*SLOT + qq*2048}", tag=f"dr{u}")
        return r

    def c_stream(self, rest):
        ops = list(rest)
        for u in range(16, 25):
            ops += self.c_drain(u - 16) if u == 16 else []
            ops += self.c_dma(u)[:-1]
            if u < 24:
                ops += self.c_drain(u - 15)
            ops += self.c_dma(u)[-1:]
        items, cur = [], []
        for o in ops:
            cur.append(o)
            if o.dma:
                items.append(Op(lambda c=cur: run(c), tag=o.tag))
                cur = []
        assert not cur
        return items

    def cq_ops(self):
        return self.cq

    def c_take(self, n):
        r, self.cq = self.cq[:n], self.cq[n:]
        return r

    def frag_reads(self, h):
        r = self.rec()
        s, u = h >> 1, h & 1
        slot = s % 4
        F = 100 + 48 * (h & 1)
        va = 10 + 2 * (slot >> 1) + u
        vb = 14 + 2 * (slot >> 1) + u
        so = (slot & 1) * SLOT
        rd = lambda dst, vr, off: r(f"ds_read_b128 {v4(dst)}, v{vr} offset:{off}", tag=f"fr{h}")
        rd(F, va, so)
        rd(F + 8, vb, so)
        rd(F + 4, va, so + 2048)
        for k in range(1, 10):
            rd(F + 8 + 4 * k, vb, so + (k & 1) * PIECE + (k >> 1) * 1024)
        return r

    def gate_loads(self, t):
        a = self.a
        GX, GW = self.GX, self.GW
        a(f"s_lshl_b32 s{sT0}, s{sTC}, 4")
        a(f"s_add_u32 s{sT0}, s{sT0}, s{sCG}")
        a(f"s_lshl_b32 s{sT0}, s{sT0}, 2")
        a(f"s_add_u32 s{sT0}, s{sT0}, s{sW}")
        a(f"s_lshl_b32 s{sT0}, s{sT0}, 1")
        a(f"v_bfe_u32 v{t}, v0, 5, 1")
        a(f"v_add_u32 v{t}, s{sT0}, v{t}")
        a(f"v_mul_u32_u24 v{t}, 1280, v{t}")
        a(f"v_and_b32 v{t+1}, 31, v0")
        a(f"v_lshl_add_u32 v{t+2}, v{t+1}, 4, v{t}")
        a(f"v_lshl_add_u32 v{t+3}, v{t+1}, 3, v{t}")
        a(f"global_load_dwordx4 {v4(GX)}, v{t+2}, {sp(pX)}", tag="gate")
        a(f"global_load_dwordx4 {v4(GX+4)}, v{t+2}, {sp(pX)} offset:512", tag="gate")
        a(f"global_load_dwordx2 {v2(GX+8)}, v{t+3}, {sp(pX)} offset:1024", tag="gate")
        a(f"v_lshlrev_b32 v{t+2}, 4, v{t+1}")
        a(f"v_add_u32 v{t+2}, {LGW}, v{t+2}")
        a(f"v_lshlrev_b32 v{t+3}, 3, v{t+1}")
        a(f"v_add_u32 v{t+3}, {LGW + 1024}, v{t+3}")
        a(f"ds_read_b128 {v4(GW)}, v{t+2}", tag="gw")
        a(f"ds_read_b128 {v4(GW+4)}, v{t+2} offset:512", tag="gw")
        a(f"ds_read_b64 {v2(GW+8)}, v{t+3}", tag="gw")

    XS = 60

    def xs(self, i):
        return (190, 192, 194, 92, 94)[i]

    def skip_loads(self, t):
        a = self.a
        a(f"s_lshl_b32 s{sT0}, s{sTC}, 1")
        a(f"s_add_u32 s{sT0}, s{sT0}, s{sBR}")
        a(f"s_lshl_b32 s{sT0}, s{sT0}, 2")
        a(f"s_add_u32 s{sT0}, s{sT0}, s{sW}")
        a(f"s_lshl_b32 s{sT0}, s{sT0}, 4")
        a(f"s_and_b32 s{sT1}, s{sCG}, 7")
        a(f"s_mul_i32 s{sT1}, s{sT1}, 80")
        a(f"v_bfe_u32 v{t}, v0, 2, 4")
        a(f"v_and_b32 v{t+1}, 3, v0")
        a(f"v_add_u32 v{t}, s{sT0}, v{t}")
        a(f"v_mul_u32_u24 v{t}, 640, v{t}")
        a(f"v_lshl_add_u32 v{t+1}, v{t+1}, 2, s{sT1}")
        a(f"v_add_lshl_u32 v231, v{t}, v{t+1}, 1")
        for i in range(5):
            a(f"global_load_dwordx2 {v2(self.xs(i))}, v231, {sp(pX)} offset:{32*i}", tag="ep")

    def skip_terms(self):
        a = self.a
        DA, DB, t, SPK = 100, 110, 130, self.SPK
        for i in range(5):
            a(f"ds_read_b64 {v2(DA+2*i)}, v{self.DO} offset:{32*i}", tag="dk")
            a(f"ds_read_b64 {v2(DB+2*i)}, v{self.DO} offset:{160+32*i}", tag="dk")
        a.wait(vm="ep", lgkm="dk")
        for i in range(5):
            x0 = self.xs(i)
            a(f"v_lshlrev_b32 v{t}, 16, v{x0}")
            a(f"v_and_b32 v{t+1}, 0xffff0000, v{x0}")
            a(f"v_lshlrev_b32 v{t+2}, 16, v{x0+1}")
            a(f"v_and_b32 v{t+3}, 0xffff0000, v{x0+1}")
            for b, dsk in enumerate((DA + 2 * i, DB + 2 * i)):
                a(f"v_lshlrev_b32 v{t+4}, 16, v{dsk}")
                a(f"v_and_b32 v{t+5}, 0xffff0000, v{dsk}")
                a(f"v_lshlrev_b32 v{t+6}, 16, v{dsk+1}")
                a(f"v_and_b32 v{t+7}, 0xffff0000, v{dsk+1}")
                a(f"v_pk_mul_f32 {v2(t+4)}, {v2(t)}, {v2(t+4)}")
                a(f"v_pk_mul_f32 {v2(t+6)}, {v2(t+2)}, {v2(t+6)}")
                a(f"v_cvt_pk_bf16_f32 v{SPK+4*i+2*b}, v{t+4}, v{t+5}")
                a(f"v_cvt_pk_bf16_f32 v{SPK+4*i+2*b+1}, v{t+6}, v{t+7}")

    def gate(self, T):
        a = self.a
        GX, GW, FG = self.GX, self.GW, self.FG
        a(f"v_mov_b32 v{T}, 0")
        a(f"v_mov_b32 v{T+1}, 0")
        a.wait(vm="gate", lgkm="gw")
        for k in range(10):
            a(f"v_dot2_f32_bf16 v{T+(k & 1)}, v{GX+k}, v{GW+k}, v{T+(k & 1)}")
        a(f"v_mov_b32 v{FG+1}, s{sTAG}")
        a(f"v_mov_b32 v{FG+3}, s{sTAG}")
        a(f"v_add_f32 v{T}, v{T}, v{T+1}")
        for k in (8, 4, 2, 1):
            a(f"v_add_f32_dpp v{T}, v{T}, v{T} row_ror:{k} row_mask:0xf bank_mask:0xf")
        a(f"v_mov_b32 v{T+1}, v{T}")
        a(f"v_permlane16_swap_b32 v{T}, v{T+1}")
        a(f"v_add_f32 v{T}, v{T}, v{T+1}")
        a(f"v_cvt_pk_bf16_f32 v{T}, v{T}, v{T}")
        a(f"v_lshlrev_b32 v{T}, 16, v{T}")
        a(f"v_mul_f32 v{T}, 0xbfb8aa3b, v{T}")
        a(f"v_exp_f32 v{T}, v{T}")
        a(f"v_add_f32 v{T}, 1.0, v{T}")
        a(f"v_rcp_f32 v{T}, v{T}")
        a(f"v_cvt_pk_bf16_f32 v{T}, v{T}, v{T}")
        a(f"v_lshlrev_b32 v{FG}, 16, v{T}")
        a(f"v_mov_b32 v{FG+2}, v{FG}")
        a(f"v_permlane32_swap_b32 v{FG}, v{FG+2}")

    def tab_entry(self, r, dst, idx, add):
        r(f"v_cmp_eq_u32 vcc, 0, v{idx}")
        r(f"v_add_u32 v{dst}, {add}, v{idx}")
        r(f"v_mul_u32_u24 v{dst}, 640, v{dst}")
        r(f"v_add_u32 v{dst}, v{self.VP}, v{dst}")
        r(f"v_cndmask_b32 v{dst}, v{dst}, v{self.VP}, vcc")

    def tab_rd(self, r, dst, va, off, tag):
        for n in range(5):
            r(f"ds_read_b64 {v2(dst+2*n)}, v{va} offset:{off+128*n}", tag=tag)

    def shadow(self):
        L1, L2, WQ, V, MC, T, VP, Q = self.L1, self.L2, self.WQ, self.V, self.MC, self.T4, self.VP, self.Q
        S = {}
        r = self.rec()
        r(f"s_lshl_b32 s{sT0}, s{sW}, 2")
        r(f"s_sub_u32 s{sT0}, s{sTC}, s{sT0}")
        r(f"s_sub_u32 s{sT0}, s{sT0}, 1")
        r(f"v_sub_u32 v{T}, s{sT0}, v{Q}")
        r(f"v_cmp_le_i32 {sp(sT2)}, 0, v{T}")
        r(f"v_max_i32 v{T}, 0, v{T}")
        r(f"v_and_b32 v{T+1}, 3, v{T}")
        r(f"v_lshrrev_b32 v{T}, 2, v{T}")
        self.tab_entry(r, 226, T + 1, 9)
        S[2] = r
        r = self.rec()
        self.tab_entry(r, 227, T, 12)
        self.tab_entry(r, 228, Q, 3)
        r(f"v_mov_b32 v{T}, s{sW}")
        S[3] = r
        r = self.rec()
        self.tab_entry(r, 229, T, 6)
        r(f"v_and_b32 v230, 1, v{Q}")
        r(f"v_mul_u32_u24 v230, {4*640}, v230")
        r(f"v_add_u32 v230, v{VP}, v230")
        S[4] = r
        r = self.rec()
        r(f"v_sub_u32 v{T}, 3, v{Q}")
        self.tab_entry(r, T + 2, T, 3)
        self.tab_rd(r, WQ, T + 2, 0, "t1")
        S[5] = r
        r = self.rec()
        self.tab_rd(r, L2, VP, 2 * 640, "t1")
        self.tab_rd(r, L1, VP, 1 * 640, "t1")
        S[6] = r
        r = self.rec()
        r(f"v_and_b32 v2, 15, v0")
        r(f"v_lshlrev_b32 v1, 3, v2")
        r(f"v_lshlrev_b32 v2, 4, v2")
        r(f"s_lshl_b32 s{sT1}, s{sW}, 7")
        r(f"s_add_u32 s{sT1}, s{sT1}, {PART1}")
        r(f"v_add_u32 v1, s{sT1}, v1")
        r(f"v_lshrrev_b32 v7, 1, v{Q}")
        r(f"v_lshl_add_u32 v4, v7, 2, v1")
        r(f"v_add_u32 v4, 384, v4")
        r(f"v_and_b32 v6, 1, v{Q}")
        r(f"v_mul_u32_u24 v3, 896, v6")
        r(f"v_add_u32 v3, v3, v4")
        S[18] = r
        r = self.rec()
        r(f"v_bfe_u32 v232, v0, 2, 2")
        r(f"v_bfe_u32 v233, v0, 4, 1")
        r(f"v_lshl_add_u32 v232, v233, 3, v232")
        r(f"v_bfe_u32 v233, v0, 1, 1")
        r(f"v_lshlrev_b32 v234, 2, v233")
        r(f"v_xor_b32 v232, v232, v234")
        r(f"v_lshlrev_b32 v232, 4, v232")
        r(f"v_lshl_add_u32 v232, v233, 8, v232")
        r(f"v_and_b32 v233, 1, v0")
        r(f"v_lshl_add_u32 v232, v233, 3, v232")
        r(f"v_bfe_u32 v233, v0, 5, 1")
        r(f"v_lshl_add_u32 v232, v233, 9, v232")
        r(f"v_add_u32 v{self.TP}, s{sBW}, v232")
        r(f"v_xor_b32 v{self.TP+1}, 64, v{self.TP}")
        r(f"v_and_b32 v232, 31, v0")
        r(f"v_lshlrev_b32 v232, 4, v232")
        r(f"v_lshl_add_u32 v{self.HS}, v233, 10, v232")
        S[8] = r
        r = self.rec()
        r(f"s_lshr_b32 s{sT0}, s{sW}, 1")
        r(f"s_lshl_b32 s{sT0}, s{sT0}, 8")
        r(f"s_and_b32 s{sT1}, s{sW}, 1")
        r(f"s_lshl_b32 s{sT1}, s{sT1}, 3")
        r(f"s_add_u32 s{sT0}, s{sT0}, s{sT1}")
        r(f"s_add_u32 s{sT0}, s{sT0}, {PART2}")
        r(f"v_lshl_add_u32 v15, v7, 2, v2")
        r(f"v_add_u32 v15, s{sT0}, v15")
        r(f"v_lshl_add_u32 v14, v6, 9, v15")
        r(f"v_add_u32 v16, {PART2}, v2")
        r(f"v_mul_u32_u24 v17, 1280, v{Q}")
        r(f"v_add_u32 v17, v17, v2")
        r(f"v_lshlrev_b32 v6, 6, v6")
        r(f"v_xor_b32 v6, v6, v2")
        r(f"v_lshl_add_u32 v5, v{Q}, 8, v6")
        r(f"v_add_u32 v5, s{sBW}, v5")
        r(f"v_lshl_add_u32 v{T}, v{Q}, 2, s{sW}")
        r(f"v_min_u32 v{T+1}, 4, v{T}")
        r(f"v_lshl_add_u32 v{T+2}, v{T+1}, 7, v{VP}")
        r(f"ds_read_b64 {v2(T+2)}, v{T+2} offset:{7*640}", tag="t1")
        r(f"v_lshl_add_u32 v6, v{T}, 8, v2")
        r(f"v_mul_u32_u24 v7, 896, v{T+1}")
        r(f"v_add_u32 v7, v7, v{VP}")
        r(f"v_add_u32 v7, {PART1 + 384 - TAB}, v7")
        S[19] = r
        return S

    def htouch(self, k):
        a = self.a
        return Op(lambda: (a("s_mov_b32 exec_hi, 0xff"),
                           a(f"buffer_load_dword a{248+k}, v239, {srd(SWS)}, s{(sHRE, sHIM)[k]} offen", tag="pf"),
                           a("s_mov_b64 exec, -1")), dma=True)

    def gemm1(self):
        a, cfg = self.a, self.cfg
        a.wait(vm="st0")
        a("s_barrier")
        self.stamp("st0")
        run(self.frag_reads(0))
        S = self.shadow()
        queue = list(self.dma_stage(2)) + list(self.dma_stage(3))

        nu = 0
        held = []
        for h in range(20):
            s, u = h >> 1, h & 1
            if u == 1:
                if s < 9:
                    assert all(o.tag != f"st{s+1}" for o in queue)
                    a.wait(vm=f"st{s+1}", lgkm=0)
                else:
                    a.wait(lgkm=0)
                a("s_barrier")
            else:
                a.wait(lgkm=0)
            if h in (2, 4, 8, 12, 16):
                self.stamp(f"gh{h}")
            streams = []
            if h < 19:
                streams.append((self.frag_reads(h + 1), 0, 1))
            if u == 1:
                if s + 4 <= 9:
                    queue += self.dma_stage(s + 4)
                    if s + 4 == cfg.touch:
                        queue.append(Op(lambda: (a("s_mov_b64 exec, 0x1f"),
                                                 a(f"global_load_dword a250, v240, {sp(pWS)}", tag="pf"),
                                                 a("s_mov_b64 exec, -1")), dma=True))
                    if s + 4 == cfg.htouch:
                        queue.append(Op(lambda: (a("v_and_b32 v239, 63, v0"), a("v_lshrrev_b32 v238, 3, v239"), a("v_and_b32 v239, 7, v239"),
                                                 a("v_lshlrev_b32 v239, 7, v239"), a("v_lshl_add_u32 v239, v238, 11, v239"))))
                        queue.append(self.htouch(0))
                        if cfg.ht2 < 0:
                            queue.append(self.htouch(1))
                    if s + 4 == cfg.pf_at:
                        queue.append(Op(lambda: (a("s_mov_b64 exec, 0x1ffffff"),
                                                 a(f"global_load_dword a255, v242, {sp(sM)}", tag="pf"),
                                                 a("s_mov_b64 exec, -1")), dma=True, tag="pfc"))
                else:
                    for _ in range(4):
                        (held if cfg.hold_c else queue).extend(self.c_dma(nu))
                        nu += 1
            if h == cfg.ht2 and cfg.htouch:
                queue.append(self.htouch(1))
            pace = 5 if cfg.hold_c else cfg.pace0 if h < cfg.pace0_h else cfg.pace if h < cfg.pace_h else cfg.pace_c
            now, k = [], 0
            while queue and k < pace:
                o = queue.pop(0)
                now.append(o)
                k += o.dma
            left = {o.tag for o in queue}
            assert not (h >= 17 and any(t and t.startswith("st") for t in left))
            if now:
                streams.append((now, cfg.dma_phase, min(19.0 / len(now), cfg.maxstep)))
            if h in S:
                ops = S[h]
                streams.append((ops, 0, 19.0 / len(ops)))
            F = 100 + 48 * (h & 1)
            mf = []
            for k in range(10):
                for m in range(2):
                    d = self.acc(m, k >> 1, k & 1)
                    mf.append(f"v_mfma_f32_16x16x32_bf16 {v4(d)}, {v4(F+4*m)}, {v4(F+8+4*k)}, {'0' if h == 0 else v4(d)}")
            self.weave(mf, streams)
        self.cq = self.c_stream(queue + held)
        self.stamp("gemm1")

    def swap_reduce(self, Z, va, o1, o2):
        a = self.a
        for n in range(5):
            a(f"v_permlane32_swap_b32 v{Z+2*n}, v{Z+2*n+1}")
        for n in (4, 0, 1, 2, 3):
            a(f"v_add_f32 v{Z+2*n}, v{Z+2*n}, v{Z+2*n+1}")
            if n == 0:
                a(f"v_mov_b32 v{Z+9}, v{Z+8}")
        a(f"v_permlane16_swap_b32 v{Z+8}, v{Z+9}")
        a(f"v_permlane16_swap_b32 v{Z}, v{Z+2}")
        a(f"v_permlane16_swap_b32 v{Z+4}, v{Z+6}")
        a(f"v_add_f32 v{Z+8}, v{Z+8}, v{Z+9}")
        a(f"v_add_f32 v{Z}, v{Z}, v{Z+2}")
        a(f"v_add_f32 v{Z+4}, v{Z+4}, v{Z+6}")
        a(f"ds_write_b32 v{va+1}, v{Z+8} offset:{o2}", tag="pw")
        a(f"ds_write_b32 v{va}, v{Z}", tag="pw")
        a(f"ds_write_b32 v{va}, v{Z+4} offset:{o1}", tag="pw")

    def scan(self):
        a, cfg = self.a, self.cfg
        L1, L2, WQ, V, MC, T, VP, Q, U, FG = self.L1, self.L2, self.WQ, self.V, self.MC, self.T4, self.VP, self.Q, self.U, self.FG
        E = 180
        Z = 100
        TA, TB = 110, 114
        PL = T + 2
        a.wait(lgkm="t1")
        a.bg(self.c_take(cfg.k1), cfg.p1)
        for n in range(5):
            ur, ui = self.acc(0, n, 0), self.acc(0, n, 1)
            er, ei = ur, ui
            for k in range(1, 4):
                X = TA if k & 1 else TB
                a(f"v_pk_fma_f32 {v2(X)}, {v2(er)}, {v2(L2+2*n)}, {v2(ur+2*k)} op_sel_hi:[1,0,1]")
                a(f"v_pk_fma_f32 {v2(X+2)}, {v2(ei)}, {v2(L2+2*n)}, {v2(ui+2*k)} op_sel_hi:[1,0,1]")
                a(f"v_pk_fma_f32 {v2(X)}, {v2(ei)}, {v2(L2+2*n)}, {v2(X)} op_sel:[0,1,0] op_sel_hi:[1,1,1] neg_lo:[1,0,0] neg_hi:[1,0,0]")
                a(f"v_pk_fma_f32 {v2(X+2)}, {v2(er)}, {v2(L2+2*n)}, {v2(X+2)} op_sel:[0,1,0] op_sel_hi:[1,1,1]")
                er, ei = X, X + 2
            a(f"v_fma_f32 v{E+2*n}, v{L1+2*n}, v{er}, v{er+1}")
            a(f"v_fma_f32 v{E+2*n+1}, v{L1+2*n}, v{ei}, v{ei+1}")
            a(f"v_fma_f32 v{E+2*n}, -v{L1+2*n+1}, v{ei}, v{E+2*n}")
            a(f"v_fma_f32 v{E+2*n+1}, v{L1+2*n+1}, v{er}, v{E+2*n+1}")
            cmul(a, Z + 2 * n, E + 2 * n, WQ + 2 * n)
        a.bg_flush()
        if cfg.ht2 == 20 and cfg.htouch:
            self.htouch(1)()
        self.swap_reduce(Z, 3, 1792, 3584)
        PG = 114
        CF, L8 = L2, WQ
        a(f"v_cmp_gt_u32 vcc, 5, v{T}")
        a(f"v_mov_b32 v{PG+1}, s{sTAG}")
        a(f"v_mov_b32 v{PG+3}, s{sTAG}")
        a(f"s_mov_b64 {sp(sM)}, {sp(sT2)}")
        a.wait(lgkm=0)
        a("s_barrier")
        for k in range(4):
            a(f"ds_read_b64 {v2(120+2*k)}, v7 offset:{128*k}", tag="pr")
        r = self.rec()
        self.tab_rd(r, CF, VP, 3 * 640, "t2")
        self.tab_rd(r, L8, VP, 4 * 640, "t2")
        run(r)
        a(f"s_and_saveexec_b64 {sp(sT2)}, vcc")
        a.wait(lgkm="pr")
        cfma(a, 128, 120, PL, 122)
        cfma(a, 130, 128, PL, 124)
        cfma(a, 128, 130, PL, 126)
        a(f"v_mov_b32 v{PG}, v128")
        a(f"v_mov_b32 v{PG+2}, v129")
        a(f"buffer_store_dwordx4 {v4(PG)}, v6, {srd(SWS)}, s{sPUB} offen sc1", tag="pub")
        a(f"s_mov_b64 exec, -1")
        self.stamp("pub")

        if cfg.ht2 == 21 and cfg.htouch:
            self.htouch(1)()
        if cfg.cpf >= 2:
            run(self.code_prefetch(132, 2))
        run(self.c_take(cfg.k2a))
        a.wait(lgkm="t2")
        a.bg(self.c_take(cfg.k2), cfg.p2)
        for n in range(5):
            for j in range(8):
                ur, ui = self.acc(0, n, 0) + (j & ~1), self.acc(0, n, 1) + (j & ~1)
                o = j & 1
                d = U + 16 * n + 2 * j
                a(f"v_pk_mul_f32 {v2(d)}, {v2(CF+2*n)}, {v2(ur)} op_sel:[0,{o}] op_sel_hi:[1,{o}]")
                a(f"v_pk_fma_f32 {v2(d)}, {v2(CF+2*n)}, {v2(ui)}, {v2(d)} op_sel:[1,{o},0] op_sel_hi:[0,{o},1] neg_lo:[1,0,0]")
        self.stamp("coef")
        A_, P_, C_, MU, L8Q, L32, Y0, Y1 = 20, 30, 40, 50, 60, 70, 80, 90
        SL, G = 180, 40
        r = self.rec()
        self.tab_rd(r, MU, 230, 0, "t3")
        self.tab_rd(r, L32, VP, 7 * 640, "t3")
        for n in range(5):
            r(f"ds_read_b64 {v2(Y0+2*n)}, v1 offset:{896*n}", tag="t3")
        for n in range(5):
            r(f"ds_read_b64 {v2(Y1+2*n)}, v1 offset:{896*n+128}", tag="t3")
        self.tab_rd(r, L8Q, 228, 0, "t3")
        run(r)
        for n in range(5):
            a(f"v_mov_b64 {v2(A_+2*n)}, {v2(E+2*n)}")
        for n in range(5):
            a(f"v_permlane16_swap_b32 v{A_+2*n}, v{E+2*n}")
            a(f"v_permlane16_swap_b32 v{A_+2*n+1}, v{E+2*n+1}")
        for n in range(5):
            cfma(a, P_ + 2 * n, A_ + 2 * n, L8 + 2 * n, E + 2 * n)
        for n in range(5):
            a(f"ds_read_b64 {v2(L8+2*n)}, v1 offset:{896*n+256}", tag="t4")
        for n in range(5):
            a(f"v_mov_b64 {v2(C_+2*n)}, {v2(P_+2*n)}")
        for n in range(5):
            a(f"v_permlane32_swap_b32 v{C_+2*n}, v{P_+2*n}")
            a(f"v_permlane32_swap_b32 v{C_+2*n+1}, v{P_+2*n+1}")
        per = a.bg_pause()
        a("s_mov_b32 exec_hi, 0")
        for n in range(5):
            a(f"v_mov_b64 {v2(C_+2*n)}, 0")
        a("s_mov_b32 exec_lo, 0xffff")
        a("s_mov_b32 exec_hi, 0xffff")
        for n in range(5):
            a(f"v_mov_b64 {v2(A_+2*n)}, 0")
        a("s_mov_b64 exec, -1")
        a.bg_period = per
        a.wait(lgkm="t3")
        for n in range(5):
            cfma(a, P_ + 2 * n, C_ + 2 * n, MU + 2 * n, A_ + 2 * n)
            cfma(a, Y1 + 2 * n, Y0 + 2 * n, L32 + 2 * n, Y1 + 2 * n)
        for k in range(0, 20, 2):
            a(f"v_mov_b64 {v2(G+k)}, 0")
        a.bg_flush()
        a(f"s_mov_b32 s{sSPIN}, {cfg.spin}")

        def g_loads(tag):
            for n in range(5):
                a(f"buffer_load_dwordx4 {v4(G+4*n)}, v17, {srd(SWS)}, s{sGAT} offen offset:{256*n} sc1", tag=tag, counted=False)

        def g_check():
            a(f"v_min3_u32 v{T}, v{G+1}, v{G+3}, v{G+5}")
            a(f"v_max3_u32 v{T+1}, v{G+1}, v{G+3}, v{G+5}")
            for k in (7, 11, 15):
                a(f"v_min3_u32 v{T}, v{T}, v{G+k}, v{G+k+2}")
                a(f"v_max3_u32 v{T+1}, v{T+1}, v{G+k}, v{G+k+2}")
            a(f"v_min_u32 v{T}, v{T}, v{G+19}")
            a(f"v_max_u32 v{T+1}, v{T+1}, v{G+19}")
            a(f"v_cmp_ne_u32 vcc, s{sTAG}, v{T}")
            a(f"v_cmp_ne_u32 {sp(sT2)}, s{sTAG}, v{T+1}")
            a(f"s_or_b64 vcc, vcc, {sp(sT2)}")
        self.stamp("w1done")
        a(f"s_mov_b64 exec, {sp(sM)}")
        a("s_cbranch_execz L_g0")
        g_loads("g1")
        a("L_g0:")
        a("s_mov_b64 exec, -1")
        a.bg(self.c_take(cfg.k3), cfg.p3)
        r = self.rec()
        self.tab_rd(r, A_, 226, 0, "t5")
        self.tab_rd(r, Y0, 227, 0, "t5")
        run(r)
        a.wait(lgkm="t4")
        for n in range(5):
            cfma(a, L8 + 2 * n, Y1 + 2 * n, L32 + 2 * n, L8 + 2 * n)
        r = self.rec()
        self.tab_rd(r, Y1, 229, 0, "t6")
        run(r)
        for n in range(5):
            cfma(a, P_ + 2 * n, L8 + 2 * n, L8Q + 2 * n, P_ + 2 * n)
            cmul(a, SL + 2 * n, P_ + 2 * n, CF + 2 * n)
        a.wait(lgkm="t5")
        for n in range(5):
            cmul(a, V + 2 * n, A_ + 2 * n, Y0 + 2 * n)
        a.wait(lgkm="t6")
        for n in range(5):
            cmul(a, A_ + 2 * n, L8Q + 2 * n, Y1 + 2 * n)
            cmul(a, L8 + 2 * n, A_ + 2 * n, CF + 2 * n)
        MC = L8
        a.bg_flush()
        if cfg.fast:
            a(f"v_and_b32 v94, 7, v0")
            a(f"v_lshlrev_b32 v94, 7, v94")
            a(f"s_lshl_b32 s{sT0}, s{sTC}, 1")
            a(f"s_add_u32 s{sT0}, s{sT0}, s{sBR}")
            a(f"s_lshl_b32 s{sT0}, s{sT0}, 10")
            a(f"s_add_u32 s{sT0}, s{sT0}, {WS_XCC}")
            a(f"buffer_load_dwordx2 {v2(96)}, v94, {srd(SWS)}, s{sT0} offen sc1", tag="xc")
        self.gate_loads(96)
        self.skip_loads(96)
        assert all(o.tag not in [f"c{u}" for u in range(16)] for o in self.cq_ops()), "the first 16 C units must be under way"
        for u in range(9, 16):
            run(self.c_drain(u))
        a.wait(vm="g1")
        a(f"s_mov_b64 exec, {sp(sM)}")
        a("s_cbranch_execz L_got")
        g_check()
        a("s_cbranch_vccz L_got")
        a("L_poll1:")
        g_loads("g1b")
        a(f"s_sub_u32 s{sSPIN}, s{sSPIN}, 1")
        a("s_waitcnt vmcnt(0)", slow=True)
        g_check()
        a(f"s_cmp_eq_u32 s{sSPIN}, 0")
        a("s_cbranch_scc1 L_got")
        a("s_cbranch_vccnz L_poll1")
        a("L_got:")
        a("s_mov_b64 exec, -1")
        self.stamp("got")
        Z2 = 60
        for n in range(5):
            a(f"v_pk_mul_f32 {v2(Z2+2*n)}, {v2(V+2*n)}, {v2(G+4*n)} op_sel_hi:[1,0]")
            a(f"v_pk_fma_f32 {v2(Z2+2*n)}, {v2(V+2*n)}, {v2(G+4*n+2)}, {v2(Z2+2*n)} op_sel:[1,0,0] op_sel_hi:[0,0,1] neg_lo:[1,0,0]")
        self.swap_reduce(Z2, 14, 1024, 2048)
        a(f"v_mov_b32 v{T}, 0")
        if cfg.fast:
            a.wait(vm="xc")
            a(f"v_cmp_eq_u32 vcc, s{sLATE}, v96")
            a(f"v_cmp_eq_u32 {sp(sT2)}, s{sTAG}, v97")
            a(f"s_and_b64 vcc, vcc, {sp(sT2)}")
            a(f"s_cmp_eq_u64 vcc, exec")
            a(f"s_cselect_b32 s{sLATE}, {0 if cfg.fast == 2 else 1}, 0")
        a(f"s_cmp_eq_u32 s{sLATE}, 0")
        a.wait(lgkm=0)
        a("s_barrier")
        for n in range(5):
            a(f"ds_read_b128 {v4(20+8*n)}, v16 offset:{512*n}", tag=f"cr{n}")
            a(f"ds_read_b128 {v4(24+8*n)}, v16 offset:{512*n+256}", tag=f"cr{n}")
        if cfg.split or cfg.fast:
            a("s_cbranch_scc1 L_late")
        pol = ";POL" if cfg.fast else "sc1"
        k4, k5 = self.c_take(cfg.k4), self.c_take(999)

        def stores(n):
            w0 = 20 + 8 * n
            for part, so in enumerate((sHRE, sHIM)):
                a.wait(lgkm=f"tp{n}{part}")
                a(f"buffer_store_dwordx4 {v4(w0+4*part)}, v{self.HS}, {srd(SWS)}, s{so} offen {pol}", tag="hst")
            if n < 4:
                a(f"s_add_u32 s{sHRE}, s{sHRE}, s{(sD0, sD1)[n & 1]}")
                a(f"s_add_u32 s{sHIM}, s{sHIM}, s{(sD0, sD1)[n & 1]}")

        def turn(n, part):
            d = 20 + 8 * n + 4 * part
            off = SLOT + ((2 * n + part) % 8) * 1024
            a(f"ds_write_b128 v5, {v4(d)} offset:{off}", tag="tw")
            for rho in range(2):
                a(f"ds_read_b64_tr_b16 {v2(d+2*rho)}, v{self.TP+rho} offset:{off}", tag=f"tp{n}{part}")

        def pass2(late):
            a.bg(list(k4), cfg.p4)
            for n in range(5):
                w0 = 20 + 8 * n
                a.wait(lgkm=f"cr{n}")
                a(f"v_pk_add_f32 {v2(w0)}, {v2(w0)}, {v2(w0+2)}")
                a(f"v_pk_add_f32 {v2(w0+4)}, {v2(w0+4)}, {v2(w0+6)}")
                a(f"v_pk_add_f32 {v2(w0)}, {v2(w0)}, {v2(w0+4)}")
                cfma(a, SL + 2 * n, w0, MC + 2 * n, SL + 2 * n)
                prev = SL + 2 * n
                for j in range(8):
                    d = U + 16 * n + 2 * j
                    cfma(a, d, prev, L1 + 2 * n, d)
                    prev = d
                    if j == cfg.st_j and n > 0 and not late:
                        stores(n - 1)
                for k in range(4):
                    d = U + 16 * n + 4 * k
                    a(f"v_cvt_pk_bf16_f32 v{w0+k}, v{d}, v{d+2}")
                turn(n, 0)
                for k in range(4):
                    d = U + 16 * n + 4 * k
                    a(f"v_cvt_pk_bf16_f32 v{w0+4+k}, -v{d+1}, -v{d+3}")
                turn(n, 1)
            if not late:
                stores(4)
            a.bg_flush()
            def stamp(name):
                if not late:
                    self.stamp(name)
                elif cfg.prof and name in self.stamp_names:
                    a("s_memtime %s" % sp(STAMP_REGS[self.stamp_names.index(name)]))
            stamp("hst")
            if late or not cfg.c_after:
                a.bg(list(k5), cfg.p5)
            self.gate(90)
            self.gemm2_setup()
            self.skip_terms()
            a.bg_flush()
            if late or cfg.dr_early:
                for u in range(16, 25):
                    run(self.c_drain(u))
            stamp("pre")
            if late:
                if cfg.split == 2:
                    a("s_barrier")
                stamp("bar")
                for n in range(5):
                    stores(n)
            stamp("lst")
            a.wait(vm="hst")
            stamp("ack")
            a(f"s_mov_b64 exec, {0xff if cfg.full else 1}")
            a(f"buffer_store_dwordx4 {v4(FG)}, v{self.VH}, {srd(SWS)}, s{sFLG} offen {pol}", tag="flag")
            a("s_mov_b64 exec, -1")
            if cfg.split == 2 and not late:
                a("s_barrier")
                stamp("bar")
            if cfg.c_after and not late:
                run(k5)
            if not (late or cfg.dr_early):
                for u in range(16, 25):
                    run(self.c_drain(u))
        first = len(a.ins)
        pass2(False)
        if cfg.fast:
            self.tail = ["L_late:"] + [x.text.replace(";POL", "sc1") for x in a.ins[first:]] + ["s_branch L_join"]
            a("L_join:")
        elif cfg.split:
            main = a.ins[first:]
            del a.ins[first:]
            pass2(True)
            self.tail = ["L_late:"] + [x.text for x in a.ins[first:]] + ["s_branch L_join"]
            a.ins[first:] = main
            a("L_join:")
        self.stamp("flag")

    ACCA, ACCB = 20, 100
    HF = 180
    VT = 212
    VH = 216
    GG = 218
    XO, DO, OO, EW, ER, EW2, PO, BP, PO2 = 1, 2, 3, 4, 6, 7, 8, 9, 217
    SPK = 222
    PV = 242

    def gemm2_setup(self):
        a = self.a
        VT, VH = self.VT, self.VH
        T0, T1, T2, T3 = 14, 15, 16, 17
        a(f"v_and_b32 v{VH}, 63, v0")
        a(f"v_lshlrev_b32 v{VH}, 4, v{VH}")
        a(f"v_bfe_u32 v{T0}, v0, 2, 4")
        a(f"v_and_b32 v{T1}, 3, v0")
        a(f"v_lshlrev_b32 v{self.PO2}, 7, v{T0}")
        a(f"v_bfe_u32 v{T2}, v0, 4, 2")
        a(f"v_bfe_u32 v{T3}, v0, 3, 1")
        a(f"v_lshl_add_u32 v{T2}, v{T2}, 2, v{T3}")
        a(f"s_xor_b32 s{sT0}, s{sBR}, 1")
        a(f"s_lshl_b32 s{sT0}, s{sT0}, 8")
        a(f"v_lshl_add_u32 v{self.PO}, v{T2}, 7, s{sT0}")
        a(f"v_lshlrev_b32 v{self.DO}, 3, v{T1}")
        a(f"v_add_u32 v{self.DO}, {LDK}, v{self.DO}")
        a(f"v_lshlrev_b32 v{self.OO}, 1, v231")
        a(f"v_bfe_u32 v{T2}, v{T0}, 1, 2")
        a(f"v_xor_b32 v{T2}, v{T2}, v{T1}")
        a(f"v_lshlrev_b32 v{T2}, 4, v{T2}")
        a(f"v_mul_u32_u24 v{T3}, 320, v{T0}")
        a(f"s_mul_i32 s{sT1}, s{sW}, {SLOT}")
        a(f"s_add_u32 s{sT1}, s{sT1}, 4096")
        a(f"v_add3_u32 v{self.ER}, v{T2}, v{T3}, s{sT1}")
        a(f"s_and_b32 s{sT1}, s{sW}, 1")
        a(f"s_lshl_b32 s{sT1}, s{sT1}, 7")
        a(f"v_lshrrev_b32 v{T2}, 1, v{T0}")
        a(f"v_lshl_add_u32 v{self.BP}, v{T2}, 4, s{sT1}")
        a(f"v_and_b32 v{T0}, 15, v0")
        a(f"v_bfe_u32 v{T1}, v0, 4, 2")
        a(f"v_bfe_u32 v{T2}, v{T0}, 1, 2")
        a(f"v_xor_b32 v{T2}, v{T2}, v{T1}")
        a(f"v_lshlrev_b32 v{T2}, 4, v{T2}")
        a(f"v_mul_u32_u24 v{T3}, 320, v{T0}")
        a(f"s_add_u32 s{sT1}, s{sBW}, 4096")
        a(f"v_add3_u32 v{self.EW}, v{T2}, v{T3}, s{sT1}")
        a(f"v_add_u32 v{self.EW2}, {2*SLOT}, v{self.EW}")

    def h_loads(self, s):
        r = self.rec()
        base = sHA if s < 10 else sHB
        f, F = self.h_buf(s)
        if s in (0, 10):
            r(f"s_add_u32 s{sK}, s{base}, s{sROT}")
            r(f"s_add_u32 s{sEND}, s{base}, 40960")
        for b in range(4):
            r(f"buffer_load_dwordx4 {v4(F+4*b, f)}, v{self.VH}, {srd(SWS)}, s{sK} offen offset:{1024*b} {self.cfg.hpol}", tag=f"h{s}")
        if s not in (9, 19):
            r(f"s_add_u32 s{sK}, s{sK}, 4096")
            if s & 1 and self.cfg.rot:
                r.group(f"s_cmp_eq_u32 s{sK}, s{sEND}", f"s_cselect_b32 s{sK}, s{base}, s{sK}")
        return r

    def h_buf(self, s):
        return (("v", self.HF), ("v", self.HF + 16), ("a", 200), ("a", 216), ("a", 232))[s % 5]

    def part_writes(self, base):
        r = self.rec()
        for nt in range(5):
            for mt in range(4):
                r(f"ds_write_b128 v{self.EW2 if mt >> 1 else self.EW}, {v4(base + 16*nt + 4*mt)} offset:{(mt & 1)*SLOT + 64*nt}", tag="ew")
        return r

    def part_reads(self, base, tag):
        r = self.rec()
        for i in range(5):
            for wp in range(4):
                r(f"ds_read_b128 {v4(base+16*i+4*wp)}, v{self.ER} offset:{wp*PIECE + 64*i}", tag=f"{tag}{i}")
        return r

    def gemm2(self):
        a, cfg = self.a, self.cfg
        GG, PV, SPK, T = self.GG, self.PV, self.SPK, self.T4
        A, B = self.ACCA, self.ACCB
        if cfg.cpf >= 3:
            run(self.code_prefetch(140, 3))
        a(f"s_mov_b32 s{sSPIN}, {cfg.spin}")

        def p_load(tag, po=self.PO, counted=True):
            a(f"buffer_load_dwordx4 {v4(PV)}, v{po}, {srd(SWS)}, s{sPOL} offen sc1", tag=tag, counted=counted)

        def p_check():
            a(f"v_cmp_ne_u32 vcc, s{sTAG}, v{PV+1}")
            a(f"v_cmp_ne_u32 {sp(sT2)}, s{sTAG}, v{PV+3}")
            a(f"s_or_b64 vcc, vcc, {sp(sT2)}")
        self.stamp("w3done")
        po1 = self.PO if cfg.split else self.PO2
        p_load("g2", po1)
        a.wait(vm=0)
        p_check()
        a("s_cbranch_vccz L_got2")
        a("L_poll2:")
        if cfg.nap:
            a(f"s_sleep {cfg.nap}")
        p_load("g2b", po1)
        a(f"s_sub_u32 s{sSPIN}, s{sSPIN}, 1")
        a.wait(vm=0)
        p_check()
        a(f"s_cmp_eq_u32 s{sSPIN}, 0")
        a("s_cbranch_scc1 L_got2")
        a("s_cbranch_vccnz L_poll2")
        a("L_got2:")
        self.stamp("got2")
        for s in range(4):
            run(self.h_loads(s))
        a(f"s_mul_i32 s{sT0}, s{sXS}, 5120")
        a(f"s_add_u32 s{sT0}, s{sT0}, {WS_XCH}")
        a(f"s_mul_i32 s{sT1}, s{sXR}, 5120")
        a(f"s_add_u32 s{sT1}, s{sT1}, {WS_XCH}")
        a(f"s_lshl_b32 s{sXS}, s{sXS}, 7")
        a(f"s_add_u32 s{sXS}, s{sXS}, {WS_XF}")
        a(f"s_lshl_b32 s{sXR}, s{sXR}, 7")
        a(f"s_add_u32 s{sXR}, s{sXR}, {WS_XF}")
        a(f"s_mov_b32 s{sPUB}, s{sT0}")
        a(f"s_mov_b32 s{sGAT}, s{sT1}")
        a(f"s_add_u32 s{sHRE}, s{sT0}, 4096")
        a(f"s_add_u32 s{sHIM}, s{sT1}, 4096")
        a(f"s_mov_b32 s{sSPIN}, {cfg.spin}")
        a.wait(vm="h0", lgkm=0)
        self.stamp("h0")
        rb = self.rec()
        rb(f"ds_bpermute_b32 v{T}, v{self.BP}, v{PV}", tag="bp")
        rb(f"ds_bpermute_b32 v{T+1}, v{self.BP}, v{PV+2}", tag="bp")
        r0 = self.rec()
        r0.wait(lgkm="bp")
        r0(f"v_and_b32 v{T+2}, 4, v0")
        r0(f"v_cmp_ne_u32 vcc, 0, v{T+2}")
        r0(f"v_cndmask_b32 v{GG}, v{T}, v{T+1}, vcc", strict=True)
        r0(f"v_sub_f32 v{GG+1}, 1.0, v{GG}")
        r0(f"v_cvt_pk_bf16_f32 v{GG+1}, v{GG+1}, v{GG+1}")
        r0(f"v_lshlrev_b32 v{GG+1}, 16, v{GG+1}")
        r0.group(f"s_cmp_eq_u32 s{sBR}, 1", "s_cselect_b64 vcc, -1, 0")
        r0(f"v_cndmask_b32 v{GG+2}, v{GG}, v{GG+1}, vcc", strict=True)
        r0(f"v_cndmask_b32 v{GG+3}, v{GG+1}, v{GG}, vcc")
        r0(f"v_mov_b32 v{T+2}, s{sTAG}")
        r0(f"v_mov_b32 v{T+3}, 0")
        rs = self.rec()
        for i in range(5):
            b = A + 16 * i
            if cfg.pks:
                for e in (0, 2):
                    rs(f"v_pk_add_f32 {v2(b+e)}, {v2(b+e)}, {v2(b+4+e)}")
                    rs(f"v_pk_add_f32 {v2(b+8+e)}, {v2(b+8+e)}, {v2(b+12+e)}")
                for e in (0, 2):
                    rs(f"v_pk_add_f32 {v2(b+e)}, {v2(b+e)}, {v2(b+8+e)}")
            else:
                for e in range(4):
                    rs(f"v_add_f32 v{b+e}, v{b+e}, v{b+4+e}")
                    rs(f"v_add_f32 v{b+8+e}, v{b+8+e}, v{b+12+e}")
                for e in range(4):
                    rs(f"v_add_f32 v{b+e}, v{b+e}, v{b+8+e}")
            so, off = (sPUB, 1024 * i) if i < 4 else (sHRE, 0)
            rs(f"buffer_store_dwordx4 {v4(b)}, v{self.VH}, {srd(SWS)}, s{so} offen offset:{off} sc1", tag="xs")
        rk = self.rec()
        for i in range(5):
            sk, t = A + 16 * i + 4, A + 16 * i + 8
            for b in range(2):
                s0 = SPK + 4 * i + 2 * b
                rk(f"v_lshlrev_b32 v{t}, 16, v{s0}")
                rk(f"v_and_b32 v{t+1}, 0xffff0000, v{s0}")
                rk(f"v_lshlrev_b32 v{t+2}, 16, v{s0+1}")
                rk(f"v_and_b32 v{t+3}, 0xffff0000, v{s0+1}")
                for e in range(4):
                    rk(f"v_mul_f32 v{sk+e}, v{GG}, v{t+e}" if b == 0 else f"v_fmac_f32 v{sk+e}, v{GG+1}, v{t+e}")
        wa = self.part_writes(A)
        wb = self.part_writes(B)
        b1 = cfg.b1

        def mfmas(s, nt):
            kk = s % 10
            base = A if s < 10 else B
            f, F = self.h_buf(s)
            cr = 8 * (5 * (kk >> 1) + nt) + 4 * (kk & 1)
            return [f"v_mfma_f32_16x16x32_bf16 {v4(base+16*nt+4*mt)}, {v4(cr, 'a')}, {v4(F+4*mt, f)}, "
                    f"{'0' if kk == 0 else v4(base+16*nt+4*mt)}" for mt in range(4)]

        def xflag():
            a.wait(vm="xs")
            a(f"s_mov_b64 exec, {0xff if cfg.full else 1}")
            a(f"buffer_store_dwordx4 {v4(self.FG)}, v{self.VH}, {srd(SWS)}, s{sXS} offen sc1", tag="xf")
            a("s_mov_b64 exec, -1")

        for s in (0, 1, 2, 3, 4, 5, 6, 7, 10, 11, 12, 13, 14, 15, 16, 17):
            streams = []
            if s == b1:
                a.wait(vm=f"h{s}", lgkm=0)
                a("s_barrier")
            elif s == b1 + 1:
                a.wait(vm=f"h{s}", lgkm=0)
            else:
                a.wait(vm=f"h{s}")
            if s == b1 + 3:
                a("s_barrier")
            if s == 10:
                self.stamp("passA")
            elif s > 0:
                self.stamp(f"s{s}")
            if s == cfg.tb_at:
                rt = self.rec()
                rt(f"s_and_b32 s{sT0}, s{sCG}, 7")
                rt(f"s_mul_i32 s{sT0}, s{sT0}, 5120")
                rt(f"s_add_u32 s{sT0}, s{sT0}, s{sHB}")
                rt(f"v_lshlrev_b32 v{self.PO}, 3, v{self.VH}")
                rt.append(Op(lambda: (a("s_mov_b32 exec_hi, 0xff"),
                                      a(f"buffer_load_dword a247, v{self.PO}, {srd(SWS)}, s{sT0} offen {cfg.hpol}", tag="pf"),
                                      a("s_mov_b64 exec, -1"))))
                streams.append((rt, 9, 2))
            if s == cfg.p2_at and cfg.split:
                p_load("g3", self.PO2)
            if s == 6 and cfg.split:
                a.wait(vm="g3")
                p_check()
                a("s_cbranch_vccz L_got4")
                a("L_poll4:")
                p_load("g3b", self.PO2, False)
                a(f"s_sub_u32 s{sSPIN}, s{sSPIN}, 1")
                a("s_waitcnt vmcnt(0)", slow=True)
                p_check()
                a(f"s_cmp_eq_u32 s{sSPIN}, 0")
                a("s_cbranch_scc1 L_got4")
                a("s_cbranch_vccnz L_poll4")
                a("L_got4:")
                a(f"s_mov_b32 s{sSPIN}, {cfg.spin}")
            if s == cfg.xf_at:
                xflag()
            if s % 10 != 7:
                if s + 4 < 20:
                    streams.append((self.h_loads(s + 4), cfg.hd0, cfg.hds))
                if s == 6:
                    streams.append((rb, 10, 1))
                if 10 <= s < b1 or (s == 10 and wa):
                    streams.append((wa, 0, 3))
                    wa = []
                if s == b1:
                    assert not wa
                    streams.append((self.part_reads(A, "ra"), 0, 1))
                if s in (b1 + 1, b1 + 2):
                    half = len(rs) * 3 // 5 if s == b1 + 1 else len(rs)
                    now, rs = rs[:half], rs[half:]
                    streams.append((now, 0, 19.0 / len(now)))
                if b1 + 3 <= s and cfg.rk_in:
                    now, rk = rk[:cfg.rk_in], rk[cfg.rk_in:]
                    if now:
                        streams.append((now, 8, 12.0 / len(now)))
                self.weave(sum((mfmas(s, nt) for nt in range(5)), []), streams)
                continue
            order = [(0, 0), (1, 0), (2, 0), (0, 1), (1, 1), (2, 1), (0, 2), (1, 2), (2, 2),
                     (3, 0), (3, 1), (3, 2), (4, 0), (4, 1), (4, 2)]
            mf = sum((mfmas(s + d, nt) for nt, d in order), [])
            pins = {11: lambda s=s: a.wait(vm=f"h{s+1}"), 23: lambda s=s: a.wait(vm=f"h{s+2}")}
            w = wa if s == 7 else wb
            nin = cfg.nwin
            streams.append((w[:12], 31, cfg.wstep))
            streams.append((w[12:nin], max(51, 31 + 12 * cfg.wstep), 2))
            if s == 7:
                wa = w[nin:]
                streams.append((self.h_loads(11), cfg.hd0, cfg.hds))
                h12, h13 = self.h_loads(12), self.h_loads(13)
                for g in range(4):
                    pins[51 + g] = h12[g]
                    pins[55 + g] = (lambda g=g: (h12[4](), h13[0]())) if g == 0 else h13[g]
                last = h13[4:]
                streams.append((r0, 19, 1))
                pins[59] = lambda: (run(last), run(wa if b1 == 10 else []))
            else:
                wb = w[nin:]
                r3 = self.rec()
                r3(f"buffer_load_dword v{PV}, v{T+3}, {srd(SWS)}, s{sXR} offen offset:4 sc1", tag="xp")
                streams.append((r3, cfg.xp_gap, 1))
                if cfg.rk_in:
                    now, rk = rk[:cfg.rk_in], rk[cfg.rk_in:]
                    if now:
                        streams.append((now, 18, 12.0 / len(now)))
            if s == 7 and cfg.prof:
                for g in (9, 11, 23, 30, 39, 41, 50, 58):
                    old = pins.get(g, lambda: None)
                    pins[g] = lambda g=g, old=old: (old(), self.stamp(f"s{700+g}"))
            self.weave(mf, streams, pins)
            if s == 7 and b1 == 10:
                wa = []
        assert not rs
        self.stamp("gemm2")

        def recv():
            for i in range(5):
                so, off = (sGAT, 1024 * i) if i < 4 else (sHIM, 0)
                a(f"buffer_load_dwordx4 {v4(A+16*i)}, v{self.VH}, {srd(SWS)}, s{so} offen offset:{off} sc1", tag=f"xr{i}")
        per = -(-len(rk) // max(len(wb), 1))
        for w in wb:
            w()
            now, rk = rk[:per], rk[per:]
            run(now)
        run(rk)
        a.wait(vm="xp")
        a(f"v_cmp_ne_u32 vcc, s{sTAG}, v{PV}")
        a("s_cbranch_vccz L_got3")
        a("L_poll3:")
        a(f"buffer_load_dword v{PV}, v{T+3}, {srd(SWS)}, s{sXR} offen offset:4 sc1", tag="xpb")
        a(f"s_sub_u32 s{sSPIN}, s{sSPIN}, 1")
        a.wait(vm=0)
        a(f"v_cmp_ne_u32 vcc, s{sTAG}, v{PV}")
        a(f"s_cmp_eq_u32 s{sSPIN}, 0")
        a("s_cbranch_scc1 L_got3")
        a("s_cbranch_vccnz L_poll3")
        a("L_got3:")
        recv()
        self.stamp("got3")
        a.wait(lgkm=0)
        a("s_barrier")
        run(self.part_reads(B, "rb"))
        for i in range(5):
            b, rv, sk = B + 16 * i, A + 16 * i, A + 16 * i + 4
            a.wait(lgkm=f"rb{i}")
            for hf in range(2):
                a(f"v_pk_add_f32 {v2(b+2*hf)}, {v2(b+2*hf)}, {v2(b+4+2*hf)}")
                a(f"v_pk_add_f32 {v2(b+8+2*hf)}, {v2(b+8+2*hf)}, {v2(b+12+2*hf)}")
            for hf in range(2):
                a(f"v_pk_add_f32 {v2(b+2*hf)}, {v2(b+2*hf)}, {v2(b+8+2*hf)}")
            for hf in range(2):
                a(f"v_pk_fma_f32 {v2(sk+2*hf)}, {v2(b+2*hf)}, {v2(GG+2)}, {v2(sk+2*hf)} op_sel_hi:[1,0,1]")
        for i in range(5):
            rv, sk = A + 16 * i, A + 16 * i + 4
            a.wait(vm=f"xr{i}")
            for hf in range(2):
                a(f"v_pk_fma_f32 {v2(sk+2*hf)}, {v2(rv+2*hf)}, {v2(GG+2)}, {v2(sk+2*hf)} op_sel:[0,1,0] op_sel_hi:[1,1,1]")
            a(f"buffer_store_dwordx4 {v4(sk)}, v{self.OO}, {srd(SOUT)}, 0 offen offset:{64*i} {cfg.opol}", tag="out")
        self.stamp("outst")
        a(f"s_xor_b32 s{sT0}, s{sTC}, 15")
        a(f"s_or_b32 s{sT0}, s{sT0}, s{sCG}")
        a(f"s_or_b32 s{sT0}, s{sT0}, s{sW}")
        a("s_cbranch_scc1 L_noep")
        a("s_mov_b64 exec, 1")
        a(f"buffer_store_dword v{T+2}, v{T+3}, {srd(SWS)}, 0 offen offset:{WS_EPOCH}", counted=False)
        a("s_mov_b64 exec, -1")
        a("L_noep:")

    def finish(self):
        a = self.a
        if self.cfg.prof:
            a.wait(vm=0)
            self.stamp("end")
            self.stamp("rt1")
            a("s_waitcnt lgkmcnt(0)")
            a(f"s_lshl_b32 s{sT0}, s2, 2")
            a(f"s_add_u32 s{sT0}, s{sT0}, s{sW}")
            a(f"s_lshl_b32 s{sT0}, s{sT0}, 7")
            a(f"s_add_u32 s{sT0}, s{sT0}, {WS_PROF}")
            a("v_mov_b32 v6, 0")
            a("s_mov_b64 exec, 1")
            for k in range(self.nstamp):
                a(f"v_mov_b32 v7, s{STAMP_REGS[k]}")
                a(f"buffer_store_dword v7, v6, {srd(SWS)}, s{sT0} offen offset:{4*k}")
            a(f"s_getreg_b32 s{sT1}, hwreg(HW_REG_XCC_ID)")
            a(f"v_mov_b32 v7, s{sT1}")
            a(f"buffer_store_dword v7, v6, {srd(SWS)}, s{sT0} offen offset:124")
            a(f"v_mov_b32 v7, s{sLATE}")
            a(f"buffer_store_dword v7, v6, {srd(SWS)}, s{sT0} offen offset:120")
        a("L_end:")
        a("s_endpgm")

    def build(self):
        self.prologue()
        self.gemm1()
        self.scan()
        self.gemm2()
        self.finish()
        errs = self.a.check_waits()
        for e in errs:
            print("WAIT ERROR:", e, file=sys.stderr)
        assert not errs
        for t in self.tail:
            self.a(t)
        self.a("L_last:")
        self.a("s_endpgm")
        n = self.a.fix_hazards(verbose=self.cfg.verbose)
        if self.cfg.align:
            print("aligned:", self.a.align8(self.cfg.align), file=sys.stderr)
        print("wait states inserted:", n, " instructions:", len(self.a.ins), file=sys.stderr)
        ref = open(os.path.join(os.path.dirname(os.path.abspath(__file__)), "..", "cdna_kernels", NAME + ".s.ref")).read()
        head = []
        for line in ref.split("\n"):
            if line.startswith("; @launch"):
                break
            head.append(line)
        txt = "\n".join(head) + f"\n; @launch grid=(256,1,1) block=(256,1,1) lds={LDS_BYTES}\n"
        txt += f""".amdgcn_target "amdgcn-amd-amdhsa--gfx950"
.text
.globl {NAME}_kernel
.p2align 8
.type {NAME}_kernel,@function
{NAME}_kernel:
"""
        txt += self.a.text().replace(" ;POL", "")
        txt += f""".section .rodata,"a"
.p2align 6
.amdhsa_kernel {NAME}_kernel
  .amdhsa_next_free_vgpr 512
  .amdhsa_next_free_sgpr 102
  .amdhsa_accum_offset 256
  .amdhsa_group_segment_fixed_size 0
  .amdhsa_kernarg_size 176
  .amdhsa_user_sgpr_count 2
  .amdhsa_user_sgpr_kernarg_segment_ptr 1
  .amdhsa_system_sgpr_workgroup_id_x 1
  .amdhsa_float_denorm_mode_32 3
.end_amdhsa_kernel
"""
        return txt


def main():
    p = argparse.ArgumentParser()
    p.add_argument("-o", default=None)
    for name, default in dict(prof=0, pf=2, pf_at=99, pace0=5, pace0_h=8, pace=5, pace_c=0, pace_h=16, cap=2, k1=6, p1=14, k2a=1, k2=14, p2=14,
                              k3=10, p3=10, k4=0, p4=22, ew_lag=5, xf_at=16, split=0, tb_at=-1, fast=0, st_j=2, c_after=1, align=100, remap=0, pfc0=0, htouch=0, ht2=-1, hold_c=0, order=1, touch=9, full=1, p5=12, dr_early=0, rk_in=16, pks=0, b1=10, nwin=13, xp_gap=40, hd0=1, hds=3, cpf=1, abl=0, nap=0, rot=1, p2_at=4, spin=20000, verbose=0).items():
        p.add_argument("--" + name, type=int, default=default)
    p.add_argument("--maxstep", type=float, default=20)
    p.add_argument("--wstep", type=float, default=2.4)
    p.add_argument("--dma_phase", type=float, default=1)
    p.add_argument("--hpol", default="sc1")
    p.add_argument("--opol", default="")
    p.add_argument("--only", default="")
    p.add_argument("--nostamp", default="karg,dma0,dma1,coef,w3done,gh2,gh4,gh8,gh12,gh16,pre,bar,lst,ack,got3")
    cfg = p.parse_args()
    g = Gen(cfg)
    txt = g.build()
    out = cfg.o or os.path.join(os.path.dirname(os.path.abspath(__file__)), "..", "cdna_kernels", NAME + ".s")
    open(out, "w").write(txt)
    if cfg.prof:
        open(out + ".stamps", "w").write("\n".join(g.stamp_names))


if __name__ == "__main__":
    main()
```

```python
import sys, os, argparse, math
sys.path.insert(0, os.path.dirname(os.path.abspath(__file__)))
from asmlib import Asm, Ins

NAME = "gated_mix__ssm_conv_s5__ssm_conv_s5__prompt"

WS_EPOCH = 0
WS_FLAG = 4096
WS_XF = 135168
WS_CARRY = 266240
WS_XCC = 593920
WS_H = 655360
WS_XCH = WS_H + 10485760
WS_PROF = WS_XCH + 5242880
WS_USED = WS_PROF + 1024 * 128

SLOT = 36864
PIECE = 9216
TOP = 4 * SLOT
TAB = TOP
PART1 = TOP + 10240
PART2 = TAB + 6400
LGW = PART1 + 4480
LDK = LGW + 1280
LDS_BYTES = 163840

sSPIN, sTC, sCG, sLATE, sBR, sW, sBW, sTAG, sK = 3, 4, 5, 6, 7, 8, 9, 10, 11
sT0, sT1, sT2, sT3 = 12, 13, 14, 15
SX, SB, SC, SWS, SOUT = 16, 20, 24, 32, 36
sPUB, sGAT, sHRE, sHIM = 28, 29, 30, 31
KA = 40
pX, pLre, pLim, pBre, pBim, pCre, pCim, pDT, pDA = 40, 42, 44, 46, 48, 50, 52, 54, 56
pDB, pGW, pOUT, pWS = 74, 76, 78, 80
sM = 58
sFLG, sPOL, sHA, sHB, sXS, sXR = 82, 83, 84, 85, 86, 87
sD0, sD1 = 72, 73
sKQ, sROT, sEND = 60, 65, 66
STAMP_REGS = list(range(88, 102, 2)) + [42, 44, 46, 48, 50, 52, 54, 68, 70]


def srd(b):
    return "s[%d:%d]" % (b, b + 3)


def sp(b):
    return "s[%d:%d]" % (b, b + 1)


def v2(b):
    return "v[%d:%d]" % (b, b + 1)


def v4(b, f="v"):
    return "%s[%d:%d]" % (f, b, b + 3)


class Op:
    __slots__ = ("f", "strict", "dma", "tag")

    def __init__(self, f, strict=False, dma=False, tag=None):
        self.f, self.strict, self.dma, self.tag = f, strict, dma, tag

    def __call__(self):
        self.f()


class Rec(list):
    def __init__(self, a):
        super().__init__()
        self.a = a

    def __call__(self, text, tag=None, counted=True, strict=False):
        self.append(Op(lambda: self.a(text, tag, counted), strict, text.startswith(("buffer_", "global_")), tag))

    def wait(self, vm=None, lgkm=None):
        self.append(Op(lambda: self.a.wait(vm, lgkm)))

    def group(self, *texts):
        self.append(Op(lambda: [self.a(t) for t in texts]))


def cmul(a, d, x, y):
    a(f"v_pk_mul_f32 {v2(d)}, {v2(x)}, {v2(y)} op_sel_hi:[1,0]")
    a(f"v_pk_fma_f32 {v2(d)}, {v2(x)}, {v2(y)}, {v2(d)} op_sel:[1,1,0] op_sel_hi:[0,1,1] neg_lo:[1,0,0]")


def cfma(a, d, x, y, c):
    a(f"v_pk_fma_f32 {v2(d)}, {v2(x)}, {v2(y)}, {v2(c)} op_sel_hi:[1,0,1]")
    a(f"v_pk_fma_f32 {v2(d)}, {v2(x)}, {v2(y)}, {v2(d)} op_sel:[1,1,0] op_sel_hi:[0,1,1] neg_lo:[1,0,0]")


def run(ops):
    for o in ops:
        o()


class Gen:
    def __init__(self, cfg):
        self.cfg = cfg
        self.a = Asm()
        self.nstamp = 0
        self.stamp_names = []
        self.tail = []

    def rec(self):
        return Rec(self.a)

    def stamp(self, name):
        if not self.cfg.prof:
            return
        if self.cfg.only:
            if name not in self.cfg.only.split(",") + ["rt0", "start", "end", "rt1"]:
                return
        elif name in self.cfg.nostamp.split(",") or (name[0] == "s" and name[1:].isdigit()):
            return
        op = "s_memrealtime" if name.startswith("rt") else "s_memtime"
        self.a("%s %s" % (op, sp(STAMP_REGS[self.nstamp])))
        self.stamp_names.append(name)
        self.nstamp += 1

    def weave(self, mf, streams, pins=None):
        n = len(mf)
        load = [0] * n
        slots = [[] for _ in range(n)]
        for ops, start, step in streams:
            prev = -1
            for k, op in enumerate(ops):
                g = max(int(start + k * step), prev + (1 if op.strict else 0), 0)
                while g < n - 1 and load[g] >= self.cfg.cap:
                    g += 1
                g = min(g, n - 1)
                slots[g].append(op)
                load[g] += 1
                prev = g
        for g in range(n):
            self.a(mf[g])
            run(slots[g])
            if pins and g in pins:
                pins[g]()

    ACC = 20
    GX, GW = 70, 80
    L1, L2, WQ, V, MC = 196, 206, 216, 232, 190
    T4 = 246
    VP, Q = 250, 251
    FG = 252
    TP, HS = 244, 243
    VC0, VC1 = 18, 19
    VCR = 10
    U = 100

    def acc(self, m, n, part):
        return self.ACC + (n * 2 + part) * 8 + 4 * m

    def prologue(self):
        a, cfg = self.a, self.cfg
        a(f"s_load_dwordx16 s[{KA}:{KA+15}], s[0:1], 0")
        a(f"s_load_dwordx16 s[{KA+16}:{KA+31}], s[0:1], 64")
        a(f"s_load_dwordx8 s[{KA+32}:{KA+39}], s[0:1], 128")
        a(f"s_load_dwordx2 {sp(pWS)}, s[0:1], 168")
        a("s_cmp_ge_u32 s2, 0x100")
        a("s_cbranch_scc1 L_end")
        if cfg.cpf == 0:
            a(f"s_getpc_b64 {sp(sT0)}")
            a("L_pc0:")
            a("v_lshlrev_b32 v18, 7, v0")
            a("v_min_u32 v19, L_last-L_pc0, v18")
            a(f"global_load_dword v243, v19, {sp(sT0)}", tag="pf")
        self.stamp("rt0")
        self.stamp("start")
        a("v_lshrrev_b32 v18, 6, v0")
        a(f"s_and_b32 s{sT2}, s2, 7")
        a(f"s_lshr_b32 s{sT3}, s2, 3")
        a(f"v_readfirstlane_b32 s{sW}, v18")
        if cfg.cpf:
            run(self.code_prefetch(18, 1))
        L, R8, SL, F0, T0, T1, C = 196, 197, 198, 199, 246, 247, 248
        Q = self.Q
        a(f"s_lshr_b32 s{sTC}, s{sT2}, 1")
        if cfg.remap:
            a(f"s_lshr_b32 s{sT0}, s{sTC}, 1")
            a(f"s_xor_b32 s{sTC}, s{sTC}, s{sT0}")
        a(f"s_lshl_b32 s{sTC}, s{sTC}, 2")
        a(f"s_lshr_b32 s{sT0}, s{sT3}, 3")
        a(f"s_add_u32 s{sTC}, s{sTC}, s{sT0}")
        a(f"s_and_b32 s{sBR}, s{sT2}, 1")
        a(f"s_and_b32 s{sT1}, s{sT3}, 7")
        a(f"s_lshl_b32 s{sCG}, s{sBR}, 3")
        a(f"s_add_u32 s{sCG}, s{sCG}, s{sT1}")
        a(f"s_mov_b32 s{sK}, 0")
        a(f"v_and_b32 v{L}, 63, v0")
        a(f"v_lshrrev_b32 v{R8}, 3, v{L}")
        a(f"v_and_b32 v{SL}, 7, v{L}")
        a(f"v_lshrrev_b32 v{Q}, 4, v{L}")
        a(f"v_xor_b32 v{F0}, v{Q}, v{SL}")
        a(f"v_lshlrev_b32 v{F0}, 4, v{F0}")
        a(f"v_lshrrev_b32 v{T0}, 5, v{L}")
        a(f"v_and_b32 v{T1}, 3, v{R8}")
        a(f"v_lshl_add_u32 v{T0}, v{T0}, 3, v{T1}")
        a(f"v_mul_u32_u24 v{T0}, 1280, v{T0}")
        a(f"v_xor_b32 v{T1}, 64, v{F0}")
        a(f"v_add_u32 v1, v{T0}, v{F0}")
        a(f"v_add_u32 v2, v{T0}, v{T1}")
        a(f"v_add_u32 v2, {16*1280-1024}, v2")
        a(f"v_add_u32 v3, {4*1280-2048}, v1")
        a(f"v_add_u32 v4, {4*1280-2048}, v2")
        a(f"v_mul_u32_u24 v{T0}, 1280, v{R8}")
        a(f"v_add_u32 v{self.VC0}, v{T0}, v{F0}")
        a(f"v_add_u32 v{self.VC1}, v{T0}, v{T1}")
        a(f"v_add_u32 v{self.VC1}, {8*1280}, v{self.VC1}")
        a(f"s_mul_i32 s{sBW}, s{sW}, {PIECE}")
        a(f"s_bitcmp1_b32 s{sW}, 1")
        a(f"s_cselect_b64 vcc, -1, 0")
        a(f"s_mul_i32 s{sT1}, s{sT1}, 80")
        a(f"s_mul_i32 s{sT0}, s{sW}, 20")
        a(f"v_cndmask_b32 v5, v{self.VC0}, v{self.VC1}, vcc")
        for n in range(1, 5):
            a(f"v_add_u32 v{5+n}, {n*16*1280 - 1024*(n & 3)}, v5")
        a(f"v_add_u32 v{self.VC1}, -1024, v{self.VC1}")
        a(f"v_min_u32 v{T0}, 19, v{L}")
        a(f"v_add_u32 v204, s{sT0}, v{T0}")
        a(f"v_add_lshl_u32 v{T0}, v204, s{sT1}, 1")
        a(f"s_mul_i32 s{sT1}, s{sT1}, 1280")
        a(f"s_lshl_b32 s{sT0}, s{sTC}, 2")
        a(f"s_add_u32 s{sT0}, s{sT0}, s{sW}")
        a(f"s_mul_i32 s{sT0}, s{sT0}, {32*1280}")
        a(f"s_lshl_b32 s{sPUB}, s{sT3}, 2")
        a(f"s_add_u32 s{sPUB}, s{sPUB}, s{sW}")
        a(f"s_lshl_b32 s{sGAT}, s{sT2}, 7")
        a(f"s_add_u32 s{sGAT}, s{sGAT}, s{sPUB}")
        a(f"s_mul_i32 s{sGAT}, s{sGAT}, 2560")
        a(f"s_bfe_u32 s{sHRE}, s{sT2}, 0x10001")
        a(f"s_lshl_b32 s{sHRE}, s{sHRE}, 7")
        a(f"s_add_u32 s{sHRE}, s{sHRE}, s{sPUB}")
        a(f"s_mul_i32 s{sHRE}, s{sHRE}, 3200")
        a(f"v_lshlrev_b32 v241, 7, v{L}")
        a(f"s_lshl_b32 s{sHIM}, s2, 2")
        a(f"s_add_u32 s{sHIM}, s{sHIM}, s{sW}")
        a(f"s_mul_i32 s{sHIM}, s{sHIM}, 640")
        a(f"s_add_u32 s{sHIM}, s{sHIM}, {WS_FLAG}")
        a(f"v_add_u32 v240, s{sHIM}, v241")
        a(f"v_add_u32 v242, s{sHRE}, v241")
        a(f"v_add_u32 v241, s{sGAT}, v241")
        a(f"s_mov_b32 s{SX+3}, 0x20000")
        a(f"s_mov_b32 s{SB+3}, 0x20000")
        a(f"s_sub_u32 s{SX+2}, 2621440, s{sT0}")
        a(f"s_sub_u32 s{SB+2}, 819200, s{sT1}")
        a("s_waitcnt lgkmcnt(0)")
        self.stamp("karg")
        a(f"s_add_u32 s{SX}, s{pX}, s{sT0}")
        a(f"s_addc_u32 s{SX+1}, s{pX+1}, 0")
        a(f"s_cmp_eq_u32 s{sBR}, 1")
        for p in (pBre, pBim, pLre, pLim, pDT, pCre, pCim):
            a(f"s_cselect_b64 {sp(p)}, {sp(p+18)}, {sp(p)}")
        a(f"s_bitcmp1_b32 s{sW}, 0")
        a(f"s_cselect_b64 {sp(SB)}, {sp(pBim)}, {sp(pBre)}")
        a(f"s_cselect_b64 {sp(SC)}, {sp(pCim)}, {sp(pCre)}")
        a(f"s_add_u32 s{SB}, s{SB}, s{sT1}")
        a(f"s_addc_u32 s{SB+1}, s{SB+1}, 0")
        a(f"global_load_ushort v206, v{T0}, {sp(pLre)}", tag="par")
        a(f"global_load_ushort v207, v{T0}, {sp(pLim)}", tag="par")
        a(f"global_load_ushort v208, v{T0}, {sp(pDT)}", tag="par")

        def prefetch():
            a(f"s_bitcmp1_b32 s{sT2}, 2")
            a(f"s_cselect_b64 {sp(SWS)}, {sp(pBim)}, {sp(pBre)}")
            a(f"s_cselect_b64 {sp(sM)}, {sp(pCim)}, {sp(pCre)}")
            a("s_mov_b64 exec, 0xfffff")
            a(f"global_load_dword v244, v241, {sp(pX)}", tag="pf")
            a("s_mov_b64 exec, 0x1ffffff")
            a(f"global_load_dword v245, v242, {sp(SWS)}", tag="pf")
            if cfg.touch == 1:
                a("s_mov_b64 exec, 0x1f")
                a(f"global_load_dword v243, v240, {sp(pWS)}", tag="pf")
            a("s_mov_b64 exec, -1")
        if cfg.pf == 1:
            prefetch()
        if cfg.pfc0:
            a(f"s_bitcmp1_b32 s{sT2}, 2")
            a(f"s_cselect_b64 {sp(sM)}, {sp(pCim)}, {sp(pCre)}")
            a("s_mov_b64 exec, 0x1ffffff")
            a(f"global_load_dword a255, v242, {sp(sM)}", tag="pf")
            a("s_mov_b64 exec, -1")
        run(self.dma_stage(0))
        if cfg.pf == 2:
            prefetch()
        a(f"s_load_dword s{sTAG}, {sp(pWS)}, {WS_EPOCH}")
        self.stamp("dma0")
        a(f"v_lshlrev_b32 v204, 3, v204")
        a(f"v_add_u32 v204, {TAB}, v204")
        a(f"v_and_b32 v{C}, 15, v{L}")
        a(f"v_lshrrev_b32 v{T0}, 1, v{C}")
        a(f"v_xor_b32 v{T0}, v{T0}, v{Q}")
        a(f"v_lshlrev_b32 v{T0}, 4, v{T0}")
        a(f"v_lshl_add_u32 v{T1}, v{C}, 7, v{T0}")
        a(f"v_add_u32 v10, s{sBW}, v{T1}")
        a(f"v_xor_b32 v11, 64, v10")
        a(f"v_add_u32 v12, {2*SLOT}, v10")
        a(f"v_add_u32 v13, {2*SLOT}, v11")
        a(f"v_and_b32 v{T1}, 7, v{C}")
        a(f"v_lshl_add_u32 v{T0}, v{T1}, 7, v{T0}")
        a(f"v_lshrrev_b32 v{T1}, 3, v{C}")
        a(f"v_mul_u32_u24 v{T1}, {2*PIECE}, v{T1}")
        a(f"v_add_u32 v{T0}, 4096, v{T0}")
        a(f"v_add_u32 v14, v{T0}, v{T1}")
        a(f"v_xor_b32 v15, 64, v14")
        a(f"v_add_u32 v16, {2*SLOT}, v14")
        a(f"v_add_u32 v17, {2*SLOT}, v15")
        a(f"v_lshlrev_b32 v{self.VP}, 3, v{C}")
        a(f"v_add_u32 v{self.VP}, {TAB}, v{self.VP}")
        a(f"s_lshr_b32 s{sT0}, s{sW}, 1")
        a(f"s_mul_i32 s{sT0}, s{sT0}, 640")
        a(f"s_add_u32 s{sT0}, s{sT0}, s{sT1}")
        a(f"s_add_u32 s{SC}, s{SC}, s{sT0}")
        a(f"s_addc_u32 s{SC+1}, s{SC+1}, 0")
        a(f"s_sub_u32 s{SC+2}, 819200, s{sT0}")
        a(f"s_mov_b32 s{SC+3}, 0x20000")
        a(f"s_mov_b32 s{SWS}, s{pWS}")
        a(f"s_mov_b32 s{SWS+1}, s{pWS+1}")
        a(f"s_mov_b32 s{SWS+2}, {WS_USED}")
        a(f"s_mov_b32 s{SWS+3}, 0x20000")
        a(f"s_mov_b32 s{SOUT}, s{pOUT}")
        a(f"s_mov_b32 s{SOUT+1}, s{pOUT+1}")
        a(f"s_mov_b32 s{SOUT+2}, 5242880")
        a(f"s_mov_b32 s{SOUT+3}, 0x20000")
        if cfg.rot:
            a(f"s_and_b32 s{sT0}, s{sCG}, 7")
            if cfg.rot == 1:
                a(f"s_and_b32 s{sT2}, s{sTC}, 3")
                a(f"s_add_u32 s{sT0}, s{sT0}, s{sT2}")
            for _ in range(2 if cfg.rot == 1 else 1):
                a(f"s_sub_u32 s{sT2}, s{sT0}, 5")
                a(f"s_cselect_b32 s{sT0}, s{sT0}, s{sT2}")
        else:
            a(f"s_mov_b32 s{sT0}, 0")
        a(f"s_lshl_b32 s{sROT}, s{sT0}, 13")
        a(f"s_lshl_b32 s{sKQ}, s{sT0}, 7")
        for k in range(1, 5):
            a(f"s_add_u32 s{sKQ+k}, s{sKQ+k-1}, 128")
            a(f"s_cmp_eq_u32 s{sKQ+k}, 640")
            a(f"s_cselect_b32 s{sKQ+k}, 0, s{sKQ+k}")
        if cfg.fast:
            cfg.split = 0
        a(f"s_lshr_b32 s{sLATE}, s{sW}, 1")
        a(f"s_xor_b32 s{sLATE}, s{sLATE}, s{sBR}")
        a(f"s_mul_i32 s{sT0}, s{sW}, 320")
        a(f"v_lshl_add_u32 v236, v{L}, 4, s{sT0}")
        a(f"s_add_u32 s{sEND}, s{sT0}, {LGW}")
        a(f"s_and_b32 s{sT0}, s{sCG}, 7")
        a(f"s_mul_i32 s{sT0}, s{sT0}, 160")
        a(f"v_lshl_add_u32 v237, v{L}, 4, s{sT0}")
        a(f"s_bitcmp1_b32 s{sW}, 0")
        a(f"s_cselect_b64 {sp(68)}, {sp(pDB)}, {sp(pDA)}")
        a(f"s_cselect_b32 s67, 160, 0")
        a(f"s_add_u32 s67, s67, {LDK}")
        self.ws_offsets()
        if cfg.order == 0:
            run(self.dma_stage(1))
            self.params()
        else:
            self.params()
            run(self.dma_stage(1))
        a("s_waitcnt lgkmcnt(0)")
        a(f"s_mul_i32 s{sTAG}, s{sTAG}, 0x9E3779B1")
        a(f"s_add_u32 s{sTAG}, s{sTAG}, 0x7F4A7C15")
        if cfg.fast:
            a(f"s_getreg_b32 s{sLATE}, hwreg(HW_REG_XCC_ID, 0, 4)")
            a(f"s_lshl_b32 s{sT0}, s{sTC}, 4")
            a(f"s_add_u32 s{sT0}, s{sT0}, s{sCG}")
            a(f"s_lshl_b32 s{sT0}, s{sT0}, 7")
            a(f"s_add_u32 s{sT0}, s{sT0}, {WS_XCC}")
            a(f"v_mov_b32 v246, s{sLATE}")
            a(f"v_mov_b32 v247, s{sTAG}")
            a(f"v_lshlrev_b32 v248, 3, v196")
            a("s_mov_b64 exec, 0xffff")
            a(f"buffer_store_dwordx2 {v2(246)}, v248, {srd(SWS)}, s{sT0} offen sc1", tag="xcc")
        a(f"s_mov_b32 m0, s{sEND}")
        a("s_mov_b64 exec, 0xfffff")
        a(f"global_load_lds_dwordx4 v236, {sp(pGW)}", tag="small")
        a(f"s_mov_b32 m0, s67")
        a("s_mov_b64 exec, 0x3ff")
        a(f"global_load_lds_dwordx4 v237, {sp(68)}", tag="small")
        a("s_mov_b64 exec, -1")
        self.stamp("dma1")

    def code_prefetch(self, t, k):
        a = self.a
        r = self.rec()
        r(f"s_lshr_b32 s{sT0}, s2, 3")
        r(f"s_lshl_b32 s{sT0}, s{sT0}, 2")
        r(f"s_add_u32 s{sT0}, s{sT0}, s{sW}")
        r(f"s_lshl_b32 s{sT0}, s{sT0}, 8")
        r(f"v_and_b32 v{t}, 1, v0")
        r(f"v_lshl_add_u32 v{t}, v{t}, 7, s{sT0}")
        r.append(Op(lambda: (a(f"s_getpc_b64 {sp(sT0)}"), a(f"L_pc{k}:"), a(f"v_min_u32 v{t}, L_last-L_pc{k}, v{t}"),
                             a("s_mov_b64 exec, 3"), a(f"global_load_dword a{255-k}, v{t}, {sp(sT0)}", tag="pf"),
                             a("s_mov_b64 exec, -1")), dma=True))
        return r

    def ws_offsets(self):
        a = self.a
        a(f"s_lshl_b32 s{sT0}, s{sCG}, 4")
        a(f"s_add_u32 s{sPUB}, s{sT0}, s{sTC}")
        a(f"s_mul_i32 s{sPUB}, s{sPUB}, 1280")
        a(f"s_add_u32 s{sPUB}, s{sPUB}, {WS_CARRY}")
        a(f"s_lshl_b32 s{sT2}, s{sW}, 2")
        a(f"s_add_u32 s{sGAT}, s{sT0}, s{sT2}")
        a(f"s_mul_i32 s{sGAT}, s{sGAT}, 1280")
        a(f"s_add_u32 s{sGAT}, s{sGAT}, {WS_CARRY}")
        a(f"s_lshl_b32 s{sT0}, s{sTC}, 1")
        a(f"s_add_u32 s{sT0}, s{sT0}, s{sBR}")
        a(f"s_lshr_b32 s{sT2}, s{sW}, 1")
        a(f"s_and_b32 s{sT3}, s{sW}, 1")
        a(f"s_lshl_b32 s{sHRE}, s{sT0}, 1")
        a(f"s_add_u32 s{sHRE}, s{sHRE}, s{sT2}")
        a(f"s_mul_i32 s{sHRE}, s{sHRE}, {2*81920}")
        a(f"s_and_b32 s{sHIM}, s{sCG}, 7")
        a(f"s_mul_i32 s{sHIM}, s{sHIM}, 5")
        a(f"s_and_b32 s{sD0}, s{sHIM}, 1")
        a(f"s_lshr_b32 s{sHIM}, s{sHIM}, 1")
        a(f"s_lshl_b32 s{sHIM}, s{sHIM}, 12")
        a(f"s_add_u32 s{sHRE}, s{sHRE}, s{sHIM}")
        a(f"s_lshl_b32 s{sHIM}, s{sD0}, 9")
        a(f"s_add_u32 s{sHRE}, s{sHRE}, s{sHIM}")
        a(f"s_mul_i32 s{sD0}, s{sD0}, 3072")
        a(f"s_add_u32 s{sD0}, s{sD0}, 512")
        a(f"s_sub_u32 s{sD1}, 4096, s{sD0}")
        a(f"s_lshl_b32 s{sHIM}, s{sT3}, 11")
        a(f"s_add_u32 s{sHRE}, s{sHRE}, s{sHIM}")
        a(f"s_add_u32 s{sHRE}, s{sHRE}, {WS_H}")
        a(f"s_add_u32 s{sHIM}, s{sHRE}, 81920")
        a(f"s_lshl_b32 s{sHB}, s{sT0}, 1")
        a(f"s_add_u32 s{sHB}, s{sHB}, s{sBR}")
        a(f"s_xor_b32 s{sHA}, s{sHB}, 1")
        a(f"s_mul_i32 s{sXS}, s{sT3}, 81920")
        a(f"s_mul_i32 s{sXR}, s{sT2}, 40960")
        a(f"s_add_u32 s{sXS}, s{sXS}, s{sXR}")
        a(f"s_add_u32 s{sXS}, s{sXS}, {WS_H}")
        a(f"s_mul_i32 s{sHA}, s{sHA}, {2*81920}")
        a(f"s_mul_i32 s{sHB}, s{sHB}, {2*81920}")
        a(f"s_add_u32 s{sHA}, s{sHA}, s{sXS}")
        a(f"s_add_u32 s{sHB}, s{sHB}, s{sXS}")
        a(f"s_lshl_b32 s{sFLG}, s{sTC}, 4")
        a(f"s_add_u32 s{sFLG}, s{sFLG}, s{sCG}")
        a(f"s_lshl_b32 s{sFLG}, s{sFLG}, 2")
        a(f"s_add_u32 s{sFLG}, s{sFLG}, s{sW}")
        a(f"s_lshl_b32 s{sFLG}, s{sFLG}, 7")
        a(f"s_add_u32 s{sFLG}, s{sFLG}, {WS_FLAG}")
        a(f"s_lshl_b32 s{sPOL}, s{sT0}, 1")
        a(f"s_add_u32 s{sPOL}, s{sPOL}, s{sT2}")
        a(f"s_lshl_b32 s{sPOL}, s{sPOL}, 11")
        a(f"s_add_u32 s{sPOL}, s{sPOL}, {WS_FLAG}")
        a(f"s_lshl_b32 s{sXS}, s{sTC}, 3")
        a(f"s_and_b32 s{sT0}, s{sCG}, 7")
        a(f"s_add_u32 s{sXS}, s{sXS}, s{sT0}")
        a(f"s_lshl_b32 s{sXS}, s{sXS}, 1")
        a(f"s_add_u32 s{sXS}, s{sXS}, s{sBR}")
        a(f"s_lshl_b32 s{sXS}, s{sXS}, 2")
        a(f"s_add_u32 s{sXS}, s{sXS}, s{sW}")
        a(f"s_xor_b32 s{sXR}, s{sXS}, 4")

    def params(self):
        a = self.a
        LR, LI, DT, T0, T1, T2 = 206, 207, 208, 209, 210, 211
        P = lambda k: 100 + 2 * k
        a(f"v_lshlrev_b32 v{T0}, 3, v196")
        a(f"v_add_u32 v{T0}, {PART1}, v{T0}")
        a(f"v_mov_b64 {v2(P(16))}, 0")
        a("s_mov_b32 exec_hi, 0xffff")
        for n in range(5):
            a(f"ds_write_b64 v{T0}, {v2(P(16))} offset:{n*896}", tag="tab")
        a("s_mov_b64 exec, 0xfffff")
        a.wait(vm="par")
        a(f"v_lshlrev_b32 v{DT}, 16, v{DT}")
        a(f"v_lshlrev_b32 v{LR}, 16, v{LR}")
        a(f"v_mul_f32 v{DT}, 0x3fb8aa3b, v{DT}")
        a(f"v_exp_f32 v{DT}, v{DT}")
        a(f"v_lshlrev_b32 v{LI}, 16, v{LI}")
        a(f"v_cvt_pk_bf16_f32 v{DT}, v{DT}, v{DT}")
        a(f"v_lshlrev_b32 v{DT}, 16, v{DT}")
        a(f"v_mul_f32 v{T0}, v{DT}, v{LR}")
        a(f"v_mul_f32 v{T1}, v{DT}, v{LI}")
        a(f"v_mul_f32 v{T0}, 0x3fb8aa3b, v{T0}")
        a(f"v_mul_f32 v{T1}, 0x3e22f983, v{T1}")
        a(f"v_exp_f32 v{T0}, v{T0}")
        a(f"v_rndne_f32 v{T2}, v{T1}")
        a(f"v_sub_f32 v{T1}, v{T1}, v{T2}")
        a(f"v_cos_f32 v{T2}, v{T1}")
        a(f"v_sin_f32 v{T1}, v{T1}")
        a(f"v_mov_b32 v{P(0)}, 1.0")
        a(f"v_mov_b32 v{P(0)+1}, 0")
        a(f"v_mul_f32 v{P(1)}, v{T0}, v{T2}")
        a(f"v_mul_f32 v{P(1)+1}, v{T0}, v{T1}")
        a(f"v_mul_f32 v{T0}, v{LR}, v{LR}")
        a(f"v_fmac_f32 v{T0}, v{LI}, v{LI}")
        a(f"v_rcp_f32 v{T0}, v{T0}")
        a(f"v_add_f32 v{T1}, -1.0, v{P(1)}")
        a(f"v_mul_f32 v{P(3)}, v{T1}, v{LR}")
        a(f"v_mul_f32 v{P(3)+1}, v{P(1)+1}, v{LR}")
        a(f"v_add_f32 v{T0}, v{T0}, v{T0}")
        a(f"v_fmac_f32 v{P(3)}, v{P(1)+1}, v{LI}")
        a(f"v_fma_f32 v{P(3)+1}, -v{T1}, v{LI}, v{P(3)+1}")
        a(f"v_mul_f32 v{P(3)}, v{P(3)}, v{T0}")
        a(f"v_mul_f32 v{P(3)+1}, v{P(3)+1}, v{T0}")
        cmul(a, P(2), P(1), P(1))
        cmul(a, P(17), P(2), P(2))
        cmul(a, P(4), P(17), P(17))
        for base in (4, 7, 10, 13):
            cmul(a, P(base + 1), P(base), P(base))
            cmul(a, P(base + 2), P(base + 1), P(base))
            if base < 13:
                cmul(a, P(base + 3), P(base + 1), P(base + 1))
        for e in range(16):
            a(f"ds_write_b64 v204, {v2(P(e))} offset:{e*640}", tag="tab")
        a("s_mov_b64 exec, -1")

    def dma_stage(self, s):
        r = self.rec()
        base = (s % 4) * SLOT
        for j in range(9):
            if j in (0, 4, 8):
                r(f"s_add_u32 m0, s{sBW}, {base + 1024*j}")
            sr = SX if j < 4 else SB
            r(f"buffer_load_dwordx4 v{1+j}, {srd(sr)}, s{sK} offen offset:{1024*(j & 3)} lds", tag=f"st{s}", strict=j in (0, 4, 8))
        if s < 9:
            r(f"s_add_u32 s{sK}, s{sK}, 128")
        return r

    def c_slot(self, u):
        if u >= self.cfg.n1:
            u -= self.cfg.n1
        return ((2 + u // 4) % 4), (u % 4)

    def c_dma(self, u):
        r = self.rec()
        p, qq = self.c_slot(u)
        kl, nt = divmod(u, 5)
        r(f"s_add_u32 m0, s{sBW}, {p*SLOT + qq*2048}")
        r(f"s_add_u32 s{sK}, s{sKQ+kl}, {nt*20480}")
        r(f"buffer_load_dwordx4 v{self.VC0}, {srd(SC)}, s{sK} offen lds", tag=f"c{u}", strict=True)
        r(f"buffer_load_dwordx4 v{self.VC1}, {srd(SC)}, s{sK} offen offset:1024 lds", tag=f"c{u}")
        return r

    def c_drain(self, u):
        r = self.rec()
        p, qq = self.c_slot(u)
        r.wait(vm=f"c{u}")
        for b in range(2):
            r(f"ds_read_b128 {v4(8*u+4*b, 'a')}, v{self.VCR + 2*(p >> 1) + b} offset:{(p & 1)*SLOT + qq*2048}", tag=f"dr{u}")
        return r

    def c_stream(self, rest):
        items, cur = [], []
        for o in rest:
            cur.append(o)
            if o.dma:
                items.append(Op(lambda c=cur: run(c), tag=o.tag))
                cur = []
        assert not cur
        return items

    def cq_ops(self):
        return self.cq

    def c_take(self, n):
        r, self.cq = self.cq[:n], self.cq[n:]
        return r

    def frag_reads(self, h):
        r = self.rec()
        s, u = h >> 1, h & 1
        slot = s % 4
        F = 100 + 48 * (h & 1)
        va = 10 + 2 * (slot >> 1) + u
        vb = 14 + 2 * (slot >> 1) + u
        so = (slot & 1) * SLOT
        rd = lambda dst, vr, off: r(f"ds_read_b128 {v4(dst)}, v{vr} offset:{off}", tag=f"fr{h}")
        rd(F, va, so)
        rd(F + 8, vb, so)
        rd(F + 4, va, so + 2048)
        for k in range(1, 10):
            rd(F + 8 + 4 * k, vb, so + (k & 1) * PIECE + (k >> 1) * 1024)
        return r

    def gate_loads(self, t):
        a = self.a
        GX, GW = self.GX, self.GW
        a(f"s_lshl_b32 s{sT0}, s{sTC}, 4")
        a(f"s_add_u32 s{sT0}, s{sT0}, s{sCG}")
        a(f"s_lshl_b32 s{sT0}, s{sT0}, 2")
        a(f"s_add_u32 s{sT0}, s{sT0}, s{sW}")
        a(f"s_lshl_b32 s{sT0}, s{sT0}, 1")
        a(f"v_bfe_u32 v{t}, v0, 5, 1")
        a(f"v_add_u32 v{t}, s{sT0}, v{t}")
        a(f"v_mul_u32_u24 v{t}, 1280, v{t}")
        a(f"v_and_b32 v{t+1}, 31, v0")
        a(f"v_lshl_add_u32 v{t+2}, v{t+1}, 4, v{t}")
        a(f"v_lshl_add_u32 v{t+3}, v{t+1}, 3, v{t}")
        a(f"global_load_dwordx4 {v4(GX)}, v{t+2}, {sp(pX)}", tag="gate")
        a(f"global_load_dwordx4 {v4(GX+4)}, v{t+2}, {sp(pX)} offset:512", tag="gate")
        a(f"global_load_dwordx2 {v2(GX+8)}, v{t+3}, {sp(pX)} offset:1024", tag="gate")
        a(f"v_lshlrev_b32 v{t+2}, 4, v{t+1}")
        a(f"v_add_u32 v{t+2}, {LGW}, v{t+2}")
        a(f"v_lshlrev_b32 v{t+3}, 3, v{t+1}")
        a(f"v_add_u32 v{t+3}, {LGW + 1024}, v{t+3}")
        a(f"ds_read_b128 {v4(GW)}, v{t+2}", tag="gw")
        a(f"ds_read_b128 {v4(GW+4)}, v{t+2} offset:512", tag="gw")
        a(f"ds_read_b64 {v2(GW+8)}, v{t+3}", tag="gw")

    XS = 60

    def xs(self, i):
        return (190, 192, 194, 92, 94)[i]

    def skip_loads(self, t):
        a = self.a
        a(f"s_lshl_b32 s{sT0}, s{sTC}, 1")
        a(f"s_add_u32 s{sT0}, s{sT0}, s{sBR}")
        a(f"s_lshl_b32 s{sT0}, s{sT0}, 2")
        a(f"s_add_u32 s{sT0}, s{sT0}, s{sW}")
        a(f"s_lshl_b32 s{sT0}, s{sT0}, 4")
        a(f"s_and_b32 s{sT1}, s{sCG}, 7")
        a(f"s_mul_i32 s{sT1}, s{sT1}, 80")
        a(f"v_bfe_u32 v{t}, v0, 2, 4")
        a(f"v_and_b32 v{t+1}, 3, v0")
        a(f"v_add_u32 v{t}, s{sT0}, v{t}")
        a(f"v_mul_u32_u24 v{t}, 640, v{t}")
        a(f"v_lshl_add_u32 v{t+1}, v{t+1}, 2, s{sT1}")
        a(f"v_add_lshl_u32 v231, v{t}, v{t+1}, 1")
        for i in range(5):
            a(f"global_load_dwordx2 {v2(self.xs(i))}, v231, {sp(pX)} offset:{32*i}", tag="ep")

    def skip_terms(self):
        a = self.a
        DA, DB, t, SPK = 100, 110, 130, self.SPK
        for i in range(5):
            a(f"ds_read_b64 {v2(DA+2*i)}, v{self.DO} offset:{32*i}", tag="dk")
            a(f"ds_read_b64 {v2(DB+2*i)}, v{self.DO} offset:{160+32*i}", tag="dk")
        a.wait(vm="ep", lgkm="dk")
        for i in range(5):
            x0 = self.xs(i)
            a(f"v_lshlrev_b32 v{t}, 16, v{x0}")
            a(f"v_and_b32 v{t+1}, 0xffff0000, v{x0}")
            a(f"v_lshlrev_b32 v{t+2}, 16, v{x0+1}")
            a(f"v_and_b32 v{t+3}, 0xffff0000, v{x0+1}")
            for b, dsk in enumerate((DA + 2 * i, DB + 2 * i)):
                a(f"v_lshlrev_b32 v{t+4}, 16, v{dsk}")
                a(f"v_and_b32 v{t+5}, 0xffff0000, v{dsk}")
                a(f"v_lshlrev_b32 v{t+6}, 16, v{dsk+1}")
                a(f"v_and_b32 v{t+7}, 0xffff0000, v{dsk+1}")
                a(f"v_pk_mul_f32 {v2(t+4)}, {v2(t)}, {v2(t+4)}")
                a(f"v_pk_mul_f32 {v2(t+6)}, {v2(t+2)}, {v2(t+6)}")
                a(f"v_cvt_pk_bf16_f32 v{SPK+4*i+2*b}, v{t+4}, v{t+5}")
                a(f"v_cvt_pk_bf16_f32 v{SPK+4*i+2*b+1}, v{t+6}, v{t+7}")

    def gate(self, T):
        a = self.a
        GX, GW, FG = self.GX, self.GW, self.FG
        a(f"v_mov_b32 v{T}, 0")
        a(f"v_mov_b32 v{T+1}, 0")
        a.wait(vm="gate", lgkm="gw")
        for k in range(10):
            a(f"v_dot2_f32_bf16 v{T+(k & 1)}, v{GX+k}, v{GW+k}, v{T+(k & 1)}")
        a(f"v_mov_b32 v{FG+1}, s{sTAG}")
        a(f"v_mov_b32 v{FG+3}, s{sTAG}")
        a(f"v_add_f32 v{T}, v{T}, v{T+1}")
        for k in (8, 4, 2, 1):
            a(f"v_add_f32_dpp v{T}, v{T}, v{T} row_ror:{k} row_mask:0xf bank_mask:0xf")
        a(f"v_mov_b32 v{T+1}, v{T}")
        a(f"v_permlane16_swap_b32 v{T}, v{T+1}")
        a(f"v_add_f32 v{T}, v{T}, v{T+1}")
        a(f"v_cvt_pk_bf16_f32 v{T}, v{T}, v{T}")
        a(f"v_lshlrev_b32 v{T}, 16, v{T}")
        a(f"v_mul_f32 v{T}, 0xbfb8aa3b, v{T}")
        a(f"v_exp_f32 v{T}, v{T}")
        a(f"v_add_f32 v{T}, 1.0, v{T}")
        a(f"v_rcp_f32 v{T}, v{T}")
        a(f"v_cvt_pk_bf16_f32 v{T}, v{T}, v{T}")
        a(f"v_lshlrev_b32 v{FG}, 16, v{T}")
        a(f"v_mov_b32 v{FG+2}, v{FG}")
        a(f"v_permlane32_swap_b32 v{FG}, v{FG+2}")

    def tab_entry(self, r, dst, idx, add):
        r(f"v_cmp_eq_u32 vcc, 0, v{idx}")
        r(f"v_add_u32 v{dst}, {add}, v{idx}")
        r(f"v_mul_u32_u24 v{dst}, 640, v{dst}")
        r(f"v_add_u32 v{dst}, v{self.VP}, v{dst}")
        r(f"v_cndmask_b32 v{dst}, v{dst}, v{self.VP}, vcc")

    def tab_rd(self, r, dst, va, off, tag):
        for n in range(5):
            r(f"ds_read_b64 {v2(dst+2*n)}, v{va} offset:{off+128*n}", tag=tag)

    def shadow(self):
        L1, L2, WQ, V, MC, T, VP, Q = self.L1, self.L2, self.WQ, self.V, self.MC, self.T4, self.VP, self.Q
        S = {}
        r = self.rec()
        r(f"s_lshl_b32 s{sT0}, s{sW}, 2")
        r(f"s_sub_u32 s{sT0}, s{sTC}, s{sT0}")
        r(f"s_sub_u32 s{sT0}, s{sT0}, 1")
        r(f"v_sub_u32 v{T}, s{sT0}, v{Q}")
        r(f"v_cmp_le_i32 {sp(sT2)}, 0, v{T}")
        r(f"v_max_i32 v{T}, 0, v{T}")
        r(f"v_and_b32 v{T+1}, 3, v{T}")
        r(f"v_lshrrev_b32 v{T}, 2, v{T}")
        self.tab_entry(r, 226, T + 1, 9)
        S[2] = r
        r = self.rec()
        self.tab_entry(r, 227, T, 12)
        self.tab_entry(r, 228, Q, 3)
        r(f"v_mov_b32 v{T}, s{sW}")
        S[3] = r
        r = self.rec()
        self.tab_entry(r, 229, T, 6)
        r(f"v_and_b32 v230, 1, v{Q}")
        r(f"v_mul_u32_u24 v230, {4*640}, v230")
        r(f"v_add_u32 v230, v{VP}, v230")
        S[4] = r
        r = self.rec()
        r(f"v_sub_u32 v{T}, 3, v{Q}")
        self.tab_entry(r, T + 2, T, 3)
        self.tab_rd(r, WQ, T + 2, 0, "t1")
        S[5] = r
        r = self.rec()
        self.tab_rd(r, L2, VP, 2 * 640, "t1")
        self.tab_rd(r, L1, VP, 1 * 640, "t1")
        S[6] = r
        r = self.rec()
        r(f"v_and_b32 v2, 15, v0")
        r(f"v_lshlrev_b32 v1, 3, v2")
        r(f"v_lshlrev_b32 v2, 4, v2")
        r(f"s_lshl_b32 s{sT1}, s{sW}, 7")
        r(f"s_add_u32 s{sT1}, s{sT1}, {PART1}")
        r(f"v_add_u32 v1, s{sT1}, v1")
        r(f"v_lshrrev_b32 v7, 1, v{Q}")
        r(f"v_lshl_add_u32 v4, v7, 2, v1")
        r(f"v_add_u32 v4, 384, v4")
        r(f"v_and_b32 v6, 1, v{Q}")
        r(f"v_mul_u32_u24 v3, 896, v6")
        r(f"v_add_u32 v3, v3, v4")
        S[18] = r
        r = self.rec()
        r(f"v_bfe_u32 v232, v0, 2, 2")
        r(f"v_bfe_u32 v233, v0, 4, 1")
        r(f"v_lshl_add_u32 v232, v233, 3, v232")
        r(f"v_bfe_u32 v233, v0, 1, 1")
        r(f"v_lshlrev_b32 v234, 2, v233")
        r(f"v_xor_b32 v232, v232, v234")
        r(f"v_lshlrev_b32 v232, 4, v232")
        r(f"v_lshl_add_u32 v232, v233, 8, v232")
        r(f"v_and_b32 v233, 1, v0")
        r(f"v_lshl_add_u32 v232, v233, 3, v232")
        r(f"v_bfe_u32 v233, v0, 5, 1")
        r(f"v_lshl_add_u32 v232, v233, 9, v232")
        r(f"v_add_u32 v{self.TP}, s{sBW}, v232")
        r(f"v_xor_b32 v{self.TP+1}, 64, v{self.TP}")
        r(f"v_and_b32 v232, 31, v0")
        r(f"v_lshlrev_b32 v232, 4, v232")
        r(f"v_lshl_add_u32 v{self.HS}, v233, 10, v232")
        S[8] = r
        r = self.rec()
        r(f"s_lshr_b32 s{sT0}, s{sW}, 1")
        r(f"s_lshl_b32 s{sT0}, s{sT0}, 8")
        r(f"s_and_b32 s{sT1}, s{sW}, 1")
        r(f"s_lshl_b32 s{sT1}, s{sT1}, 3")
        r(f"s_add_u32 s{sT0}, s{sT0}, s{sT1}")
        r(f"s_add_u32 s{sT0}, s{sT0}, {PART2}")
        r(f"v_lshl_add_u32 v15, v7, 2, v2")
        r(f"v_add_u32 v15, s{sT0}, v15")
        r(f"v_lshl_add_u32 v14, v6, 9, v15")
        r(f"v_add_u32 v16, {PART2}, v2")
        r(f"v_mul_u32_u24 v17, 1280, v{Q}")
        r(f"v_add_u32 v17, v17, v2")
        r(f"v_lshlrev_b32 v6, 6, v6")
        r(f"v_xor_b32 v6, v6, v2")
        r(f"v_lshl_add_u32 v5, v{Q}, 8, v6")
        r(f"v_add_u32 v5, s{sBW}, v5")
        r(f"v_lshl_add_u32 v{T}, v{Q}, 2, s{sW}")
        r(f"v_min_u32 v{T+1}, 4, v{T}")
        r(f"v_lshl_add_u32 v{T+2}, v{T+1}, 7, v{VP}")
        r(f"ds_read_b64 {v2(T+2)}, v{T+2} offset:{7*640}", tag="t1")
        r(f"v_lshl_add_u32 v6, v{T}, 8, v2")
        r(f"v_mul_u32_u24 v7, 896, v{T+1}")
        r(f"v_add_u32 v7, v7, v{VP}")
        r(f"v_add_u32 v7, {PART1 + 384 - TAB}, v7")
        S[19] = r
        return S

    def htouch(self, k):
        a = self.a
        return Op(lambda: (a("s_mov_b32 exec_hi, 0xff"),
                           a(f"buffer_load_dword a{248+k}, v239, {srd(SWS)}, s{(sHRE, sHIM)[k]} offen", tag="pf"),
                           a("s_mov_b64 exec, -1")), dma=True)

    def gemm1(self):
        a, cfg = self.a, self.cfg
        a.wait(vm="st0")
        a("s_barrier")
        self.stamp("st0")
        run(self.frag_reads(0))
        S = self.shadow()
        queue = list(self.dma_stage(2)) + list(self.dma_stage(3))

        nu = 0
        held = []
        for h in range(20):
            s, u = h >> 1, h & 1
            if u == 1:
                if s < 9:
                    assert all(o.tag != f"st{s+1}" for o in queue)
                    a.wait(vm=f"st{s+1}", lgkm=0)
                else:
                    a.wait(lgkm=0)
                a("s_barrier")
            else:
                a.wait(lgkm=0)
            if h in (2, 4, 8, 12, 16):
                self.stamp(f"gh{h}")
            streams = []
            if h < 19:
                streams.append((self.frag_reads(h + 1), 0, 1))
            if u == 1:
                if s + 4 <= 9:
                    queue += self.dma_stage(s + 4)
                    if s + 4 == cfg.touch:
                        queue.append(Op(lambda: (a("s_mov_b64 exec, 0x1f"),
                                                 a(f"global_load_dword a250, v240, {sp(pWS)}", tag="pf"),
                                                 a("s_mov_b64 exec, -1")), dma=True))
                    if s + 4 == cfg.htouch:
                        queue.append(Op(lambda: (a("v_and_b32 v239, 63, v0"), a("v_lshrrev_b32 v238, 3, v239"), a("v_and_b32 v239, 7, v239"),
                                                 a("v_lshlrev_b32 v239, 7, v239"), a("v_lshl_add_u32 v239, v238, 11, v239"))))
                        queue.append(self.htouch(0))
                        if cfg.ht2 < 0:
                            queue.append(self.htouch(1))
                    if s + 4 == cfg.pf_at:
                        queue.append(Op(lambda: (a("s_mov_b64 exec, 0x1ffffff"),
                                                 a(f"global_load_dword a255, v242, {sp(sM)}", tag="pf"),
                                                 a("s_mov_b64 exec, -1")), dma=True, tag="pfc"))
                else:
                    for _ in range(4):
                        if nu < cfg.n1:
                            (held if cfg.hold_c else queue).extend(self.c_dma(nu))
                        nu += 1
            if h == cfg.ht2 and cfg.htouch:
                queue.append(self.htouch(1))
            pace = 5 if cfg.hold_c else cfg.pace0 if h < cfg.pace0_h else cfg.pace if h < cfg.pace_h else cfg.pace_c
            now, k = [], 0
            while queue and k < pace:
                o = queue.pop(0)
                now.append(o)
                k += o.dma
            left = {o.tag for o in queue}
            assert not (h >= 17 and any(t and t.startswith("st") for t in left))
            if now:
                streams.append((now, cfg.dma_phase, min(19.0 / len(now), cfg.maxstep)))
            if h in S:
                ops = S[h]
                streams.append((ops, 0, 19.0 / len(ops)))
            F = 100 + 48 * (h & 1)
            mf = []
            for k in range(10):
                for m in range(2):
                    d = self.acc(m, k >> 1, k & 1)
                    mf.append(f"v_mfma_f32_16x16x32_bf16 {v4(d)}, {v4(F+4*m)}, {v4(F+8+4*k)}, {'0' if h == 0 else v4(d)}")
            self.weave(mf, streams)
        self.cq = self.c_stream(queue + held)
        self.stamp("gemm1")

    def swap_reduce(self, Z, va, o1, o2):
        a = self.a
        for n in range(5):
            a(f"v_permlane32_swap_b32 v{Z+2*n}, v{Z+2*n+1}")
        for n in (4, 0, 1, 2, 3):
            a(f"v_add_f32 v{Z+2*n}, v{Z+2*n}, v{Z+2*n+1}")
            if n == 0:
                a(f"v_mov_b32 v{Z+9}, v{Z+8}")
        a(f"v_permlane16_swap_b32 v{Z+8}, v{Z+9}")
        a(f"v_permlane16_swap_b32 v{Z}, v{Z+2}")
        a(f"v_permlane16_swap_b32 v{Z+4}, v{Z+6}")
        a(f"v_add_f32 v{Z+8}, v{Z+8}, v{Z+9}")
        a(f"v_add_f32 v{Z}, v{Z}, v{Z+2}")
        a(f"v_add_f32 v{Z+4}, v{Z+4}, v{Z+6}")
        a(f"ds_write_b32 v{va+1}, v{Z+8} offset:{o2}", tag="pw")
        a(f"ds_write_b32 v{va}, v{Z}", tag="pw")
        a(f"ds_write_b32 v{va}, v{Z+4} offset:{o1}", tag="pw")

    def scan(self):
        a, cfg = self.a, self.cfg
        L1, L2, WQ, V, MC, T, VP, Q, U, FG = self.L1, self.L2, self.WQ, self.V, self.MC, self.T4, self.VP, self.Q, self.U, self.FG
        E = 180
        Z = 100
        TA, TB = 110, 114
        PL = T + 2
        a.wait(lgkm="t1")
        a.bg(self.c_take(cfg.k1), cfg.p1)
        for n in range(5):
            ur, ui = self.acc(0, n, 0), self.acc(0, n, 1)
            er, ei = ur, ui
            for k in range(1, 4):
                X = TA if k & 1 else TB
                a(f"v_pk_fma_f32 {v2(X)}, {v2(er)}, {v2(L2+2*n)}, {v2(ur+2*k)} op_sel_hi:[1,0,1]")
                a(f"v_pk_fma_f32 {v2(X+2)}, {v2(ei)}, {v2(L2+2*n)}, {v2(ui+2*k)} op_sel_hi:[1,0,1]")
                a(f"v_pk_fma_f32 {v2(X)}, {v2(ei)}, {v2(L2+2*n)}, {v2(X)} op_sel:[0,1,0] op_sel_hi:[1,1,1] neg_lo:[1,0,0] neg_hi:[1,0,0]")
                a(f"v_pk_fma_f32 {v2(X+2)}, {v2(er)}, {v2(L2+2*n)}, {v2(X+2)} op_sel:[0,1,0] op_sel_hi:[1,1,1]")
                er, ei = X, X + 2
            a(f"v_fma_f32 v{E+2*n}, v{L1+2*n}, v{er}, v{er+1}")
            a(f"v_fma_f32 v{E+2*n+1}, v{L1+2*n}, v{ei}, v{ei+1}")
            a(f"v_fma_f32 v{E+2*n}, -v{L1+2*n+1}, v{ei}, v{E+2*n}")
            a(f"v_fma_f32 v{E+2*n+1}, v{L1+2*n+1}, v{er}, v{E+2*n+1}")
            cmul(a, Z + 2 * n, E + 2 * n, WQ + 2 * n)
        a.bg_flush()
        if cfg.ht2 == 20 and cfg.htouch:
            self.htouch(1)()
        self.swap_reduce(Z, 3, 1792, 3584)
        PG = 114
        CF, L8 = L2, WQ
        a(f"v_cmp_gt_u32 vcc, 5, v{T}")
        a(f"v_mov_b32 v{PG+1}, s{sTAG}")
        a(f"v_mov_b32 v{PG+3}, s{sTAG}")
        a(f"s_mov_b64 {sp(sM)}, {sp(sT2)}")
        a.wait(lgkm=0)
        a("s_barrier")
        for k in range(4):
            a(f"ds_read_b64 {v2(120+2*k)}, v7 offset:{128*k}", tag="pr")
        r = self.rec()
        self.tab_rd(r, CF, VP, 3 * 640, "t2")
        self.tab_rd(r, L8, VP, 4 * 640, "t2")
        run(r)
        a(f"s_and_saveexec_b64 {sp(sT2)}, vcc")
        a.wait(lgkm="pr")
        cfma(a, 128, 120, PL, 122)
        cfma(a, 130, 128, PL, 124)
        cfma(a, 128, 130, PL, 126)
        a(f"v_mov_b32 v{PG}, v128")
        a(f"v_mov_b32 v{PG+2}, v129")
        a(f"buffer_store_dwordx4 {v4(PG)}, v6, {srd(SWS)}, s{sPUB} offen sc1", tag="pub")
        a(f"s_mov_b64 exec, -1")
        self.stamp("pub")

        if cfg.ht2 == 21 and cfg.htouch:
            self.htouch(1)()
        if cfg.cpf >= 2:
            run(self.code_prefetch(132, 2))
        run(self.c_take(cfg.k2a))
        a.wait(lgkm="t2")
        a.bg(self.c_take(cfg.k2), cfg.p2)
        for n in range(5):
            for j in range(8):
                ur, ui = self.acc(0, n, 0) + (j & ~1), self.acc(0, n, 1) + (j & ~1)
                o = j & 1
                d = U + 16 * n + 2 * j
                a(f"v_pk_mul_f32 {v2(d)}, {v2(CF+2*n)}, {v2(ur)} op_sel:[0,{o}] op_sel_hi:[1,{o}]")
                a(f"v_pk_fma_f32 {v2(d)}, {v2(CF+2*n)}, {v2(ui)}, {v2(d)} op_sel:[1,{o},0] op_sel_hi:[0,{o},1] neg_lo:[1,0,0]")
        self.stamp("coef")
        A_, P_, C_, MU, L8Q, L32, Y0, Y1 = 20, 30, 40, 50, 60, 70, 80, 90
        SL, G = 180, 40
        r = self.rec()
        self.tab_rd(r, MU, 230, 0, "t3")
        self.tab_rd(r, L32, VP, 7 * 640, "t3")
        for n in range(5):
            r(f"ds_read_b64 {v2(Y0+2*n)}, v1 offset:{896*n}", tag="t3")
        for n in range(5):
            r(f"ds_read_b64 {v2(Y1+2*n)}, v1 offset:{896*n+128}", tag="t3")
        self.tab_rd(r, L8Q, 228, 0, "t3")
        run(r)
        for n in range(5):
            a(f"v_mov_b64 {v2(A_+2*n)}, {v2(E+2*n)}")
        for n in range(5):
            a(f"v_permlane16_swap_b32 v{A_+2*n}, v{E+2*n}")
            a(f"v_permlane16_swap_b32 v{A_+2*n+1}, v{E+2*n+1}")
        for n in range(5):
            cfma(a, P_ + 2 * n, A_ + 2 * n, L8 + 2 * n, E + 2 * n)
        for n in range(5):
            a(f"ds_read_b64 {v2(L8+2*n)}, v1 offset:{896*n+256}", tag="t4")
        for n in range(5):
            a(f"v_mov_b64 {v2(C_+2*n)}, {v2(P_+2*n)}")
        for n in range(5):
            a(f"v_permlane32_swap_b32 v{C_+2*n}, v{P_+2*n}")
            a(f"v_permlane32_swap_b32 v{C_+2*n+1}, v{P_+2*n+1}")
        per = a.bg_pause()
        a("s_mov_b32 exec_hi, 0")
        for n in range(5):
            a(f"v_mov_b64 {v2(C_+2*n)}, 0")
        a("s_mov_b32 exec_lo, 0xffff")
        a("s_mov_b32 exec_hi, 0xffff")
        for n in range(5):
            a(f"v_mov_b64 {v2(A_+2*n)}, 0")
        a("s_mov_b64 exec, -1")
        a.bg_period = per
        a.wait(lgkm="t3")
        for n in range(5):
            cfma(a, P_ + 2 * n, C_ + 2 * n, MU + 2 * n, A_ + 2 * n)
            cfma(a, Y1 + 2 * n, Y0 + 2 * n, L32 + 2 * n, Y1 + 2 * n)
        for k in range(0, 20, 2):
            a(f"v_mov_b64 {v2(G+k)}, 0")
        a.bg_flush()
        a(f"s_mov_b32 s{sSPIN}, {cfg.spin}")

        def g_loads(tag):
            for n in range(5):
                a(f"buffer_load_dwordx4 {v4(G+4*n)}, v17, {srd(SWS)}, s{sGAT} offen offset:{256*n} sc1", tag=tag, counted=False)

        def g_check():
            a(f"v_min3_u32 v{T}, v{G+1}, v{G+3}, v{G+5}")
            a(f"v_max3_u32 v{T+1}, v{G+1}, v{G+3}, v{G+5}")
            for k in (7, 11, 15):
                a(f"v_min3_u32 v{T}, v{T}, v{G+k}, v{G+k+2}")
                a(f"v_max3_u32 v{T+1}, v{T+1}, v{G+k}, v{G+k+2}")
            a(f"v_min_u32 v{T}, v{T}, v{G+19}")
            a(f"v_max_u32 v{T+1}, v{T+1}, v{G+19}")
            a(f"v_cmp_ne_u32 vcc, s{sTAG}, v{T}")
            a(f"v_cmp_ne_u32 {sp(sT2)}, s{sTAG}, v{T+1}")
            a(f"s_or_b64 vcc, vcc, {sp(sT2)}")
        self.stamp("w1done")
        a(f"s_mov_b64 exec, {sp(sM)}")
        a("s_cbranch_execz L_g0")
        g_loads("g1")
        a("L_g0:")
        a("s_mov_b64 exec, -1")
        a.bg(self.c_take(999), cfg.p3)
        r = self.rec()
        self.tab_rd(r, A_, 226, 0, "t5")
        self.tab_rd(r, Y0, 227, 0, "t5")
        run(r)
        a.wait(lgkm="t4")
        for n in range(5):
            cfma(a, L8 + 2 * n, Y1 + 2 * n, L32 + 2 * n, L8 + 2 * n)
        r = self.rec()
        self.tab_rd(r, Y1, 229, 0, "t6")
        run(r)
        for n in range(5):
            cfma(a, P_ + 2 * n, L8 + 2 * n, L8Q + 2 * n, P_ + 2 * n)
            cmul(a, SL + 2 * n, P_ + 2 * n, CF + 2 * n)
        a.wait(lgkm="t5")
        for n in range(5):
            cmul(a, V + 2 * n, A_ + 2 * n, Y0 + 2 * n)
        a.wait(lgkm="t6")
        for n in range(5):
            cmul(a, A_ + 2 * n, L8Q + 2 * n, Y1 + 2 * n)
            cmul(a, L8 + 2 * n, A_ + 2 * n, CF + 2 * n)
        MC = L8
        a.bg_flush()
        if cfg.fast:
            a(f"v_and_b32 v94, 7, v0")
            a(f"v_lshlrev_b32 v94, 7, v94")
            a(f"s_lshl_b32 s{sT0}, s{sTC}, 1")
            a(f"s_add_u32 s{sT0}, s{sT0}, s{sBR}")
            a(f"s_lshl_b32 s{sT0}, s{sT0}, 10")
            a(f"s_add_u32 s{sT0}, s{sT0}, {WS_XCC}")
            a(f"buffer_load_dwordx2 {v2(96)}, v94, {srd(SWS)}, s{sT0} offen sc1", tag="xc")
        self.gate_loads(96)
        self.skip_loads(96)
        for u in range(cfg.n1 - cfg.ndl):
            run(self.c_drain(u))
        a.wait(vm="g1")
        a(f"s_mov_b64 exec, {sp(sM)}")
        a("s_cbranch_execz L_got")
        g_check()
        a("s_cbranch_vccz L_got")
        a("L_poll1:")
        g_loads("g1b")
        a(f"s_sub_u32 s{sSPIN}, s{sSPIN}, 1")
        a("s_waitcnt vmcnt(0)", slow=True)
        g_check()
        a(f"s_cmp_eq_u32 s{sSPIN}, 0")
        a("s_cbranch_scc1 L_got")
        a("s_cbranch_vccnz L_poll1")
        a("L_got:")
        a("s_mov_b64 exec, -1")
        self.stamp("got")
        Z2 = 60
        for n in range(5):
            a(f"v_pk_mul_f32 {v2(Z2+2*n)}, {v2(V+2*n)}, {v2(G+4*n)} op_sel_hi:[1,0]")
            a(f"v_pk_fma_f32 {v2(Z2+2*n)}, {v2(V+2*n)}, {v2(G+4*n+2)}, {v2(Z2+2*n)} op_sel:[1,0,0] op_sel_hi:[0,0,1] neg_lo:[1,0,0]")
        self.swap_reduce(Z2, 14, 1024, 2048)
        for u in range(cfg.n1 - cfg.ndl, cfg.n1):
            run(self.c_drain(u))
        a(f"v_mov_b32 v{T}, 0")
        if cfg.fast:
            a.wait(vm="xc")
            a(f"v_cmp_eq_u32 vcc, s{sLATE}, v96")
            a(f"v_cmp_eq_u32 {sp(sT2)}, s{sTAG}, v97")
            a(f"s_and_b64 vcc, vcc, {sp(sT2)}")
            a(f"s_cmp_eq_u64 vcc, exec")
            a(f"s_cselect_b32 s{sLATE}, {0 if cfg.fast == 2 else 1}, 0")
        a(f"s_cmp_eq_u32 s{sLATE}, 0")
        a.wait(lgkm=0)
        a("s_barrier")
        for n in range(5):
            a(f"ds_read_b128 {v4(20+8*n)}, v16 offset:{512*n}", tag=f"cr{n}")
            a(f"ds_read_b128 {v4(24+8*n)}, v16 offset:{512*n+256}", tag=f"cr{n}")
        if cfg.split or cfg.fast:
            a("s_cbranch_scc1 L_late")
        pol = ";POL" if cfg.fast else "sc1"
        k4, k5 = [], self.c_stream(sum((list(self.c_dma(u)) for u in range(cfg.n1, 25)), []))

        def stores(n):
            w0 = 20 + 8 * n
            for part, so in enumerate((sHRE, sHIM)):
                a.wait(lgkm=f"tp{n}{part}")
                a(f"buffer_store_dwordx4 {v4(w0+4*part)}, v{self.HS}, {srd(SWS)}, s{so} offen {pol}", tag="hst")
            if n < 4:
                a(f"s_add_u32 s{sHRE}, s{sHRE}, s{(sD0, sD1)[n & 1]}")
                a(f"s_add_u32 s{sHIM}, s{sHIM}, s{(sD0, sD1)[n & 1]}")

        def turn(n, part):
            d = 20 + 8 * n + 4 * part
            off = SLOT + ((2 * n + part) % 8) * 1024
            a(f"ds_write_b128 v5, {v4(d)} offset:{off}", tag="tw")
            for rho in range(2):
                a(f"ds_read_b64_tr_b16 {v2(d+2*rho)}, v{self.TP+rho} offset:{off}", tag=f"tp{n}{part}")

        def pass2(late):
            a.bg(list(k4), cfg.p4)
            for n in range(5):
                w0 = 20 + 8 * n
                a.wait(lgkm=f"cr{n}")
                a(f"v_pk_add_f32 {v2(w0)}, {v2(w0)}, {v2(w0+2)}")
                a(f"v_pk_add_f32 {v2(w0+4)}, {v2(w0+4)}, {v2(w0+6)}")
                a(f"v_pk_add_f32 {v2(w0)}, {v2(w0)}, {v2(w0+4)}")
                cfma(a, SL + 2 * n, w0, MC + 2 * n, SL + 2 * n)
                prev = SL + 2 * n
                for j in range(8):
                    d = U + 16 * n + 2 * j
                    cfma(a, d, prev, L1 + 2 * n, d)
                    prev = d
                    if j == cfg.st_j and n > 0 and not late:
                        stores(n - 1)
                for k in range(4):
                    d = U + 16 * n + 4 * k
                    a(f"v_cvt_pk_bf16_f32 v{w0+k}, v{d}, v{d+2}")
                turn(n, 0)
                for k in range(4):
                    d = U + 16 * n + 4 * k
                    a(f"v_cvt_pk_bf16_f32 v{w0+4+k}, -v{d+1}, -v{d+3}")
                turn(n, 1)
            if not late:
                stores(4)
            a.bg_flush()
            def stamp(name):
                if not late:
                    self.stamp(name)
                elif cfg.prof and name in self.stamp_names:
                    a("s_memtime %s" % sp(STAMP_REGS[self.stamp_names.index(name)]))
            stamp("hst")
            if late or not cfg.c_after:
                a.bg(list(k5), cfg.p5)
            self.gate(90)
            self.gemm2_setup()
            self.skip_terms()
            a.bg_flush()
            if late or cfg.dr_early:
                for u in range(cfg.n1, 25):
                    run(self.c_drain(u))
            stamp("pre")
            if late:
                if cfg.split == 2:
                    a("s_barrier")
                stamp("bar")
                for n in range(5):
                    stores(n)
            stamp("lst")
            a.wait(vm="hst")
            stamp("ack")
            a(f"s_mov_b64 exec, {0xff if cfg.full else 1}")
            a(f"buffer_store_dwordx4 {v4(FG)}, v{self.VH}, {srd(SWS)}, s{sFLG} offen {pol}", tag="flag")
            a("s_mov_b64 exec, -1")
            if cfg.split == 2 and not late:
                a("s_barrier")
                stamp("bar")
            if cfg.c_after and not late:
                run(k5)
            if not (late or cfg.dr_early):
                for u in range(cfg.n1, 25):
                    run(self.c_drain(u))
        first = len(a.ins)
        pass2(False)
        if cfg.fast:
            self.tail = ["L_late:"] + [x.text.replace(";POL", "sc1") for x in a.ins[first:]] + ["s_branch L_join"]
            a("L_join:")
        elif cfg.split:
            main = a.ins[first:]
            del a.ins[first:]
            pass2(True)
            self.tail = ["L_late:"] + [x.text for x in a.ins[first:]] + ["s_branch L_join"]
            a.ins[first:] = main
            a("L_join:")
        self.stamp("flag")

    ACCA, ACCB = 20, 100
    HF = 180
    VT = 212
    VH = 216
    GG = 218
    XO, DO, OO, EW, ER, EW2, PO, BP, PO2 = 1, 2, 3, 4, 6, 7, 8, 9, 217
    SPK = 222
    PV = 242

    def gemm2_setup(self):
        a = self.a
        VT, VH = self.VT, self.VH
        T0, T1, T2, T3 = 14, 15, 16, 17
        a(f"v_and_b32 v{VH}, 63, v0")
        a(f"v_lshlrev_b32 v{VH}, 4, v{VH}")
        a(f"v_bfe_u32 v{T0}, v0, 2, 4")
        a(f"v_and_b32 v{T1}, 3, v0")
        a(f"v_lshlrev_b32 v{self.PO2}, 7, v{T0}")
        a(f"v_bfe_u32 v{T2}, v0, 4, 2")
        a(f"v_bfe_u32 v{T3}, v0, 3, 1")
        a(f"v_lshl_add_u32 v{T2}, v{T2}, 2, v{T3}")
        a(f"s_xor_b32 s{sT0}, s{sBR}, 1")
        a(f"s_lshl_b32 s{sT0}, s{sT0}, 8")
        a(f"v_lshl_add_u32 v{self.PO}, v{T2}, 7, s{sT0}")
        a(f"v_lshlrev_b32 v{self.DO}, 3, v{T1}")
        a(f"v_add_u32 v{self.DO}, {LDK}, v{self.DO}")
        a(f"v_lshlrev_b32 v{self.OO}, 1, v231")
        a(f"v_bfe_u32 v{T2}, v{T0}, 1, 2")
        a(f"v_xor_b32 v{T2}, v{T2}, v{T1}")
        a(f"v_lshlrev_b32 v{T2}, 4, v{T2}")
        a(f"v_mul_u32_u24 v{T3}, 320, v{T0}")
        a(f"s_mul_i32 s{sT1}, s{sW}, {SLOT}")
        a(f"s_add_u32 s{sT1}, s{sT1}, 4096")
        a(f"v_add3_u32 v{self.ER}, v{T2}, v{T3}, s{sT1}")
        a(f"s_and_b32 s{sT1}, s{sW}, 1")
        a(f"s_lshl_b32 s{sT1}, s{sT1}, 7")
        a(f"v_lshrrev_b32 v{T2}, 1, v{T0}")
        a(f"v_lshl_add_u32 v{self.BP}, v{T2}, 4, s{sT1}")
        a(f"v_and_b32 v{T0}, 15, v0")
        a(f"v_bfe_u32 v{T1}, v0, 4, 2")
        a(f"v_bfe_u32 v{T2}, v{T0}, 1, 2")
        a(f"v_xor_b32 v{T2}, v{T2}, v{T1}")
        a(f"v_lshlrev_b32 v{T2}, 4, v{T2}")
        a(f"v_mul_u32_u24 v{T3}, 320, v{T0}")
        a(f"s_add_u32 s{sT1}, s{sBW}, 4096")
        a(f"v_add3_u32 v{self.EW}, v{T2}, v{T3}, s{sT1}")
        a(f"v_add_u32 v{self.EW2}, {2*SLOT}, v{self.EW}")

    def h_loads(self, s):
        r = self.rec()
        base = sHA if s < 10 else sHB
        f, F = self.h_buf(s)
        if s in (0, 10):
            r(f"s_add_u32 s{sK}, s{base}, s{sROT}")
            r(f"s_add_u32 s{sEND}, s{base}, 40960")
        for b in range(4):
            r(f"buffer_load_dwordx4 {v4(F+4*b, f)}, v{self.VH}, {srd(SWS)}, s{sK} offen offset:{1024*b} {self.cfg.hpol}", tag=f"h{s}")
        if s not in (9, 19):
            r(f"s_add_u32 s{sK}, s{sK}, 4096")
            if s & 1 and self.cfg.rot:
                r.group(f"s_cmp_eq_u32 s{sK}, s{sEND}", f"s_cselect_b32 s{sK}, s{base}, s{sK}")
        return r

    def h_buf(self, s):
        return (("v", self.HF), ("v", self.HF + 16), ("a", 200), ("a", 216), ("a", 232))[s % 5]

    def part_writes(self, base):
        r = self.rec()
        for nt in range(5):
            for mt in range(4):
                r(f"ds_write_b128 v{self.EW2 if mt >> 1 else self.EW}, {v4(base + 16*nt + 4*mt)} offset:{(mt & 1)*SLOT + 64*nt}", tag="ew")
        return r

    def part_reads(self, base, tag):
        r = self.rec()
        for i in range(5):
            for wp in range(4):
                r(f"ds_read_b128 {v4(base+16*i+4*wp)}, v{self.ER} offset:{wp*PIECE + 64*i}", tag=f"{tag}{i}")
        return r

    def gemm2(self):
        a, cfg = self.a, self.cfg
        GG, PV, SPK, T = self.GG, self.PV, self.SPK, self.T4
        A, B = self.ACCA, self.ACCB
        if cfg.cpf >= 3:
            run(self.code_prefetch(140, 3))
        a(f"s_mov_b32 s{sSPIN}, {cfg.spin}")

        def p_load(tag, po=self.PO, counted=True):
            a(f"buffer_load_dwordx4 {v4(PV)}, v{po}, {srd(SWS)}, s{sPOL} offen sc1", tag=tag, counted=counted)

        def p_check():
            a(f"v_cmp_ne_u32 vcc, s{sTAG}, v{PV+1}")
            a(f"v_cmp_ne_u32 {sp(sT2)}, s{sTAG}, v{PV+3}")
            a(f"s_or_b64 vcc, vcc, {sp(sT2)}")
        self.stamp("w3done")
        po1 = self.PO if cfg.split else self.PO2
        p_load("g2", po1)
        a.wait(vm=0)
        p_check()
        a("s_cbranch_vccz L_got2")
        a("L_poll2:")
        if cfg.nap:
            a(f"s_sleep {cfg.nap}")
        p_load("g2b", po1)
        a(f"s_sub_u32 s{sSPIN}, s{sSPIN}, 1")
        a.wait(vm=0)
        p_check()
        a(f"s_cmp_eq_u32 s{sSPIN}, 0")
        a("s_cbranch_scc1 L_got2")
        a("s_cbranch_vccnz L_poll2")
        a("L_got2:")
        self.stamp("got2")
        for s in range(4):
            run(self.h_loads(s))
        a(f"s_mul_i32 s{sT0}, s{sXS}, 5120")
        a(f"s_add_u32 s{sT0}, s{sT0}, {WS_XCH}")
        a(f"s_mul_i32 s{sT1}, s{sXR}, 5120")
        a(f"s_add_u32 s{sT1}, s{sT1}, {WS_XCH}")
        a(f"s_lshl_b32 s{sXS}, s{sXS}, 7")
        a(f"s_add_u32 s{sXS}, s{sXS}, {WS_XF}")
        a(f"s_lshl_b32 s{sXR}, s{sXR}, 7")
        a(f"s_add_u32 s{sXR}, s{sXR}, {WS_XF}")
        a(f"s_mov_b32 s{sPUB}, s{sT0}")
        a(f"s_mov_b32 s{sGAT}, s{sT1}")
        a(f"s_add_u32 s{sHRE}, s{sT0}, 4096")
        a(f"s_add_u32 s{sHIM}, s{sT1}, 4096")
        a(f"s_mov_b32 s{sSPIN}, {cfg.spin}")
        a.wait(vm="h0", lgkm=0)
        self.stamp("h0")
        rb = self.rec()
        rb(f"ds_bpermute_b32 v{T}, v{self.BP}, v{PV}", tag="bp")
        rb(f"ds_bpermute_b32 v{T+1}, v{self.BP}, v{PV+2}", tag="bp")
        r0 = self.rec()
        r0.wait(lgkm="bp")
        r0(f"v_and_b32 v{T+2}, 4, v0")
        r0(f"v_cmp_ne_u32 vcc, 0, v{T+2}")
        r0(f"v_cndmask_b32 v{GG}, v{T}, v{T+1}, vcc", strict=True)
        r0(f"v_sub_f32 v{GG+1}, 1.0, v{GG}")
        r0(f"v_cvt_pk_bf16_f32 v{GG+1}, v{GG+1}, v{GG+1}")
        r0(f"v_lshlrev_b32 v{GG+1}, 16, v{GG+1}")
        r0.group(f"s_cmp_eq_u32 s{sBR}, 1", "s_cselect_b64 vcc, -1, 0")
        r0(f"v_cndmask_b32 v{GG+2}, v{GG}, v{GG+1}, vcc", strict=True)
        r0(f"v_cndmask_b32 v{GG+3}, v{GG+1}, v{GG}, vcc")
        r0(f"v_mov_b32 v{T+2}, s{sTAG}")
        r0(f"v_mov_b32 v{T+3}, 0")
        rs = self.rec()
        for i in range(5):
            b = A + 16 * i
            if cfg.pks:
                for e in (0, 2):
                    rs(f"v_pk_add_f32 {v2(b+e)}, {v2(b+e)}, {v2(b+4+e)}")
                    rs(f"v_pk_add_f32 {v2(b+8+e)}, {v2(b+8+e)}, {v2(b+12+e)}")
                for e in (0, 2):
                    rs(f"v_pk_add_f32 {v2(b+e)}, {v2(b+e)}, {v2(b+8+e)}")
            else:
                for e in range(4):
                    rs(f"v_add_f32 v{b+e}, v{b+e}, v{b+4+e}")
                    rs(f"v_add_f32 v{b+8+e}, v{b+8+e}, v{b+12+e}")
                for e in range(4):
                    rs(f"v_add_f32 v{b+e}, v{b+e}, v{b+8+e}")
            so, off = (sPUB, 1024 * i) if i < 4 else (sHRE, 0)
            rs(f"buffer_store_dwordx4 {v4(b)}, v{self.VH}, {srd(SWS)}, s{so} offen offset:{off} sc1", tag="xs")
        rk = self.rec()
        for i in range(5):
            sk, t = A + 16 * i + 4, A + 16 * i + 8
            for b in range(2):
                s0 = SPK + 4 * i + 2 * b
                rk(f"v_lshlrev_b32 v{t}, 16, v{s0}")
                rk(f"v_and_b32 v{t+1}, 0xffff0000, v{s0}")
                rk(f"v_lshlrev_b32 v{t+2}, 16, v{s0+1}")
                rk(f"v_and_b32 v{t+3}, 0xffff0000, v{s0+1}")
                for e in range(4):
                    rk(f"v_mul_f32 v{sk+e}, v{GG}, v{t+e}" if b == 0 else f"v_fmac_f32 v{sk+e}, v{GG+1}, v{t+e}")
        wa = self.part_writes(A)
        wb = self.part_writes(B)
        b1 = cfg.b1

        def mfmas(s, nt):
            kk = s % 10
            base = A if s < 10 else B
            f, F = self.h_buf(s)
            cr = 8 * (5 * (kk >> 1) + nt) + 4 * (kk & 1)
            return [f"v_mfma_f32_16x16x32_bf16 {v4(base+16*nt+4*mt)}, {v4(cr, 'a')}, {v4(F+4*mt, f)}, "
                    f"{'0' if kk == 0 else v4(base+16*nt+4*mt)}" for mt in range(4)]

        def xflag():
            a.wait(vm="xs")
            a(f"s_mov_b64 exec, {0xff if cfg.full else 1}")
            a(f"buffer_store_dwordx4 {v4(self.FG)}, v{self.VH}, {srd(SWS)}, s{sXS} offen sc1", tag="xf")
            a("s_mov_b64 exec, -1")

        for s in (0, 1, 2, 3, 4, 5, 6, 7, 10, 11, 12, 13, 14, 15, 16, 17):
            streams = []
            if s == b1:
                a.wait(vm=f"h{s}", lgkm=0)
                a("s_barrier")
            elif s == b1 + 1:
                a.wait(vm=f"h{s}", lgkm=0)
            else:
                a.wait(vm=f"h{s}")
            if s == b1 + 3:
                a("s_barrier")
            if s == 10:
                self.stamp("passA")
            elif s > 0:
                self.stamp(f"s{s}")
            if s == cfg.tb_at:
                rt = self.rec()
                rt(f"s_and_b32 s{sT0}, s{sCG}, 7")
                rt(f"s_mul_i32 s{sT0}, s{sT0}, 5120")
                rt(f"s_add_u32 s{sT0}, s{sT0}, s{sHB}")
                rt(f"v_lshlrev_b32 v{self.PO}, 3, v{self.VH}")
                rt.append(Op(lambda: (a("s_mov_b32 exec_hi, 0xff"),
                                      a(f"buffer_load_dword a247, v{self.PO}, {srd(SWS)}, s{sT0} offen {cfg.hpol}", tag="pf"),
                                      a("s_mov_b64 exec, -1"))))
                streams.append((rt, 9, 2))
            if s == cfg.p2_at and cfg.split:
                p_load("g3", self.PO2)
            if s == 6 and cfg.split:
                a.wait(vm="g3")
                p_check()
                a("s_cbranch_vccz L_got4")
                a("L_poll4:")
                p_load("g3b", self.PO2, False)
                a(f"s_sub_u32 s{sSPIN}, s{sSPIN}, 1")
                a("s_waitcnt vmcnt(0)", slow=True)
                p_check()
                a(f"s_cmp_eq_u32 s{sSPIN}, 0")
                a("s_cbranch_scc1 L_got4")
                a("s_cbranch_vccnz L_poll4")
                a("L_got4:")
                a(f"s_mov_b32 s{sSPIN}, {cfg.spin}")
            if s == cfg.xf_at:
                xflag()
            if s % 10 != 7:
                if s + 4 < 20:
                    streams.append((self.h_loads(s + 4), cfg.hd0, cfg.hds))
                if s == 6:
                    streams.append((rb, 10, 1))
                if 10 <= s < b1 or (s == 10 and wa):
                    streams.append((wa, 0, 3))
                    wa = []
                if s == b1:
                    assert not wa
                    streams.append((self.part_reads(A, "ra"), 0, 1))
                if s in (b1 + 1, b1 + 2):
                    half = len(rs) * 3 // 5 if s == b1 + 1 else len(rs)
                    now, rs = rs[:half], rs[half:]
                    streams.append((now, 0, 19.0 / len(now)))
                if b1 + 3 <= s and cfg.rk_in:
                    now, rk = rk[:cfg.rk_in], rk[cfg.rk_in:]
                    if now:
                        streams.append((now, 8, 12.0 / len(now)))
                self.weave(sum((mfmas(s, nt) for nt in range(5)), []), streams)
                continue
            order = [(0, 0), (1, 0), (2, 0), (0, 1), (1, 1), (2, 1), (0, 2), (1, 2), (2, 2),
                     (3, 0), (3, 1), (3, 2), (4, 0), (4, 1), (4, 2)]
            mf = sum((mfmas(s + d, nt) for nt, d in order), [])
            pins = {11: lambda s=s: a.wait(vm=f"h{s+1}"), 23: lambda s=s: a.wait(vm=f"h{s+2}")}
            w = wa if s == 7 else wb
            nin = cfg.nwin
            streams.append((w[:12], 31, cfg.wstep))
            streams.append((w[12:nin], max(51, 31 + 12 * cfg.wstep), 2))
            if s == 7:
                wa = w[nin:]
                streams.append((self.h_loads(11), cfg.hd0, cfg.hds))
                h12, h13 = self.h_loads(12), self.h_loads(13)
                for g in range(4):
                    pins[51 + g] = h12[g]
                    pins[55 + g] = (lambda g=g: (h12[4](), h13[0]())) if g == 0 else h13[g]
                last = h13[4:]
                streams.append((r0, 19, 1))
                pins[59] = lambda: (run(last), run(wa if b1 == 10 else []))
            else:
                wb = w[nin:]
                r3 = self.rec()
                r3(f"buffer_load_dword v{PV}, v{T+3}, {srd(SWS)}, s{sXR} offen offset:4 sc1", tag="xp")
                streams.append((r3, cfg.xp_gap, 1))
                if cfg.rk_in:
                    now, rk = rk[:cfg.rk_in], rk[cfg.rk_in:]
                    if now:
                        streams.append((now, 18, 12.0 / len(now)))
            if s == 7 and cfg.prof:
                for g in (9, 11, 23, 30, 39, 41, 50, 58):
                    old = pins.get(g, lambda: None)
                    pins[g] = lambda g=g, old=old: (old(), self.stamp(f"s{700+g}"))
            self.weave(mf, streams, pins)
            if s == 7 and b1 == 10:
                wa = []
        assert not rs
        self.stamp("gemm2")

        def recv():
            for i in range(5):
                so, off = (sGAT, 1024 * i) if i < 4 else (sHIM, 0)
                a(f"buffer_load_dwordx4 {v4(A+16*i)}, v{self.VH}, {srd(SWS)}, s{so} offen offset:{off} sc1", tag=f"xr{i}")
        per = -(-len(rk) // max(len(wb), 1))
        for w in wb:
            w()
            now, rk = rk[:per], rk[per:]
            run(now)
        run(rk)
        a.wait(vm="xp")
        a(f"v_cmp_ne_u32 vcc, s{sTAG}, v{PV}")
        a("s_cbranch_vccz L_got3")
        a("L_poll3:")
        a(f"buffer_load_dword v{PV}, v{T+3}, {srd(SWS)}, s{sXR} offen offset:4 sc1", tag="xpb")
        a(f"s_sub_u32 s{sSPIN}, s{sSPIN}, 1")
        a.wait(vm=0)
        a(f"v_cmp_ne_u32 vcc, s{sTAG}, v{PV}")
        a(f"s_cmp_eq_u32 s{sSPIN}, 0")
        a("s_cbranch_scc1 L_got3")
        a("s_cbranch_vccnz L_poll3")
        a("L_got3:")
        recv()
        self.stamp("got3")
        a.wait(lgkm=0)
        a("s_barrier")
        run(self.part_reads(B, "rb"))
        for i in range(5):
            b, rv, sk = B + 16 * i, A + 16 * i, A + 16 * i + 4
            a.wait(lgkm=f"rb{i}")
            for hf in range(2):
                a(f"v_pk_add_f32 {v2(b+2*hf)}, {v2(b+2*hf)}, {v2(b+4+2*hf)}")
                a(f"v_pk_add_f32 {v2(b+8+2*hf)}, {v2(b+8+2*hf)}, {v2(b+12+2*hf)}")
            for hf in range(2):
                a(f"v_pk_add_f32 {v2(b+2*hf)}, {v2(b+2*hf)}, {v2(b+8+2*hf)}")
            for hf in range(2):
                a(f"v_pk_fma_f32 {v2(sk+2*hf)}, {v2(b+2*hf)}, {v2(GG+2)}, {v2(sk+2*hf)} op_sel_hi:[1,0,1]")
        for i in range(5):
            rv, sk = A + 16 * i, A + 16 * i + 4
            a.wait(vm=f"xr{i}")
            for hf in range(2):
                a(f"v_pk_fma_f32 {v2(sk+2*hf)}, {v2(rv+2*hf)}, {v2(GG+2)}, {v2(sk+2*hf)} op_sel:[0,1,0] op_sel_hi:[1,1,1]")
            a(f"buffer_store_dwordx4 {v4(sk)}, v{self.OO}, {srd(SOUT)}, 0 offen offset:{64*i} {cfg.opol}", tag="out")
        self.stamp("outst")
        a(f"s_xor_b32 s{sT0}, s{sTC}, 15")
        a(f"s_or_b32 s{sT0}, s{sT0}, s{sCG}")
        a(f"s_or_b32 s{sT0}, s{sT0}, s{sW}")
        a("s_cbranch_scc1 L_noep")
        a("s_mov_b64 exec, 1")
        a(f"buffer_store_dword v{T+2}, v{T+3}, {srd(SWS)}, 0 offen offset:{WS_EPOCH}", counted=False)
        a("s_mov_b64 exec, -1")
        a("L_noep:")

    def finish(self):
        a = self.a
        if self.cfg.prof:
            a.wait(vm=0)
            self.stamp("end")
            self.stamp("rt1")
            a("s_waitcnt lgkmcnt(0)")
            a(f"s_lshl_b32 s{sT0}, s2, 2")
            a(f"s_add_u32 s{sT0}, s{sT0}, s{sW}")
            a(f"s_lshl_b32 s{sT0}, s{sT0}, 7")
            a(f"s_add_u32 s{sT0}, s{sT0}, {WS_PROF}")
            a("v_mov_b32 v6, 0")
            a("s_mov_b64 exec, 1")
            for k in range(self.nstamp):
                a(f"v_mov_b32 v7, s{STAMP_REGS[k]}")
                a(f"buffer_store_dword v7, v6, {srd(SWS)}, s{sT0} offen offset:{4*k}")
            a(f"s_getreg_b32 s{sT1}, hwreg(HW_REG_XCC_ID)")
            a(f"v_mov_b32 v7, s{sT1}")
            a(f"buffer_store_dword v7, v6, {srd(SWS)}, s{sT0} offen offset:124")
            a(f"v_mov_b32 v7, s{sLATE}")
            a(f"buffer_store_dword v7, v6, {srd(SWS)}, s{sT0} offen offset:120")
        a("L_end:")
        a("s_endpgm")

    def build(self):
        self.prologue()
        self.gemm1()
        self.scan()
        self.gemm2()
        self.finish()
        errs = self.a.check_waits()
        for e in errs:
            print("WAIT ERROR:", e, file=sys.stderr)
        assert not errs
        for t in self.tail:
            self.a(t)
        self.a("L_last:")
        self.a("s_endpgm")
        n = self.a.fix_hazards(verbose=self.cfg.verbose)
        if self.cfg.align:
            print("aligned:", self.a.align8(self.cfg.align), file=sys.stderr)
        print("wait states inserted:", n, " instructions:", len(self.a.ins), file=sys.stderr)
        ref = open(os.path.join(os.path.dirname(os.path.abspath(__file__)), "..", "cdna_kernels", NAME + ".s.ref")).read()
        head = []
        for line in ref.split("\n"):
            if line.startswith("; @launch"):
                break
            head.append(line)
        txt = "\n".join(head) + f"\n; @launch grid=(256,1,1) block=(256,1,1) lds={LDS_BYTES}\n"
        txt += f""".amdgcn_target "amdgcn-amd-amdhsa--gfx950"
.text
.globl {NAME}_kernel
.p2align 8
.type {NAME}_kernel,@function
{NAME}_kernel:
"""
        txt += self.a.text().replace(" ;POL", "")
        txt += f""".section .rodata,"a"
.p2align 6
.amdhsa_kernel {NAME}_kernel
  .amdhsa_next_free_vgpr 512
  .amdhsa_next_free_sgpr 102
  .amdhsa_accum_offset 256
  .amdhsa_group_segment_fixed_size 0
  .amdhsa_kernarg_size 176
  .amdhsa_user_sgpr_count 2
  .amdhsa_user_sgpr_kernarg_segment_ptr 1
  .amdhsa_system_sgpr_workgroup_id_x 1
  .amdhsa_float_denorm_mode_32 3
.end_amdhsa_kernel
"""
        return txt


def main():
    p = argparse.ArgumentParser()
    p.add_argument("-o", default=None)
    for name, default in dict(prof=0, pf=2, pf_at=99, pace0=5, pace0_h=8, pace=5, pace_c=0, pace_h=16, cap=2, k1=6, p1=14, k2a=1, k2=14, p2=14,
                              k3=10, p3=10, k4=0, p4=22, ew_lag=5, xf_at=16, split=0, tb_at=-1, fast=0, n1=14, ndl=3, st_j=2, c_after=1, align=100, remap=0, pfc0=0, htouch=0, ht2=-1, hold_c=0, order=1, touch=9, full=1, p5=12, dr_early=0, rk_in=16, pks=0, b1=10, nwin=16, xp_gap=40, hd0=1, hds=3, cpf=1, abl=0, nap=0, rot=1, p2_at=4, spin=20000, verbose=0).items():
        p.add_argument("--" + name, type=int, default=default)
    p.add_argument("--maxstep", type=float, default=20)
    p.add_argument("--wstep", type=float, default=2)
    p.add_argument("--dma_phase", type=float, default=1)
    p.add_argument("--hpol", default="sc1")
    p.add_argument("--opol", default="")
    p.add_argument("--only", default="")
    p.add_argument("--nostamp", default="karg,dma0,dma1,coef,w3done,gh2,gh4,gh8,gh12,gh16,pre,bar,lst,ack,got3")
    cfg = p.parse_args()
    g = Gen(cfg)
    txt = g.build()
    out = cfg.o or os.path.join(os.path.dirname(os.path.abspath(__file__)), "..", "cdna_kernels", NAME + ".s")
    open(out, "w").write(txt)
    if cfg.prof:
        open(out + ".stamps", "w").write("\n".join(g.stamp_names))


if __name__ == "__main__":
    main()
```

```python
import sys, os, argparse, math
sys.path.insert(0, os.path.dirname(os.path.abspath(__file__)))
from asmlib import Asm, Ins

NAME = "gated_mix__ssm_conv_s5__ssm_conv_s5__prompt"

WS_EPOCH = 0
WS_FLAG = 4096
WS_XF = 135168
WS_CARRY = 266240
WS_XCC = 593920
WS_H = 655360
WS_XCH = WS_H + 10485760
WS_PROF = WS_XCH + 5242880
WS_USED = WS_PROF + 1024 * 128

SLOT = 36864
PIECE = 9216
TOP = 4 * SLOT
TAB = TOP
PART1 = TOP + 10240
PART2 = TAB + 6400
LGW = PART1 + 4480
LDK = LGW + 1280
LDS_BYTES = 163840

sSPIN, sTC, sCG, sLATE, sBR, sW, sBW, sTAG, sK = 3, 4, 5, 6, 7, 8, 9, 10, 11
sT0, sT1, sT2, sT3 = 12, 13, 14, 15
SX, SB, SC, SWS, SOUT = 16, 20, 24, 32, 36
sPUB, sGAT, sHRE, sHIM = 28, 29, 30, 31
KA = 40
pX, pLre, pLim, pBre, pBim, pCre, pCim, pDT, pDA = 40, 42, 44, 46, 48, 50, 52, 54, 56
pDB, pGW, pOUT, pWS = 74, 76, 78, 80
sM = 58
sFLG, sPOL, sHA, sHB, sXS, sXR = 82, 83, 84, 85, 86, 87
sD0, sD1 = 72, 73
sKQ, sROT, sEND = 60, 65, 66
STAMP_REGS = list(range(88, 102, 2)) + [42, 44, 46, 48, 50, 52, 54, 68, 70]


def srd(b):
    return "s[%d:%d]" % (b, b + 3)


def sp(b):
    return "s[%d:%d]" % (b, b + 1)


def v2(b):
    return "v[%d:%d]" % (b, b + 1)


def v4(b, f="v"):
    return "%s[%d:%d]" % (f, b, b + 3)


class Op:
    __slots__ = ("f", "strict", "dma", "tag")

    def __init__(self, f, strict=False, dma=False, tag=None):
        self.f, self.strict, self.dma, self.tag = f, strict, dma, tag

    def __call__(self):
        self.f()


class Rec(list):
    def __init__(self, a):
        super().__init__()
        self.a = a

    def __call__(self, text, tag=None, counted=True, strict=False):
        self.append(Op(lambda: self.a(text, tag, counted), strict, text.startswith(("buffer_", "global_")), tag))

    def wait(self, vm=None, lgkm=None):
        self.append(Op(lambda: self.a.wait(vm, lgkm)))

    def group(self, *texts):
        self.append(Op(lambda: [self.a(t) for t in texts]))


def cmul(a, d, x, y):
    a(f"v_pk_mul_f32 {v2(d)}, {v2(x)}, {v2(y)} op_sel_hi:[1,0]")
    a(f"v_pk_fma_f32 {v2(d)}, {v2(x)}, {v2(y)}, {v2(d)} op_sel:[1,1,0] op_sel_hi:[0,1,1] neg_lo:[1,0,0]")


def cfma(a, d, x, y, c):
    a(f"v_pk_fma_f32 {v2(d)}, {v2(x)}, {v2(y)}, {v2(c)} op_sel_hi:[1,0,1]")
    a(f"v_pk_fma_f32 {v2(d)}, {v2(x)}, {v2(y)}, {v2(d)} op_sel:[1,1,0] op_sel_hi:[0,1,1] neg_lo:[1,0,0]")


def run(ops):
    for o in ops:
        o()


class Gen:
    def __init__(self, cfg):
        self.cfg = cfg
        self.a = Asm()
        self.nstamp = 0
        self.stamp_names = []
        self.tail = []

    def rec(self):
        return Rec(self.a)

    def stamp(self, name):
        if not self.cfg.prof:
            return
        if self.cfg.only:
            if name not in self.cfg.only.split(",") + ["rt0", "start", "end", "rt1"]:
                return
        elif name in self.cfg.nostamp.split(",") or (name[0] == "s" and name[1:].isdigit()):
            return
        op = "s_memrealtime" if name.startswith("rt") else "s_memtime"
        self.a("%s %s" % (op, sp(STAMP_REGS[self.nstamp])))
        self.stamp_names.append(name)
        self.nstamp += 1

    def weave(self, mf, streams, pins=None):
        n = len(mf)
        load = [0] * n
        slots = [[] for _ in range(n)]
        for ops, start, step in streams:
            prev = -1
            for k, op in enumerate(ops):
                g = max(int(start + k * step), prev + (1 if op.strict else 0), 0)
                while g < n - 1 and load[g] >= self.cfg.cap:
                    g += 1
                g = min(g, n - 1)
                slots[g].append(op)
                load[g] += 1
                prev = g
        for g in range(n):
            self.a(mf[g])
            run(slots[g])
            if pins and g in pins:
                pins[g]()

    ACC = 20
    GX, GW = 70, 80
    L1, L2, WQ, V, MC = 196, 206, 216, 232, 190
    T4 = 246
    VP, Q = 250, 251
    FG = 252
    TP, HS = 244, 243
    VC0, VC1 = 18, 19
    VCR = 10
    U = 100

    def acc(self, m, n, part):
        return self.ACC + (n * 2 + part) * 8 + 4 * m

    def prologue(self):
        a, cfg = self.a, self.cfg
        a(f"s_load_dwordx16 s[{KA}:{KA+15}], s[0:1], 0")
        a(f"s_load_dwordx16 s[{KA+16}:{KA+31}], s[0:1], 64")
        a(f"s_load_dwordx8 s[{KA+32}:{KA+39}], s[0:1], 128")
        a(f"s_load_dwordx2 {sp(pWS)}, s[0:1], 168")
        a("s_cmp_ge_u32 s2, 0x100")
        a("s_cbranch_scc1 L_end")
        if cfg.cpf == 0:
            a(f"s_getpc_b64 {sp(sT0)}")
            a("L_pc0:")
            a("v_lshlrev_b32 v18, 7, v0")
            a("v_min_u32 v19, L_last-L_pc0, v18")
            a(f"global_load_dword v243, v19, {sp(sT0)}", tag="pf")
        self.stamp("rt0")
        self.stamp("start")
        a("v_lshrrev_b32 v18, 6, v0")
        a(f"s_and_b32 s{sT2}, s2, 7")
        a(f"s_lshr_b32 s{sT3}, s2, 3")
        a(f"v_readfirstlane_b32 s{sW}, v18")
        if cfg.cpf:
            run(self.code_prefetch(18, 1))
        L, R8, SL, F0, T0, T1, C = 196, 197, 198, 199, 246, 247, 248
        Q = self.Q
        a(f"s_lshr_b32 s{sTC}, s{sT2}, 1")
        if cfg.remap:
            a(f"s_lshr_b32 s{sT0}, s{sTC}, 1")
            a(f"s_xor_b32 s{sTC}, s{sTC}, s{sT0}")
        a(f"s_lshl_b32 s{sTC}, s{sTC}, 2")
        a(f"s_lshr_b32 s{sT0}, s{sT3}, 3")
        a(f"s_add_u32 s{sTC}, s{sTC}, s{sT0}")
        a(f"s_and_b32 s{sBR}, s{sT2}, 1")
        a(f"s_and_b32 s{sT1}, s{sT3}, 7")
        a(f"s_lshl_b32 s{sCG}, s{sBR}, 3")
        a(f"s_add_u32 s{sCG}, s{sCG}, s{sT1}")
        a(f"s_mov_b32 s{sK}, 0")
        a(f"v_and_b32 v{L}, 63, v0")
        a(f"v_lshrrev_b32 v{R8}, 3, v{L}")
        a(f"v_and_b32 v{SL}, 7, v{L}")
        a(f"v_lshrrev_b32 v{Q}, 4, v{L}")
        a(f"v_xor_b32 v{F0}, v{Q}, v{SL}")
        a(f"v_lshlrev_b32 v{F0}, 4, v{F0}")
        a(f"v_lshrrev_b32 v{T0}, 5, v{L}")
        a(f"v_and_b32 v{T1}, 3, v{R8}")
        a(f"v_lshl_add_u32 v{T0}, v{T0}, 3, v{T1}")
        a(f"v_mul_u32_u24 v{T0}, 1280, v{T0}")
        a(f"v_xor_b32 v{T1}, 64, v{F0}")
        a(f"v_add_u32 v1, v{T0}, v{F0}")
        a(f"v_add_u32 v2, v{T0}, v{T1}")
        a(f"v_add_u32 v2, {16*1280-1024}, v2")
        a(f"v_add_u32 v3, {4*1280-2048}, v1")
        a(f"v_add_u32 v4, {4*1280-2048}, v2")
        a(f"v_mul_u32_u24 v{T0}, 1280, v{R8}")
        a(f"v_add_u32 v{self.VC0}, v{T0}, v{F0}")
        a(f"v_add_u32 v{self.VC1}, v{T0}, v{T1}")
        a(f"v_add_u32 v{self.VC1}, {8*1280}, v{self.VC1}")
        a(f"s_mul_i32 s{sBW}, s{sW}, {PIECE}")
        a(f"s_bitcmp1_b32 s{sW}, 1")
        a(f"s_cselect_b64 vcc, -1, 0")
        a(f"s_mul_i32 s{sT1}, s{sT1}, 80")
        a(f"s_mul_i32 s{sT0}, s{sW}, 20")
        a(f"v_cndmask_b32 v5, v{self.VC0}, v{self.VC1}, vcc")
        for n in range(1, 5):
            a(f"v_add_u32 v{5+n}, {n*16*1280 - 1024*(n & 3)}, v5")
        a(f"v_add_u32 v{self.VC1}, -1024, v{self.VC1}")
        a(f"v_min_u32 v{T0}, 19, v{L}")
        a(f"v_add_u32 v204, s{sT0}, v{T0}")
        a(f"v_add_lshl_u32 v{T0}, v204, s{sT1}, 1")
        a(f"s_mul_i32 s{sT1}, s{sT1}, 1280")
        a(f"s_lshl_b32 s{sT0}, s{sTC}, 2")
        a(f"s_add_u32 s{sT0}, s{sT0}, s{sW}")
        a(f"s_mul_i32 s{sT0}, s{sT0}, {32*1280}")
        a(f"s_lshl_b32 s{sPUB}, s{sT3}, 2")
        a(f"s_add_u32 s{sPUB}, s{sPUB}, s{sW}")
        a(f"s_lshl_b32 s{sGAT}, s{sT2}, 7")
        a(f"s_add_u32 s{sGAT}, s{sGAT}, s{sPUB}")
        a(f"s_mul_i32 s{sGAT}, s{sGAT}, 2560")
        a(f"s_bfe_u32 s{sHRE}, s{sT2}, 0x10001")
        a(f"s_lshl_b32 s{sHRE}, s{sHRE}, 7")
        a(f"s_add_u32 s{sHRE}, s{sHRE}, s{sPUB}")
        a(f"s_mul_i32 s{sHRE}, s{sHRE}, 3200")
        a(f"v_lshlrev_b32 v241, 7, v{L}")
        a(f"s_lshl_b32 s{sHIM}, s2, 2")
        a(f"s_add_u32 s{sHIM}, s{sHIM}, s{sW}")
        a(f"s_mul_i32 s{sHIM}, s{sHIM}, 640")
        a(f"s_add_u32 s{sHIM}, s{sHIM}, {WS_FLAG}")
        a(f"v_add_u32 v240, s{sHIM}, v241")
        a(f"v_add_u32 v242, s{sHRE}, v241")
        a(f"v_add_u32 v241, s{sGAT}, v241")
        a(f"s_mov_b32 s{SX+3}, 0x20000")
        a(f"s_mov_b32 s{SB+3}, 0x20000")
        a(f"s_sub_u32 s{SX+2}, 2621440, s{sT0}")
        a(f"s_sub_u32 s{SB+2}, 819200, s{sT1}")
        a("s_waitcnt lgkmcnt(0)")
        self.stamp("karg")
        a(f"s_add_u32 s{SX}, s{pX}, s{sT0}")
        a(f"s_addc_u32 s{SX+1}, s{pX+1}, 0")
        a(f"s_cmp_eq_u32 s{sBR}, 1")
        for p in (pBre, pBim, pLre, pLim, pDT, pCre, pCim):
            a(f"s_cselect_b64 {sp(p)}, {sp(p+18)}, {sp(p)}")
        a(f"s_bitcmp1_b32 s{sW}, 0")
        a(f"s_cselect_b64 {sp(SB)}, {sp(pBim)}, {sp(pBre)}")
        a(f"s_cselect_b64 {sp(SC)}, {sp(pCim)}, {sp(pCre)}")
        a(f"s_add_u32 s{SB}, s{SB}, s{sT1}")
        a(f"s_addc_u32 s{SB+1}, s{SB+1}, 0")
        a(f"global_load_ushort v206, v{T0}, {sp(pLre)}", tag="par")
        a(f"global_load_ushort v207, v{T0}, {sp(pLim)}", tag="par")
        a(f"global_load_ushort v208, v{T0}, {sp(pDT)}", tag="par")

        def prefetch():
            a(f"s_bitcmp1_b32 s{sT2}, 2")
            a(f"s_cselect_b64 {sp(SWS)}, {sp(pBim)}, {sp(pBre)}")
            a(f"s_cselect_b64 {sp(sM)}, {sp(pCim)}, {sp(pCre)}")
            a("s_mov_b64 exec, 0xfffff")
            a(f"global_load_dword v244, v241, {sp(pX)}", tag="pf")
            a("s_mov_b64 exec, 0x1ffffff")
            a(f"global_load_dword v245, v242, {sp(SWS)}", tag="pf")
            if cfg.touch == 1:
                a("s_mov_b64 exec, 0x1f")
                a(f"global_load_dword v243, v240, {sp(pWS)}", tag="pf")
            a("s_mov_b64 exec, -1")
        if cfg.pf == 1:
            prefetch()
        if cfg.pfc0:
            a(f"s_bitcmp1_b32 s{sT2}, 2")
            a(f"s_cselect_b64 {sp(sM)}, {sp(pCim)}, {sp(pCre)}")
            a("s_mov_b64 exec, 0x1ffffff")
            a(f"global_load_dword a255, v242, {sp(sM)}", tag="pf")
            a("s_mov_b64 exec, -1")
        run(self.dma_stage(0))
        if cfg.pf == 2:
            prefetch()
        a(f"s_load_dword s{sTAG}, {sp(pWS)}, {WS_EPOCH}")
        self.stamp("dma0")
        a(f"v_lshlrev_b32 v204, 3, v204")
        a(f"v_add_u32 v204, {TAB}, v204")
        a(f"v_and_b32 v{C}, 15, v{L}")
        a(f"v_lshrrev_b32 v{T0}, 1, v{C}")
        a(f"v_xor_b32 v{T0}, v{T0}, v{Q}")
        a(f"v_lshlrev_b32 v{T0}, 4, v{T0}")
        a(f"v_lshl_add_u32 v{T1}, v{C}, 7, v{T0}")
        a(f"v_add_u32 v10, s{sBW}, v{T1}")
        a(f"v_xor_b32 v11, 64, v10")
        a(f"v_add_u32 v12, {2*SLOT}, v10")
        a(f"v_add_u32 v13, {2*SLOT}, v11")
        a(f"v_and_b32 v{T1}, 7, v{C}")
        a(f"v_lshl_add_u32 v{T0}, v{T1}, 7, v{T0}")
        a(f"v_lshrrev_b32 v{T1}, 3, v{C}")
        a(f"v_mul_u32_u24 v{T1}, {2*PIECE}, v{T1}")
        a(f"v_add_u32 v{T0}, 4096, v{T0}")
        a(f"v_add_u32 v14, v{T0}, v{T1}")
        a(f"v_xor_b32 v15, 64, v14")
        a(f"v_add_u32 v16, {2*SLOT}, v14")
        a(f"v_add_u32 v17, {2*SLOT}, v15")
        a(f"v_lshlrev_b32 v{self.VP}, 3, v{C}")
        a(f"v_add_u32 v{self.VP}, {TAB}, v{self.VP}")
        a(f"s_lshr_b32 s{sT0}, s{sW}, 1")
        a(f"s_mul_i32 s{sT0}, s{sT0}, 640")
        a(f"s_add_u32 s{sT0}, s{sT0}, s{sT1}")
        a(f"s_add_u32 s{SC}, s{SC}, s{sT0}")
        a(f"s_addc_u32 s{SC+1}, s{SC+1}, 0")
        a(f"s_sub_u32 s{SC+2}, 819200, s{sT0}")
        a(f"s_mov_b32 s{SC+3}, 0x20000")
        a(f"s_mov_b32 s{SWS}, s{pWS}")
        a(f"s_mov_b32 s{SWS+1}, s{pWS+1}")
        a(f"s_mov_b32 s{SWS+2}, {WS_USED}")
        a(f"s_mov_b32 s{SWS+3}, 0x20000")
        a(f"s_mov_b32 s{SOUT}, s{pOUT}")
        a(f"s_mov_b32 s{SOUT+1}, s{pOUT+1}")
        a(f"s_mov_b32 s{SOUT+2}, 5242880")
        a(f"s_mov_b32 s{SOUT+3}, 0x20000")
        if cfg.rot:
            a(f"s_and_b32 s{sT0}, s{sCG}, 7")
            if cfg.rot == 1:
                a(f"s_and_b32 s{sT2}, s{sTC}, 3")
                a(f"s_add_u32 s{sT0}, s{sT0}, s{sT2}")
            for _ in range(2 if cfg.rot == 1 else 1):
                a(f"s_sub_u32 s{sT2}, s{sT0}, 5")
                a(f"s_cselect_b32 s{sT0}, s{sT0}, s{sT2}")
        else:
            a(f"s_mov_b32 s{sT0}, 0")
        a(f"s_lshl_b32 s{sROT}, s{sT0}, 13")
        a(f"s_lshl_b32 s{sKQ}, s{sT0}, 7")
        for k in range(1, 5):
            a(f"s_add_u32 s{sKQ+k}, s{sKQ+k-1}, 128")
            a(f"s_cmp_eq_u32 s{sKQ+k}, 640")
            a(f"s_cselect_b32 s{sKQ+k}, 0, s{sKQ+k}")
        if cfg.fast:
            cfg.split = 0
        a(f"s_lshr_b32 s{sLATE}, s{sW}, 1")
        a(f"s_xor_b32 s{sLATE}, s{sLATE}, s{sBR}")
        a(f"s_mul_i32 s{sT0}, s{sW}, 320")
        a(f"v_lshl_add_u32 v236, v{L}, 4, s{sT0}")
        a(f"s_add_u32 s{sEND}, s{sT0}, {LGW}")
        a(f"s_and_b32 s{sT0}, s{sCG}, 7")
        a(f"s_mul_i32 s{sT0}, s{sT0}, 160")
        a(f"v_lshl_add_u32 v237, v{L}, 4, s{sT0}")
        a(f"s_bitcmp1_b32 s{sW}, 0")
        a(f"s_cselect_b64 {sp(68)}, {sp(pDB)}, {sp(pDA)}")
        a(f"s_cselect_b32 s67, 160, 0")
        a(f"s_add_u32 s67, s67, {LDK}")
        self.ws_offsets()
        if cfg.order == 0:
            run(self.dma_stage(1))
            self.params()
        else:
            self.params()
            run(self.dma_stage(1))
        a("s_waitcnt lgkmcnt(0)")
        a(f"s_mul_i32 s{sTAG}, s{sTAG}, 0x9E3779B1")
        a(f"s_add_u32 s{sTAG}, s{sTAG}, 0x7F4A7C15")
        if cfg.fast:
            a(f"s_getreg_b32 s{sLATE}, hwreg(HW_REG_XCC_ID, 0, 4)")
            a(f"s_lshl_b32 s{sT0}, s{sTC}, 4")
            a(f"s_add_u32 s{sT0}, s{sT0}, s{sCG}")
            a(f"s_lshl_b32 s{sT0}, s{sT0}, 7")
            a(f"s_add_u32 s{sT0}, s{sT0}, {WS_XCC}")
            a(f"v_mov_b32 v246, s{sLATE}")
            a(f"v_mov_b32 v247, s{sTAG}")
            a(f"v_lshlrev_b32 v248, 3, v196")
            a("s_mov_b64 exec, 0xffff")
            a(f"buffer_store_dwordx2 {v2(246)}, v248, {srd(SWS)}, s{sT0} offen sc1", tag="xcc")
        a(f"s_mov_b32 m0, s{sEND}")
        a("s_mov_b64 exec, 0xfffff")
        a(f"global_load_lds_dwordx4 v236, {sp(pGW)}", tag="small")
        a(f"s_mov_b32 m0, s67")
        a("s_mov_b64 exec, 0x3ff")
        a(f"global_load_lds_dwordx4 v237, {sp(68)}", tag="small")
        a("s_mov_b64 exec, -1")
        self.stamp("dma1")

    def code_prefetch(self, t, k):
        a = self.a
        r = self.rec()
        r(f"s_lshr_b32 s{sT0}, s2, 3")
        r(f"s_lshl_b32 s{sT0}, s{sT0}, 2")
        r(f"s_add_u32 s{sT0}, s{sT0}, s{sW}")
        r(f"s_lshl_b32 s{sT0}, s{sT0}, 8")
        r(f"v_and_b32 v{t}, 1, v0")
        r(f"v_lshl_add_u32 v{t}, v{t}, 7, s{sT0}")
        r.append(Op(lambda: (a(f"s_getpc_b64 {sp(sT0)}"), a(f"L_pc{k}:"), a(f"v_min_u32 v{t}, L_last-L_pc{k}, v{t}"),
                             a("s_mov_b64 exec, 3"), a(f"global_load_dword a{255-k}, v{t}, {sp(sT0)}", tag="pf"),
                             a("s_mov_b64 exec, -1")), dma=True))
        return r

    def ws_offsets(self):
        a = self.a
        a(f"s_lshl_b32 s{sT0}, s{sCG}, 4")
        a(f"s_add_u32 s{sPUB}, s{sT0}, s{sTC}")
        a(f"s_mul_i32 s{sPUB}, s{sPUB}, 1280")
        a(f"s_add_u32 s{sPUB}, s{sPUB}, {WS_CARRY}")
        a(f"s_lshl_b32 s{sT2}, s{sW}, 2")
        a(f"s_add_u32 s{sGAT}, s{sT0}, s{sT2}")
        a(f"s_mul_i32 s{sGAT}, s{sGAT}, 1280")
        a(f"s_add_u32 s{sGAT}, s{sGAT}, {WS_CARRY}")
        a(f"s_lshl_b32 s{sT0}, s{sTC}, 1")
        a(f"s_add_u32 s{sT0}, s{sT0}, s{sBR}")
        a(f"s_lshr_b32 s{sT2}, s{sW}, 1")
        a(f"s_and_b32 s{sT3}, s{sW}, 1")
        a(f"s_lshl_b32 s{sHRE}, s{sT0}, 1")
        a(f"s_add_u32 s{sHRE}, s{sHRE}, s{sT2}")
        a(f"s_mul_i32 s{sHRE}, s{sHRE}, {2*81920}")
        a(f"s_and_b32 s{sHIM}, s{sCG}, 7")
        a(f"s_mul_i32 s{sHIM}, s{sHIM}, 5")
        a(f"s_and_b32 s{sD0}, s{sHIM}, 1")
        a(f"s_lshr_b32 s{sHIM}, s{sHIM}, 1")
        a(f"s_lshl_b32 s{sHIM}, s{sHIM}, 12")
        a(f"s_add_u32 s{sHRE}, s{sHRE}, s{sHIM}")
        a(f"s_lshl_b32 s{sHIM}, s{sD0}, 9")
        a(f"s_add_u32 s{sHRE}, s{sHRE}, s{sHIM}")
        a(f"s_mul_i32 s{sD0}, s{sD0}, 3072")
        a(f"s_add_u32 s{sD0}, s{sD0}, 512")
        a(f"s_sub_u32 s{sD1}, 4096, s{sD0}")
        a(f"s_lshl_b32 s{sHIM}, s{sT3}, 11")
        a(f"s_add_u32 s{sHRE}, s{sHRE}, s{sHIM}")
        a(f"s_add_u32 s{sHRE}, s{sHRE}, {WS_H}")
        a(f"s_add_u32 s{sHIM}, s{sHRE}, 81920")
        a(f"s_lshl_b32 s{sHB}, s{sT0}, 1")
        a(f"s_add_u32 s{sHB}, s{sHB}, s{sBR}")
        a(f"s_xor_b32 s{sHA}, s{sHB}, 1")
        a(f"s_mul_i32 s{sXS}, s{sT3}, 81920")
        a(f"s_mul_i32 s{sXR}, s{sT2}, 40960")
        a(f"s_add_u32 s{sXS}, s{sXS}, s{sXR}")
        a(f"s_add_u32 s{sXS}, s{sXS}, {WS_H}")
        a(f"s_mul_i32 s{sHA}, s{sHA}, {2*81920}")
        a(f"s_mul_i32 s{sHB}, s{sHB}, {2*81920}")
        a(f"s_add_u32 s{sHA}, s{sHA}, s{sXS}")
        a(f"s_add_u32 s{sHB}, s{sHB}, s{sXS}")
        a(f"s_lshl_b32 s{sFLG}, s{sTC}, 4")
        a(f"s_add_u32 s{sFLG}, s{sFLG}, s{sCG}")
        a(f"s_lshl_b32 s{sFLG}, s{sFLG}, 2")
        a(f"s_add_u32 s{sFLG}, s{sFLG}, s{sW}")
        a(f"s_lshl_b32 s{sFLG}, s{sFLG}, 7")
        a(f"s_add_u32 s{sFLG}, s{sFLG}, {WS_FLAG}")
        a(f"s_lshl_b32 s{sPOL}, s{sT0}, 1")
        a(f"s_add_u32 s{sPOL}, s{sPOL}, s{sT2}")
        a(f"s_lshl_b32 s{sPOL}, s{sPOL}, 11")
        a(f"s_add_u32 s{sPOL}, s{sPOL}, {WS_FLAG}")
        a(f"s_lshl_b32 s{sXS}, s{sTC}, 3")
        a(f"s_and_b32 s{sT0}, s{sCG}, 7")
        a(f"s_add_u32 s{sXS}, s{sXS}, s{sT0}")
        a(f"s_lshl_b32 s{sXS}, s{sXS}, 1")
        a(f"s_add_u32 s{sXS}, s{sXS}, s{sBR}")
        a(f"s_lshl_b32 s{sXS}, s{sXS}, 2")
        a(f"s_add_u32 s{sXS}, s{sXS}, s{sW}")
        a(f"s_xor_b32 s{sXR}, s{sXS}, 4")

    def params(self):
        a = self.a
        LR, LI, DT, T0, T1, T2 = 206, 207, 208, 209, 210, 211
        P = lambda k: 100 + 2 * k
        a(f"v_lshlrev_b32 v{T0}, 3, v196")
        a(f"v_add_u32 v{T0}, {PART1}, v{T0}")
        a(f"v_mov_b64 {v2(P(16))}, 0")
        a("s_mov_b32 exec_hi, 0xffff")
        for n in range(5):
            a(f"ds_write_b64 v{T0}, {v2(P(16))} offset:{n*896}", tag="tab")
        a("s_mov_b64 exec, 0xfffff")
        a.wait(vm="par")
        a(f"v_lshlrev_b32 v{DT}, 16, v{DT}")
        a(f"v_lshlrev_b32 v{LR}, 16, v{LR}")
        a(f"v_mul_f32 v{DT}, 0x3fb8aa3b, v{DT}")
        a(f"v_exp_f32 v{DT}, v{DT}")
        a(f"v_lshlrev_b32 v{LI}, 16, v{LI}")
        a(f"v_cvt_pk_bf16_f32 v{DT}, v{DT}, v{DT}")
        a(f"v_lshlrev_b32 v{DT}, 16, v{DT}")
        a(f"v_mul_f32 v{T0}, v{DT}, v{LR}")
        a(f"v_mul_f32 v{T1}, v{DT}, v{LI}")
        a(f"v_mul_f32 v{T0}, 0x3fb8aa3b, v{T0}")
        a(f"v_mul_f32 v{T1}, 0x3e22f983, v{T1}")
        a(f"v_exp_f32 v{T0}, v{T0}")
        a(f"v_rndne_f32 v{T2}, v{T1}")
        a(f"v_sub_f32 v{T1}, v{T1}, v{T2}")
        a(f"v_cos_f32 v{T2}, v{T1}")
        a(f"v_sin_f32 v{T1}, v{T1}")
        a(f"v_mov_b32 v{P(0)}, 1.0")
        a(f"v_mov_b32 v{P(0)+1}, 0")
        a(f"v_mul_f32 v{P(1)}, v{T0}, v{T2}")
        a(f"v_mul_f32 v{P(1)+1}, v{T0}, v{T1}")
        a(f"v_mul_f32 v{T0}, v{LR}, v{LR}")
        a(f"v_fmac_f32 v{T0}, v{LI}, v{LI}")
        a(f"v_rcp_f32 v{T0}, v{T0}")
        a(f"v_add_f32 v{T1}, -1.0, v{P(1)}")
        a(f"v_mul_f32 v{P(3)}, v{T1}, v{LR}")
        a(f"v_mul_f32 v{P(3)+1}, v{P(1)+1}, v{LR}")
        a(f"v_add_f32 v{T0}, v{T0}, v{T0}")
        a(f"v_fmac_f32 v{P(3)}, v{P(1)+1}, v{LI}")
        a(f"v_fma_f32 v{P(3)+1}, -v{T1}, v{LI}, v{P(3)+1}")
        a(f"v_mul_f32 v{P(3)}, v{P(3)}, v{T0}")
        a(f"v_mul_f32 v{P(3)+1}, v{P(3)+1}, v{T0}")
        cmul(a, P(2), P(1), P(1))
        cmul(a, P(17), P(2), P(2))
        cmul(a, P(4), P(17), P(17))
        for base in (4, 7, 10, 13):
            cmul(a, P(base + 1), P(base), P(base))
            cmul(a, P(base + 2), P(base + 1), P(base))
            if base < 13:
                cmul(a, P(base + 3), P(base + 1), P(base + 1))
        for e in range(16):
            a(f"ds_write_b64 v204, {v2(P(e))} offset:{e*640}", tag="tab")
        a("s_mov_b64 exec, -1")

    def dma_stage(self, s):
        r = self.rec()
        base = (s % 4) * SLOT
        for j in range(9):
            if j in (0, 4, 8):
                r(f"s_add_u32 m0, s{sBW}, {base + 1024*j}")
            sr = SX if j < 4 else SB
            r(f"buffer_load_dwordx4 v{1+j}, {srd(sr)}, s{sK} offen offset:{1024*(j & 3)} lds", tag=f"st{s}", strict=j in (0, 4, 8))
        if s < 9:
            r(f"s_add_u32 s{sK}, s{sK}, 128")
        return r

    def c_slot(self, u):
        if u >= self.cfg.n1:
            u -= self.cfg.n1
        return ((2 + u // 4) % 4), (u % 4)

    def c_dma(self, u):
        r = self.rec()
        p, qq = self.c_slot(u)
        kl, nt = divmod(u, 5)
        r(f"s_add_u32 m0, s{sBW}, {p*SLOT + qq*2048}")
        r(f"s_add_u32 s{sK}, s{sKQ+kl}, {nt*20480}")
        r(f"buffer_load_dwordx4 v{self.VC0}, {srd(SC)}, s{sK} offen lds", tag=f"c{u}", strict=True)
        r(f"buffer_load_dwordx4 v{self.VC1}, {srd(SC)}, s{sK} offen offset:1024 lds", tag=f"c{u}")
        return r

    def c_drain(self, u):
        r = self.rec()
        p, qq = self.c_slot(u)
        r.wait(vm=f"c{u}")
        for b in range(2):
            r(f"ds_read_b128 {v4(8*u+4*b, 'a')}, v{self.VCR + 2*(p >> 1) + b} offset:{(p & 1)*SLOT + qq*2048}", tag=f"dr{u}")
        return r

    def c_stream(self, rest):
        items, cur = [], []
        for o in rest:
            cur.append(o)
            if o.dma:
                items.append(Op(lambda c=cur: run(c), tag=o.tag))
                cur = []
        assert not cur
        return items

    def cq_ops(self):
        return self.cq

    def c_take(self, n):
        r, self.cq = self.cq[:n], self.cq[n:]
        return r

    def frag_reads(self, h):
        r = self.rec()
        s, u = h >> 1, h & 1
        slot = s % 4
        F = 100 + 48 * (h & 1)
        va = 10 + 2 * (slot >> 1) + u
        vb = 14 + 2 * (slot >> 1) + u
        so = (slot & 1) * SLOT
        rd = lambda dst, vr, off: r(f"ds_read_b128 {v4(dst)}, v{vr} offset:{off}", tag=f"fr{h}")
        rd(F, va, so)
        rd(F + 8, vb, so)
        rd(F + 4, va, so + 2048)
        for k in range(1, 10):
            rd(F + 8 + 4 * k, vb, so + (k & 1) * PIECE + (k >> 1) * 1024)
        return r

    def gate_loads(self, t):
        a = self.a
        GX, GW = self.GX, self.GW
        a(f"s_lshl_b32 s{sT0}, s{sTC}, 4")
        a(f"s_add_u32 s{sT0}, s{sT0}, s{sCG}")
        a(f"s_lshl_b32 s{sT0}, s{sT0}, 2")
        a(f"s_add_u32 s{sT0}, s{sT0}, s{sW}")
        a(f"s_lshl_b32 s{sT0}, s{sT0}, 1")
        a(f"v_bfe_u32 v{t}, v0, 5, 1")
        a(f"v_add_u32 v{t}, s{sT0}, v{t}")
        a(f"v_mul_u32_u24 v{t}, 1280, v{t}")
        a(f"v_and_b32 v{t+1}, 31, v0")
        a(f"v_lshl_add_u32 v{t+2}, v{t+1}, 4, v{t}")
        a(f"v_lshl_add_u32 v{t+3}, v{t+1}, 3, v{t}")
        a(f"global_load_dwordx4 {v4(GX)}, v{t+2}, {sp(pX)}", tag="gate")
        a(f"global_load_dwordx4 {v4(GX+4)}, v{t+2}, {sp(pX)} offset:512", tag="gate")
        a(f"global_load_dwordx2 {v2(GX+8)}, v{t+3}, {sp(pX)} offset:1024", tag="gate")
        a(f"v_lshlrev_b32 v{t+2}, 4, v{t+1}")
        a(f"v_add_u32 v{t+2}, {LGW}, v{t+2}")
        a(f"v_lshlrev_b32 v{t+3}, 3, v{t+1}")
        a(f"v_add_u32 v{t+3}, {LGW + 1024}, v{t+3}")
        a(f"ds_read_b128 {v4(GW)}, v{t+2}", tag="gw")
        a(f"ds_read_b128 {v4(GW+4)}, v{t+2} offset:512", tag="gw")
        a(f"ds_read_b64 {v2(GW+8)}, v{t+3}", tag="gw")

    XS = 60

    def xs(self, i):
        return (190, 192, 194, 92, 94)[i]

    def skip_loads(self, t):
        a = self.a
        a(f"s_lshl_b32 s{sT0}, s{sTC}, 1")
        a(f"s_add_u32 s{sT0}, s{sT0}, s{sBR}")
        a(f"s_lshl_b32 s{sT0}, s{sT0}, 2")
        a(f"s_add_u32 s{sT0}, s{sT0}, s{sW}")
        a(f"s_lshl_b32 s{sT0}, s{sT0}, 4")
        a(f"s_and_b32 s{sT1}, s{sCG}, 7")
        a(f"s_mul_i32 s{sT1}, s{sT1}, 80")
        a(f"v_bfe_u32 v{t}, v0, 2, 4")
        a(f"v_and_b32 v{t+1}, 3, v0")
        a(f"v_add_u32 v{t}, s{sT0}, v{t}")
        a(f"v_mul_u32_u24 v{t}, 640, v{t}")
        a(f"v_lshl_add_u32 v{t+1}, v{t+1}, 2, s{sT1}")
        a(f"v_add_lshl_u32 v231, v{t}, v{t+1}, 1")
        for i in range(5):
            a(f"global_load_dwordx2 {v2(self.xs(i))}, v231, {sp(pX)} offset:{32*i}", tag="ep")

    def skip_terms(self):
        a = self.a
        DA, DB, t, SPK = 100, 110, 130, self.SPK
        for i in range(5):
            a(f"ds_read_b64 {v2(DA+2*i)}, v{self.DO} offset:{32*i}", tag="dk")
            a(f"ds_read_b64 {v2(DB+2*i)}, v{self.DO} offset:{160+32*i}", tag="dk")
        a.wait(vm="ep", lgkm="dk")
        for i in range(5):
            x0 = self.xs(i)
            a(f"v_lshlrev_b32 v{t}, 16, v{x0}")
            a(f"v_and_b32 v{t+1}, 0xffff0000, v{x0}")
            a(f"v_lshlrev_b32 v{t+2}, 16, v{x0+1}")
            a(f"v_and_b32 v{t+3}, 0xffff0000, v{x0+1}")
            for b, dsk in enumerate((DA + 2 * i, DB + 2 * i)):
                a(f"v_lshlrev_b32 v{t+4}, 16, v{dsk}")
                a(f"v_and_b32 v{t+5}, 0xffff0000, v{dsk}")
                a(f"v_lshlrev_b32 v{t+6}, 16, v{dsk+1}")
                a(f"v_and_b32 v{t+7}, 0xffff0000, v{dsk+1}")
                a(f"v_pk_mul_f32 {v2(t+4)}, {v2(t)}, {v2(t+4)}")
                a(f"v_pk_mul_f32 {v2(t+6)}, {v2(t+2)}, {v2(t+6)}")
                a(f"v_cvt_pk_bf16_f32 v{SPK+4*i+2*b}, v{t+4}, v{t+5}")
                a(f"v_cvt_pk_bf16_f32 v{SPK+4*i+2*b+1}, v{t+6}, v{t+7}")

    def gate(self, T):
        a = self.a
        GX, GW, FG = self.GX, self.GW, self.FG
        a(f"v_mov_b32 v{T}, 0")
        a(f"v_mov_b32 v{T+1}, 0")
        a.wait(vm="gate", lgkm="gw")
        for k in range(10):
            a(f"v_dot2_f32_bf16 v{T+(k & 1)}, v{GX+k}, v{GW+k}, v{T+(k & 1)}")
        a(f"v_mov_b32 v{FG+1}, s{sTAG}")
        a(f"v_mov_b32 v{FG+3}, s{sTAG}")
        a(f"v_add_f32 v{T}, v{T}, v{T+1}")
        for k in (8, 4, 2, 1):
            a(f"v_add_f32_dpp v{T}, v{T}, v{T} row_ror:{k} row_mask:0xf bank_mask:0xf")
        a(f"v_mov_b32 v{T+1}, v{T}")
        a(f"v_permlane16_swap_b32 v{T}, v{T+1}")
        a(f"v_add_f32 v{T}, v{T}, v{T+1}")
        a(f"v_cvt_pk_bf16_f32 v{T}, v{T}, v{T}")
        a(f"v_lshlrev_b32 v{T}, 16, v{T}")
        a(f"v_mul_f32 v{T}, 0xbfb8aa3b, v{T}")
        a(f"v_exp_f32 v{T}, v{T}")
        a(f"v_add_f32 v{T}, 1.0, v{T}")
        a(f"v_rcp_f32 v{T}, v{T}")
        a(f"v_cvt_pk_bf16_f32 v{T}, v{T}, v{T}")
        a(f"v_lshlrev_b32 v{FG}, 16, v{T}")
        a(f"v_mov_b32 v{FG+2}, v{FG}")
        a(f"v_permlane32_swap_b32 v{FG}, v{FG+2}")

    def tab_entry(self, r, dst, idx, add):
        r(f"v_cmp_eq_u32 vcc, 0, v{idx}")
        r(f"v_add_u32 v{dst}, {add}, v{idx}")
        r(f"v_mul_u32_u24 v{dst}, 640, v{dst}")
        r(f"v_add_u32 v{dst}, v{self.VP}, v{dst}")
        r(f"v_cndmask_b32 v{dst}, v{dst}, v{self.VP}, vcc")

    def tab_rd(self, r, dst, va, off, tag):
        for n in range(5):
            r(f"ds_read_b64 {v2(dst+2*n)}, v{va} offset:{off+128*n}", tag=tag)

    def shadow(self):
        L1, L2, WQ, V, MC, T, VP, Q = self.L1, self.L2, self.WQ, self.V, self.MC, self.T4, self.VP, self.Q
        S = {}
        r = self.rec()
        r(f"s_lshl_b32 s{sT0}, s{sW}, 2")
        r(f"s_sub_u32 s{sT0}, s{sTC}, s{sT0}")
        r(f"s_sub_u32 s{sT0}, s{sT0}, 1")
        r(f"v_sub_u32 v{T}, s{sT0}, v{Q}")
        r(f"v_cmp_le_i32 {sp(sT2)}, 0, v{T}")
        r(f"v_max_i32 v{T}, 0, v{T}")
        r(f"v_and_b32 v{T+1}, 3, v{T}")
        r(f"v_lshrrev_b32 v{T}, 2, v{T}")
        self.tab_entry(r, 226, T + 1, 9)
        S[2] = r
        r = self.rec()
        self.tab_entry(r, 227, T, 12)
        self.tab_entry(r, 228, Q, 3)
        r(f"v_mov_b32 v{T}, s{sW}")
        S[3] = r
        r = self.rec()
        self.tab_entry(r, 229, T, 6)
        r(f"v_and_b32 v230, 1, v{Q}")
        r(f"v_mul_u32_u24 v230, {4*640}, v230")
        r(f"v_add_u32 v230, v{VP}, v230")
        S[4] = r
        r = self.rec()
        r(f"v_sub_u32 v{T}, 3, v{Q}")
        self.tab_entry(r, T + 2, T, 3)
        self.tab_rd(r, WQ, T + 2, 0, "t1")
        S[5] = r
        r = self.rec()
        self.tab_rd(r, L2, VP, 2 * 640, "t1")
        self.tab_rd(r, L1, VP, 1 * 640, "t1")
        S[6] = r
        r = self.rec()
        r(f"v_and_b32 v2, 15, v0")
        r(f"v_lshlrev_b32 v1, 3, v2")
        r(f"v_lshlrev_b32 v2, 4, v2")
        r(f"s_lshl_b32 s{sT1}, s{sW}, 7")
        r(f"s_add_u32 s{sT1}, s{sT1}, {PART1}")
        r(f"v_add_u32 v1, s{sT1}, v1")
        r(f"v_lshrrev_b32 v7, 1, v{Q}")
        r(f"v_lshl_add_u32 v4, v7, 2, v1")
        r(f"v_add_u32 v4, 384, v4")
        r(f"v_and_b32 v6, 1, v{Q}")
        r(f"v_mul_u32_u24 v3, 896, v6")
        r(f"v_add_u32 v3, v3, v4")
        S[18] = r
        r = self.rec()
        r(f"v_bfe_u32 v232, v0, 2, 2")
        r(f"v_bfe_u32 v233, v0, 4, 1")
        r(f"v_lshl_add_u32 v232, v233, 3, v232")
        r(f"v_bfe_u32 v233, v0, 1, 1")
        r(f"v_lshlrev_b32 v234, 2, v233")
        r(f"v_xor_b32 v232, v232, v234")
        r(f"v_lshlrev_b32 v232, 4, v232")
        r(f"v_lshl_add_u32 v232, v233, 8, v232")
        r(f"v_and_b32 v233, 1, v0")
        r(f"v_lshl_add_u32 v232, v233, 3, v232")
        r(f"v_bfe_u32 v233, v0, 5, 1")
        r(f"v_lshl_add_u32 v232, v233, 9, v232")
        r(f"v_add_u32 v{self.TP}, s{sBW}, v232")
        r(f"v_xor_b32 v{self.TP+1}, 64, v{self.TP}")
        r(f"v_and_b32 v232, 31, v0")
        r(f"v_lshlrev_b32 v232, 4, v232")
        r(f"v_lshl_add_u32 v{self.HS}, v233, 10, v232")
        S[8] = r
        r = self.rec()
        r(f"s_lshr_b32 s{sT0}, s{sW}, 1")
        r(f"s_lshl_b32 s{sT0}, s{sT0}, 8")
        r(f"s_and_b32 s{sT1}, s{sW}, 1")
        r(f"s_lshl_b32 s{sT1}, s{sT1}, 3")
        r(f"s_add_u32 s{sT0}, s{sT0}, s{sT1}")
        r(f"s_add_u32 s{sT0}, s{sT0}, {PART2}")
        r(f"v_lshl_add_u32 v15, v7, 2, v2")
        r(f"v_add_u32 v15, s{sT0}, v15")
        r(f"v_lshl_add_u32 v14, v6, 9, v15")
        r(f"v_add_u32 v16, {PART2}, v2")
        r(f"v_mul_u32_u24 v17, 1280, v{Q}")
        r(f"v_add_u32 v17, v17, v2")
        r(f"v_lshlrev_b32 v6, 6, v6")
        r(f"v_xor_b32 v6, v6, v2")
        r(f"v_lshl_add_u32 v5, v{Q}, 8, v6")
        r(f"v_add_u32 v5, s{sBW}, v5")
        r(f"v_lshl_add_u32 v{T}, v{Q}, 2, s{sW}")
        r(f"v_min_u32 v{T+1}, 4, v{T}")
        r(f"v_lshl_add_u32 v{T+2}, v{T+1}, 7, v{VP}")
        r(f"ds_read_b64 {v2(T+2)}, v{T+2} offset:{7*640}", tag="t1")
        r(f"v_lshl_add_u32 v6, v{T}, 8, v2")
        r(f"v_mul_u32_u24 v7, 896, v{T+1}")
        r(f"v_add_u32 v7, v7, v{VP}")
        r(f"v_add_u32 v7, {PART1 + 384 - TAB}, v7")
        S[19] = r
        return S

    def htouch(self, k):
        a = self.a
        return Op(lambda: (a("s_mov_b32 exec_hi, 0xff"),
                           a(f"buffer_load_dword a{248+k}, v239, {srd(SWS)}, s{(sHRE, sHIM)[k]} offen", tag="pf"),
                           a("s_mov_b64 exec, -1")), dma=True)

    def gemm1(self):
        a, cfg = self.a, self.cfg
        a.wait(vm="st0")
        a("s_barrier")
        self.stamp("st0")
        run(self.frag_reads(0))
        S = self.shadow()
        queue = list(self.dma_stage(2)) + list(self.dma_stage(3))

        nu = 0
        held = []
        for h in range(20):
            s, u = h >> 1, h & 1
            if u == 1:
                if s < 9:
                    assert all(o.tag != f"st{s+1}" for o in queue)
                    a.wait(vm=f"st{s+1}", lgkm=0)
                else:
                    a.wait(lgkm=0)
                a("s_barrier")
            else:
                a.wait(lgkm=0)
            if h in (2, 4, 8, 12, 16):
                self.stamp(f"gh{h}")
            streams = []
            if h < 19:
                streams.append((self.frag_reads(h + 1), 0, 1))
            if u == 1:
                if s + 4 <= 9:
                    queue += self.dma_stage(s + 4)
                    if s + 4 == cfg.touch:
                        queue.append(Op(lambda: (a("s_mov_b64 exec, 0x1f"),
                                                 a(f"global_load_dword a250, v240, {sp(pWS)}", tag="pf"),
                                                 a("s_mov_b64 exec, -1")), dma=True))
                    if s + 4 == cfg.htouch:
                        queue.append(Op(lambda: (a("v_and_b32 v239, 63, v0"), a("v_lshrrev_b32 v238, 3, v239"), a("v_and_b32 v239, 7, v239"),
                                                 a("v_lshlrev_b32 v239, 7, v239"), a("v_lshl_add_u32 v239, v238, 11, v239"))))
                        queue.append(self.htouch(0))
                        if cfg.ht2 < 0:
                            queue.append(self.htouch(1))
                    if s + 4 == cfg.pf_at:
                        queue.append(Op(lambda: (a("s_mov_b64 exec, 0x1ffffff"),
                                                 a(f"global_load_dword a255, v242, {sp(sM)}", tag="pf"),
                                                 a("s_mov_b64 exec, -1")), dma=True, tag="pfc"))
                else:
                    for _ in range(4):
                        if nu < cfg.n1:
                            (held if cfg.hold_c else queue).extend(self.c_dma(nu))
                        nu += 1
            if h == cfg.ht2 and cfg.htouch:
                queue.append(self.htouch(1))
            pace = 5 if cfg.hold_c else cfg.pace0 if h < cfg.pace0_h else cfg.pace if h < cfg.pace_h else cfg.pace_c
            now, k = [], 0
            while queue and k < pace:
                o = queue.pop(0)
                now.append(o)
                k += o.dma
            left = {o.tag for o in queue}
            assert not (h >= 17 and any(t and t.startswith("st") for t in left))
            if now:
                streams.append((now, cfg.dma_phase, min(19.0 / len(now), cfg.maxstep)))
            if h in S:
                ops = S[h]
                streams.append((ops, 0, 19.0 / len(ops)))
            F = 100 + 48 * (h & 1)
            mf = []
            for k in range(10):
                for m in range(2):
                    d = self.acc(m, k >> 1, k & 1)
                    mf.append(f"v_mfma_f32_16x16x32_bf16 {v4(d)}, {v4(F+4*m)}, {v4(F+8+4*k)}, {'0' if h == 0 else v4(d)}")
            self.weave(mf, streams)
        self.cq = self.c_stream(queue + held)
        self.stamp("gemm1")

    def swap_reduce(self, Z, va, o1, o2):
        a = self.a
        for n in range(5):
            a(f"v_permlane32_swap_b32 v{Z+2*n}, v{Z+2*n+1}")
        for n in (4, 0, 1, 2, 3):
            a(f"v_add_f32 v{Z+2*n}, v{Z+2*n}, v{Z+2*n+1}")
            if n == 0:
                a(f"v_mov_b32 v{Z+9}, v{Z+8}")
        a(f"v_permlane16_swap_b32 v{Z+8}, v{Z+9}")
        a(f"v_permlane16_swap_b32 v{Z}, v{Z+2}")
        a(f"v_permlane16_swap_b32 v{Z+4}, v{Z+6}")
        a(f"v_add_f32 v{Z+8}, v{Z+8}, v{Z+9}")
        a(f"v_add_f32 v{Z}, v{Z}, v{Z+2}")
        a(f"v_add_f32 v{Z+4}, v{Z+4}, v{Z+6}")
        a(f"ds_write_b32 v{va+1}, v{Z+8} offset:{o2}", tag="pw")
        a(f"ds_write_b32 v{va}, v{Z}", tag="pw")
        a(f"ds_write_b32 v{va}, v{Z+4} offset:{o1}", tag="pw")

    def scan(self):
        a, cfg = self.a, self.cfg
        L1, L2, WQ, V, MC, T, VP, Q, U, FG = self.L1, self.L2, self.WQ, self.V, self.MC, self.T4, self.VP, self.Q, self.U, self.FG
        E = 180
        Z = 100
        TA, TB = 110, 114
        PL = T + 2
        a.wait(lgkm="t1")
        a.bg(self.c_take(cfg.k1), cfg.p1)
        for n in range(5):
            ur, ui = self.acc(0, n, 0), self.acc(0, n, 1)
            er, ei = ur, ui
            for k in range(1, 4):
                X = TA if k & 1 else TB
                a(f"v_pk_fma_f32 {v2(X)}, {v2(er)}, {v2(L2+2*n)}, {v2(ur+2*k)} op_sel_hi:[1,0,1]")
                a(f"v_pk_fma_f32 {v2(X+2)}, {v2(ei)}, {v2(L2+2*n)}, {v2(ui+2*k)} op_sel_hi:[1,0,1]")
                a(f"v_pk_fma_f32 {v2(X)}, {v2(ei)}, {v2(L2+2*n)}, {v2(X)} op_sel:[0,1,0] op_sel_hi:[1,1,1] neg_lo:[1,0,0] neg_hi:[1,0,0]")
                a(f"v_pk_fma_f32 {v2(X+2)}, {v2(er)}, {v2(L2+2*n)}, {v2(X+2)} op_sel:[0,1,0] op_sel_hi:[1,1,1]")
                er, ei = X, X + 2
            a(f"v_fma_f32 v{E+2*n}, v{L1+2*n}, v{er}, v{er+1}")
            a(f"v_fma_f32 v{E+2*n+1}, v{L1+2*n}, v{ei}, v{ei+1}")
            a(f"v_fma_f32 v{E+2*n}, -v{L1+2*n+1}, v{ei}, v{E+2*n}")
            a(f"v_fma_f32 v{E+2*n+1}, v{L1+2*n+1}, v{er}, v{E+2*n+1}")
            cmul(a, Z + 2 * n, E + 2 * n, WQ + 2 * n)
        a.bg_flush()
        if cfg.ht2 == 20 and cfg.htouch:
            self.htouch(1)()
        self.swap_reduce(Z, 3, 1792, 3584)
        PG = 114
        CF, L8 = L2, WQ
        a(f"v_cmp_gt_u32 vcc, 5, v{T}")
        a(f"v_mov_b32 v{PG+1}, s{sTAG}")
        a(f"v_mov_b32 v{PG+3}, s{sTAG}")
        a(f"s_mov_b64 {sp(sM)}, {sp(sT2)}")
        a.wait(lgkm=0)
        a("s_barrier")
        for k in range(4):
            a(f"ds_read_b64 {v2(120+2*k)}, v7 offset:{128*k}", tag="pr")
        r = self.rec()
        self.tab_rd(r, CF, VP, 3 * 640, "t2")
        self.tab_rd(r, L8, VP, 4 * 640, "t2")
        run(r)
        a(f"s_and_saveexec_b64 {sp(sT2)}, vcc")
        a.wait(lgkm="pr")
        cfma(a, 128, 120, PL, 122)
        cfma(a, 130, 128, PL, 124)
        cfma(a, 128, 130, PL, 126)
        a(f"v_mov_b32 v{PG}, v128")
        a(f"v_mov_b32 v{PG+2}, v129")
        a(f"buffer_store_dwordx4 {v4(PG)}, v6, {srd(SWS)}, s{sPUB} offen sc1", tag="pub")
        a(f"s_mov_b64 exec, -1")
        self.stamp("pub")

        if cfg.ht2 == 21 and cfg.htouch:
            self.htouch(1)()
        if cfg.cpf >= 2:
            run(self.code_prefetch(132, 2))
        run(self.c_take(cfg.k2a))
        a.wait(lgkm="t2")
        a.bg(self.c_take(cfg.k2), cfg.p2)
        for n in range(5):
            for j in range(8):
                ur, ui = self.acc(0, n, 0) + (j & ~1), self.acc(0, n, 1) + (j & ~1)
                o = j & 1
                d = U + 16 * n + 2 * j
                a(f"v_pk_mul_f32 {v2(d)}, {v2(CF+2*n)}, {v2(ur)} op_sel:[0,{o}] op_sel_hi:[1,{o}]")
                a(f"v_pk_fma_f32 {v2(d)}, {v2(CF+2*n)}, {v2(ui)}, {v2(d)} op_sel:[1,{o},0] op_sel_hi:[0,{o},1] neg_lo:[1,0,0]")
        self.stamp("coef")
        A_, P_, C_, MU, L8Q, L32, Y0, Y1 = 20, 30, 40, 50, 60, 70, 80, 90
        SL, G = 180, 40
        r = self.rec()
        self.tab_rd(r, MU, 230, 0, "t3")
        self.tab_rd(r, L32, VP, 7 * 640, "t3")
        for n in range(5):
            r(f"ds_read_b64 {v2(Y0+2*n)}, v1 offset:{896*n}", tag="t3")
        for n in range(5):
            r(f"ds_read_b64 {v2(Y1+2*n)}, v1 offset:{896*n+128}", tag="t3")
        self.tab_rd(r, L8Q, 228, 0, "t3")
        run(r)
        for n in range(5):
            a(f"v_mov_b64 {v2(A_+2*n)}, {v2(E+2*n)}")
        for n in range(5):
            a(f"v_permlane16_swap_b32 v{A_+2*n}, v{E+2*n}")
            a(f"v_permlane16_swap_b32 v{A_+2*n+1}, v{E+2*n+1}")
        for n in range(5):
            cfma(a, P_ + 2 * n, A_ + 2 * n, L8 + 2 * n, E + 2 * n)
        for n in range(5):
            a(f"ds_read_b64 {v2(L8+2*n)}, v1 offset:{896*n+256}", tag="t4")
        for n in range(5):
            a(f"v_mov_b64 {v2(C_+2*n)}, {v2(P_+2*n)}")
        for n in range(5):
            a(f"v_permlane32_swap_b32 v{C_+2*n}, v{P_+2*n}")
            a(f"v_permlane32_swap_b32 v{C_+2*n+1}, v{P_+2*n+1}")
        per = a.bg_pause()
        a("s_mov_b32 exec_hi, 0")
        for n in range(5):
            a(f"v_mov_b64 {v2(C_+2*n)}, 0")
        a("s_mov_b32 exec_lo, 0xffff")
        a("s_mov_b32 exec_hi, 0xffff")
        for n in range(5):
            a(f"v_mov_b64 {v2(A_+2*n)}, 0")
        a("s_mov_b64 exec, -1")
        a.bg_period = per
        a.wait(lgkm="t3")
        for n in range(5):
            cfma(a, P_ + 2 * n, C_ + 2 * n, MU + 2 * n, A_ + 2 * n)
            cfma(a, Y1 + 2 * n, Y0 + 2 * n, L32 + 2 * n, Y1 + 2 * n)
        for k in range(0, 20, 2):
            a(f"v_mov_b64 {v2(G+k)}, 0")
        a.bg_flush()
        a(f"s_mov_b32 s{sSPIN}, {cfg.spin}")

        def g_loads(tag):
            for n in range(5):
                a(f"buffer_load_dwordx4 {v4(G+4*n)}, v17, {srd(SWS)}, s{sGAT} offen offset:{256*n} sc1", tag=tag, counted=False)

        def g_check():
            a(f"v_min3_u32 v{T}, v{G+1}, v{G+3}, v{G+5}")
            a(f"v_max3_u32 v{T+1}, v{G+1}, v{G+3}, v{G+5}")
            for k in (7, 11, 15):
                a(f"v_min3_u32 v{T}, v{T}, v{G+k}, v{G+k+2}")
                a(f"v_max3_u32 v{T+1}, v{T+1}, v{G+k}, v{G+k+2}")
            a(f"v_min_u32 v{T}, v{T}, v{G+19}")
            a(f"v_max_u32 v{T+1}, v{T+1}, v{G+19}")
            a(f"v_cmp_ne_u32 vcc, s{sTAG}, v{T}")
            a(f"v_cmp_ne_u32 {sp(sT2)}, s{sTAG}, v{T+1}")
            a(f"s_or_b64 vcc, vcc, {sp(sT2)}")
        self.stamp("w1done")
        a(f"s_mov_b64 exec, {sp(sM)}")
        a("s_cbranch_execz L_g0")
        g_loads("g1")
        a("L_g0:")
        a("s_mov_b64 exec, -1")
        a.bg(self.c_take(999), cfg.p3)
        r = self.rec()
        self.tab_rd(r, A_, 226, 0, "t5")
        self.tab_rd(r, Y0, 227, 0, "t5")
        run(r)
        a.wait(lgkm="t4")
        for n in range(5):
            cfma(a, L8 + 2 * n, Y1 + 2 * n, L32 + 2 * n, L8 + 2 * n)
        r = self.rec()
        self.tab_rd(r, Y1, 229, 0, "t6")
        run(r)
        for n in range(5):
            cfma(a, P_ + 2 * n, L8 + 2 * n, L8Q + 2 * n, P_ + 2 * n)
            cmul(a, SL + 2 * n, P_ + 2 * n, CF + 2 * n)
        a.wait(lgkm="t5")
        for n in range(5):
            cmul(a, V + 2 * n, A_ + 2 * n, Y0 + 2 * n)
        a.wait(lgkm="t6")
        for n in range(5):
            cmul(a, A_ + 2 * n, L8Q + 2 * n, Y1 + 2 * n)
            cmul(a, L8 + 2 * n, A_ + 2 * n, CF + 2 * n)
        MC = L8
        a.bg_flush()
        if cfg.fast:
            a(f"v_and_b32 v94, 7, v0")
            a(f"v_lshlrev_b32 v94, 7, v94")
            a(f"s_lshl_b32 s{sT0}, s{sTC}, 1")
            a(f"s_add_u32 s{sT0}, s{sT0}, s{sBR}")
            a(f"s_lshl_b32 s{sT0}, s{sT0}, 10")
            a(f"s_add_u32 s{sT0}, s{sT0}, {WS_XCC}")
            a(f"buffer_load_dwordx2 {v2(96)}, v94, {srd(SWS)}, s{sT0} offen sc1", tag="xc")
        self.gate_loads(96)
        self.skip_loads(96)
        for u in range(cfg.n1 - cfg.ndl):
            run(self.c_drain(u))
        a.wait(vm="g1")
        a(f"s_mov_b64 exec, {sp(sM)}")
        a("s_cbranch_execz L_got")
        g_check()
        a("s_cbranch_vccz L_got")
        a("L_poll1:")
        g_loads("g1b")
        a(f"s_sub_u32 s{sSPIN}, s{sSPIN}, 1")
        a("s_waitcnt vmcnt(0)", slow=True)
        g_check()
        a(f"s_cmp_eq_u32 s{sSPIN}, 0")
        a("s_cbranch_scc1 L_got")
        a("s_cbranch_vccnz L_poll1")
        a("L_got:")
        a("s_mov_b64 exec, -1")
        self.stamp("got")
        Z2 = 60
        for n in range(5):
            a(f"v_pk_mul_f32 {v2(Z2+2*n)}, {v2(V+2*n)}, {v2(G+4*n)} op_sel_hi:[1,0]")
            a(f"v_pk_fma_f32 {v2(Z2+2*n)}, {v2(V+2*n)}, {v2(G+4*n+2)}, {v2(Z2+2*n)} op_sel:[1,0,0] op_sel_hi:[0,0,1] neg_lo:[1,0,0]")
        self.swap_reduce(Z2, 14, 1024, 2048)
        for u in range(cfg.n1 - cfg.ndl, cfg.n1):
            run(self.c_drain(u))
        a(f"v_mov_b32 v{T}, 0")
        if cfg.fast:
            a.wait(vm="xc")
            a(f"v_cmp_eq_u32 vcc, s{sLATE}, v96")
            a(f"v_cmp_eq_u32 {sp(sT2)}, s{sTAG}, v97")
            a(f"s_and_b64 vcc, vcc, {sp(sT2)}")
            a(f"s_cmp_eq_u64 vcc, exec")
            a(f"s_cselect_b32 s{sLATE}, {0 if cfg.fast == 2 else 1}, 0")
        a(f"s_cmp_eq_u32 s{sLATE}, 0")
        a.wait(lgkm=0)
        a("s_barrier")
        for n in range(5):
            a(f"ds_read_b128 {v4(20+8*n)}, v16 offset:{512*n}", tag=f"cr{n}")
            a(f"ds_read_b128 {v4(24+8*n)}, v16 offset:{512*n+256}", tag=f"cr{n}")
        if cfg.split or cfg.fast:
            a("s_cbranch_scc1 L_late")
        pol = ";POL" if cfg.fast else "sc1"
        k4, k5 = [], self.c_stream(sum((list(self.c_dma(u)) for u in range(cfg.n1, 25)), []))

        def stores(n):
            w0 = 20 + 8 * n
            for part, so in enumerate((sHRE, sHIM)):
                a.wait(lgkm=f"tp{n}{part}")
                a(f"buffer_store_dwordx4 {v4(w0+4*part)}, v{self.HS}, {srd(SWS)}, s{so} offen {pol}", tag="hst")
            if n < 4:
                a(f"s_add_u32 s{sHRE}, s{sHRE}, s{(sD0, sD1)[n & 1]}")
                a(f"s_add_u32 s{sHIM}, s{sHIM}, s{(sD0, sD1)[n & 1]}")

        def turn(n, part):
            d = 20 + 8 * n + 4 * part
            off = SLOT + ((2 * n + part) % 8) * 1024
            a(f"ds_write_b128 v5, {v4(d)} offset:{off}", tag="tw")
            for rho in range(2):
                a(f"ds_read_b64_tr_b16 {v2(d+2*rho)}, v{self.TP+rho} offset:{off}", tag=f"tp{n}{part}")

        def pass2(late):
            a.bg(list(k4), cfg.p4)
            for n in range(5):
                w0 = 20 + 8 * n
                a.wait(lgkm=f"cr{n}")
                a(f"v_pk_add_f32 {v2(w0)}, {v2(w0)}, {v2(w0+2)}")
                a(f"v_pk_add_f32 {v2(w0+4)}, {v2(w0+4)}, {v2(w0+6)}")
                a(f"v_pk_add_f32 {v2(w0)}, {v2(w0)}, {v2(w0+4)}")
                cfma(a, SL + 2 * n, w0, MC + 2 * n, SL + 2 * n)
                prev = SL + 2 * n
                for j in range(8):
                    d = U + 16 * n + 2 * j
                    cfma(a, d, prev, L1 + 2 * n, d)
                    prev = d
                    if j == cfg.st_j and n > 0 and not late:
                        stores(n - 1)
                for k in range(4):
                    d = U + 16 * n + 4 * k
                    a(f"v_cvt_pk_bf16_f32 v{w0+k}, v{d}, v{d+2}")
                turn(n, 0)
                for k in range(4):
                    d = U + 16 * n + 4 * k
                    a(f"v_cvt_pk_bf16_f32 v{w0+4+k}, -v{d+1}, -v{d+3}")
                turn(n, 1)
            if not late:
                stores(4)
            a.bg_flush()
            def stamp(name):
                if not late:
                    self.stamp(name)
                elif cfg.prof and name in self.stamp_names:
                    a("s_memtime %s" % sp(STAMP_REGS[self.stamp_names.index(name)]))
            stamp("hst")
            if late or not cfg.c_after:
                a.bg(list(k5), cfg.p5)
            self.gate(90)
            self.gemm2_setup()
            self.skip_terms()
            a.bg_flush()
            stamp("pre")
            if late:
                if cfg.split == 2:
                    a("s_barrier")
                stamp("bar")
                for n in range(5):
                    stores(n)
            stamp("lst")
            a.wait(vm="hst")
            stamp("ack")
            a(f"s_mov_b64 exec, {0xff if cfg.full else 1}")
            a(f"buffer_store_dwordx4 {v4(FG)}, v{self.VH}, {srd(SWS)}, s{sFLG} offen {pol}", tag="flag")
            a("s_mov_b64 exec, -1")
            if cfg.split == 2 and not late:
                a("s_barrier")
                stamp("bar")
            if cfg.c_after and not late:
                run(k5)

        first = len(a.ins)
        pass2(False)
        if cfg.fast:
            self.tail = ["L_late:"] + [x.text.replace(";POL", "sc1") for x in a.ins[first:]] + ["s_branch L_join"]
            a("L_join:")
        elif cfg.split:
            main = a.ins[first:]
            del a.ins[first:]
            pass2(True)
            self.tail = ["L_late:"] + [x.text for x in a.ins[first:]] + ["s_branch L_join"]
            a.ins[first:] = main
            a("L_join:")
        self.stamp("flag")

    ACCA, ACCB = 20, 100
    HF = 180
    VT = 212
    VH = 216
    GG = 218
    XO, DO, OO, EW, ER, EW2, PO, BP, PO2 = 1, 2, 3, 4, 6, 7, 8, 9, 217
    SPK = 222
    PV = 242

    def gemm2_setup(self):
        a = self.a
        VT, VH = self.VT, self.VH
        T0, T1, T2, T3 = 14, 15, 16, 17
        a(f"v_and_b32 v{VH}, 63, v0")
        a(f"v_lshlrev_b32 v{VH}, 4, v{VH}")
        a(f"v_bfe_u32 v{T0}, v0, 2, 4")
        a(f"v_and_b32 v{T1}, 3, v0")
        a(f"v_lshlrev_b32 v{self.PO2}, 7, v{T0}")
        a(f"v_bfe_u32 v{T2}, v0, 4, 2")
        a(f"v_bfe_u32 v{T3}, v0, 3, 1")
        a(f"v_lshl_add_u32 v{T2}, v{T2}, 2, v{T3}")
        a(f"s_xor_b32 s{sT0}, s{sBR}, 1")
        a(f"s_lshl_b32 s{sT0}, s{sT0}, 8")
        a(f"v_lshl_add_u32 v{self.PO}, v{T2}, 7, s{sT0}")
        a(f"v_lshlrev_b32 v{self.DO}, 3, v{T1}")
        a(f"v_add_u32 v{self.DO}, {LDK}, v{self.DO}")
        a(f"v_lshlrev_b32 v{self.OO}, 1, v231")
        a(f"v_bfe_u32 v{T2}, v{T0}, 1, 2")
        a(f"v_xor_b32 v{T2}, v{T2}, v{T1}")
        a(f"v_lshlrev_b32 v{T2}, 4, v{T2}")
        a(f"v_mul_u32_u24 v{T3}, 320, v{T0}")
        a(f"s_mul_i32 s{sT1}, s{sW}, {SLOT}")
        a(f"s_add_u32 s{sT1}, s{sT1}, 4096")
        a(f"v_add3_u32 v{self.ER}, v{T2}, v{T3}, s{sT1}")
        a(f"s_and_b32 s{sT1}, s{sW}, 1")
        a(f"s_lshl_b32 s{sT1}, s{sT1}, 7")
        a(f"v_lshrrev_b32 v{T2}, 1, v{T0}")
        a(f"v_lshl_add_u32 v{self.BP}, v{T2}, 4, s{sT1}")
        a(f"v_and_b32 v{T0}, 15, v0")
        a(f"v_bfe_u32 v{T1}, v0, 4, 2")
        a(f"v_bfe_u32 v{T2}, v{T0}, 1, 2")
        a(f"v_xor_b32 v{T2}, v{T2}, v{T1}")
        a(f"v_lshlrev_b32 v{T2}, 4, v{T2}")
        a(f"v_mul_u32_u24 v{T3}, 320, v{T0}")
        a(f"s_add_u32 s{sT1}, s{sBW}, 4096")
        a(f"v_add3_u32 v{self.EW}, v{T2}, v{T3}, s{sT1}")
        a(f"v_add_u32 v{self.EW2}, {2*SLOT}, v{self.EW}")

    def h_loads(self, s):
        r = self.rec()
        base = sHA if s < 10 else sHB
        f, F = self.h_buf(s)
        if s in (0, 10):
            r(f"s_add_u32 s{sK}, s{base}, s{sROT}")
            r(f"s_add_u32 s{sEND}, s{base}, 40960")
        for b in range(4):
            r(f"buffer_load_dwordx4 {v4(F+4*b, f)}, v{self.VH}, {srd(SWS)}, s{sK} offen offset:{1024*b} {self.cfg.hpol}", tag=f"h{s}")
        if s not in (9, 19):
            r(f"s_add_u32 s{sK}, s{sK}, 4096")
            if s & 1 and self.cfg.rot:
                r.group(f"s_cmp_eq_u32 s{sK}, s{sEND}", f"s_cselect_b32 s{sK}, s{base}, s{sK}")
        return r

    def h_buf(self, s):
        return (("v", self.HF), ("v", self.HF + 16), ("a", 200), ("a", 216), ("a", 232))[s % 5]

    def part_writes(self, base):
        r = self.rec()
        for nt in range(5):
            for mt in range(4):
                r(f"ds_write_b128 v{self.EW2 if mt >> 1 else self.EW}, {v4(base + 16*nt + 4*mt)} offset:{(mt & 1)*SLOT + 64*nt}", tag="ew")
        return r

    def part_reads(self, base, tag):
        r = self.rec()
        for i in range(5):
            for wp in range(4):
                r(f"ds_read_b128 {v4(base+16*i+4*wp)}, v{self.ER} offset:{wp*PIECE + 64*i}", tag=f"{tag}{i}")
        return r

    def gemm2(self):
        a, cfg = self.a, self.cfg
        GG, PV, SPK, T = self.GG, self.PV, self.SPK, self.T4
        A, B = self.ACCA, self.ACCB
        if cfg.cpf >= 3:
            run(self.code_prefetch(140, 3))
        a(f"s_mov_b32 s{sSPIN}, {cfg.spin}")

        def p_load(tag, po=self.PO, counted=True):
            a(f"buffer_load_dwordx4 {v4(PV)}, v{po}, {srd(SWS)}, s{sPOL} offen sc1", tag=tag, counted=counted)

        def p_check():
            a(f"v_cmp_ne_u32 vcc, s{sTAG}, v{PV+1}")
            a(f"v_cmp_ne_u32 {sp(sT2)}, s{sTAG}, v{PV+3}")
            a(f"s_or_b64 vcc, vcc, {sp(sT2)}")
        self.stamp("w3done")
        po1 = self.PO if cfg.split else self.PO2
        p_load("g2", po1)
        a.wait(vm=0)
        p_check()
        a("s_cbranch_vccz L_got2")
        a("L_poll2:")
        if cfg.nap:
            a(f"s_sleep {cfg.nap}")
        p_load("g2b", po1)
        a(f"s_sub_u32 s{sSPIN}, s{sSPIN}, 1")
        a.wait(vm=0)
        p_check()
        a(f"s_cmp_eq_u32 s{sSPIN}, 0")
        a("s_cbranch_scc1 L_got2")
        a("s_cbranch_vccnz L_poll2")
        a("L_got2:")
        self.stamp("got2")
        for s in range(4):
            run(self.h_loads(s))
        a(f"s_mul_i32 s{sT0}, s{sXS}, 5120")
        a(f"s_add_u32 s{sT0}, s{sT0}, {WS_XCH}")
        a(f"s_mul_i32 s{sT1}, s{sXR}, 5120")
        a(f"s_add_u32 s{sT1}, s{sT1}, {WS_XCH}")
        a(f"s_lshl_b32 s{sXS}, s{sXS}, 7")
        a(f"s_add_u32 s{sXS}, s{sXS}, {WS_XF}")
        a(f"s_lshl_b32 s{sXR}, s{sXR}, 7")
        a(f"s_add_u32 s{sXR}, s{sXR}, {WS_XF}")
        a(f"s_mov_b32 s{sPUB}, s{sT0}")
        a(f"s_mov_b32 s{sGAT}, s{sT1}")
        a(f"s_add_u32 s{sHRE}, s{sT0}, 4096")
        a(f"s_add_u32 s{sHIM}, s{sT1}, 4096")
        a(f"s_mov_b32 s{sSPIN}, {cfg.spin}")
        a.wait(vm="h0", lgkm=0)
        self.stamp("h0")
        rb = self.rec()
        rb(f"ds_bpermute_b32 v{T}, v{self.BP}, v{PV}", tag="bp")
        rb(f"ds_bpermute_b32 v{T+1}, v{self.BP}, v{PV+2}", tag="bp")
        r0 = self.rec()
        r0.wait(lgkm="bp")
        r0(f"v_and_b32 v{T+2}, 4, v0")
        r0(f"v_cmp_ne_u32 vcc, 0, v{T+2}")
        r0(f"v_cndmask_b32 v{GG}, v{T}, v{T+1}, vcc", strict=True)
        r0(f"v_sub_f32 v{GG+1}, 1.0, v{GG}")
        r0(f"v_cvt_pk_bf16_f32 v{GG+1}, v{GG+1}, v{GG+1}")
        r0(f"v_lshlrev_b32 v{GG+1}, 16, v{GG+1}")
        r0.group(f"s_cmp_eq_u32 s{sBR}, 1", "s_cselect_b64 vcc, -1, 0")
        r0(f"v_cndmask_b32 v{GG+2}, v{GG}, v{GG+1}, vcc", strict=True)
        r0(f"v_cndmask_b32 v{GG+3}, v{GG+1}, v{GG}, vcc")
        r0(f"v_mov_b32 v{T+2}, s{sTAG}")
        r0(f"v_mov_b32 v{T+3}, 0")
        rs = self.rec()
        for i in range(5):
            b = A + 16 * i
            if cfg.pks:
                for e in (0, 2):
                    rs(f"v_pk_add_f32 {v2(b+e)}, {v2(b+e)}, {v2(b+4+e)}")
                    rs(f"v_pk_add_f32 {v2(b+8+e)}, {v2(b+8+e)}, {v2(b+12+e)}")
                for e in (0, 2):
                    rs(f"v_pk_add_f32 {v2(b+e)}, {v2(b+e)}, {v2(b+8+e)}")
            else:
                for e in range(4):
                    rs(f"v_add_f32 v{b+e}, v{b+e}, v{b+4+e}")
                    rs(f"v_add_f32 v{b+8+e}, v{b+8+e}, v{b+12+e}")
                for e in range(4):
                    rs(f"v_add_f32 v{b+e}, v{b+e}, v{b+8+e}")
            so, off = (sPUB, 1024 * i) if i < 4 else (sHRE, 0)
            rs(f"buffer_store_dwordx4 {v4(b)}, v{self.VH}, {srd(SWS)}, s{so} offen offset:{off} sc1", tag="xs")
        rk = self.rec()
        for i in range(5):
            sk, t = A + 16 * i + 4, A + 16 * i + 8
            for b in range(2):
                s0 = SPK + 4 * i + 2 * b
                rk(f"v_lshlrev_b32 v{t}, 16, v{s0}")
                rk(f"v_and_b32 v{t+1}, 0xffff0000, v{s0}")
                rk(f"v_lshlrev_b32 v{t+2}, 16, v{s0+1}")
                rk(f"v_and_b32 v{t+3}, 0xffff0000, v{s0+1}")
                for e in range(4):
                    rk(f"v_mul_f32 v{sk+e}, v{GG}, v{t+e}" if b == 0 else f"v_fmac_f32 v{sk+e}, v{GG+1}, v{t+e}")
        wa = self.part_writes(A)
        wb = self.part_writes(B)
        b1 = cfg.b1

        def mfmas(s, nt):
            kk = s % 10
            base = A if s < 10 else B
            f, F = self.h_buf(s)
            cr = 8 * (5 * (kk >> 1) + nt) + 4 * (kk & 1)
            return [f"v_mfma_f32_16x16x32_bf16 {v4(base+16*nt+4*mt)}, {v4(cr, 'a')}, {v4(F+4*mt, f)}, "
                    f"{'0' if kk == 0 else v4(base+16*nt+4*mt)}" for mt in range(4)]

        def xflag():
            a.wait(vm="xs")
            a(f"s_mov_b64 exec, {0xff if cfg.full else 1}")
            a(f"buffer_store_dwordx4 {v4(self.FG)}, v{self.VH}, {srd(SWS)}, s{sXS} offen sc1", tag="xf")
            a("s_mov_b64 exec, -1")

        for s in (0, 1, 2, 3, 4, 5, 6, 7, 10, 11, 12, 13, 14, 15, 16, 17):
            streams = []
            if s == b1:
                a.wait(vm=f"h{s}", lgkm=0)
                a("s_barrier")
            elif s == b1 + 1 or s == 3:
                a.wait(vm=f"h{s}", lgkm=0)
            else:
                a.wait(vm=f"h{s}")
            if s == b1 + 3:
                a("s_barrier")
            if s == 10:
                self.stamp("passA")
            elif s > 0:
                self.stamp(f"s{s}")
            if s == cfg.tb_at:
                rt = self.rec()
                rt(f"s_and_b32 s{sT0}, s{sCG}, 7")
                rt(f"s_mul_i32 s{sT0}, s{sT0}, 5120")
                rt(f"s_add_u32 s{sT0}, s{sT0}, s{sHB}")
                rt(f"v_lshlrev_b32 v{self.PO}, 3, v{self.VH}")
                rt.append(Op(lambda: (a("s_mov_b32 exec_hi, 0xff"),
                                      a(f"buffer_load_dword a247, v{self.PO}, {srd(SWS)}, s{sT0} offen {cfg.hpol}", tag="pf"),
                                      a("s_mov_b64 exec, -1"))))
                streams.append((rt, 9, 2))
            if s == cfg.p2_at and cfg.split:
                p_load("g3", self.PO2)
            if s == 6 and cfg.split:
                a.wait(vm="g3")
                p_check()
                a("s_cbranch_vccz L_got4")
                a("L_poll4:")
                p_load("g3b", self.PO2, False)
                a(f"s_sub_u32 s{sSPIN}, s{sSPIN}, 1")
                a("s_waitcnt vmcnt(0)", slow=True)
                p_check()
                a(f"s_cmp_eq_u32 s{sSPIN}, 0")
                a("s_cbranch_scc1 L_got4")
                a("s_cbranch_vccnz L_poll4")
                a("L_got4:")
                a(f"s_mov_b32 s{sSPIN}, {cfg.spin}")
            if s == cfg.xf_at:
                xflag()
            if s % 10 != 7:
                if s < 3:
                    if s == 0:
                        drains = self.rec()
                        for u in range(cfg.n1, 25):
                            drains += self.c_drain(u)[1:]
                        assert 2 * (cfg.n1 // 5) >= 3
                    k = -(-len(drains) // (3 - s))
                    now, drains = drains[:k], drains[k:]
                    streams.append((now, 2, 17.0 / len(now)))
                if s + 4 < 20:
                    streams.append((self.h_loads(s + 4), cfg.hd0, cfg.hds))
                if s == 6:
                    streams.append((rb, 10, 1))
                if 10 <= s < b1 or (s == 10 and wa):
                    streams.append((wa, 0, 3))
                    wa = []
                if s == b1:
                    assert not wa
                    streams.append((self.part_reads(A, "ra"), 0, 1))
                if s in (b1 + 1, b1 + 2):
                    half = len(rs) * 3 // 5 if s == b1 + 1 else len(rs)
                    now, rs = rs[:half], rs[half:]
                    streams.append((now, 0, 19.0 / len(now)))
                if b1 + 3 <= s and cfg.rk_in:
                    now, rk = rk[:cfg.rk_in], rk[cfg.rk_in:]
                    if now:
                        streams.append((now, 8, 12.0 / len(now)))
                self.weave(sum((mfmas(s, nt) for nt in range(5)), []), streams)
                continue
            order = [(0, 0), (1, 0), (2, 0), (0, 1), (1, 1), (2, 1), (0, 2), (1, 2), (2, 2),
                     (3, 0), (3, 1), (3, 2), (4, 0), (4, 1), (4, 2)]
            mf = sum((mfmas(s + d, nt) for nt, d in order), [])
            pins = {11: lambda s=s: a.wait(vm=f"h{s+1}"), 23: lambda s=s: a.wait(vm=f"h{s+2}")}
            w = wa if s == 7 else wb
            nin = cfg.nwin
            streams.append((w[:12], 31, cfg.wstep))
            streams.append((w[12:nin], max(51, 31 + 12 * cfg.wstep), 2))
            if s == 7:
                wa = w[nin:]
                streams.append((self.h_loads(11), cfg.hd0, cfg.hds))
                h12, h13 = self.h_loads(12), self.h_loads(13)
                for g in range(4):
                    pins[51 + g] = h12[g]
                    pins[55 + g] = (lambda g=g: (h12[4](), h13[0]())) if g == 0 else h13[g]
                last = h13[4:]
                streams.append((r0, 19, 1))
                pins[59] = lambda: (run(last), run(wa if b1 == 10 else []))
            else:
                wb = w[nin:]
                r3 = self.rec()
                r3(f"buffer_load_dword v{PV}, v{T+3}, {srd(SWS)}, s{sXR} offen offset:4 sc1", tag="xp")
                streams.append((r3, cfg.xp_gap, 1))
                if cfg.rk_in:
                    now, rk = rk[:cfg.rk_in], rk[cfg.rk_in:]
                    if now:
                        streams.append((now, 18, 12.0 / len(now)))
            if s == 7 and cfg.prof:
                for g in (9, 11, 23, 30, 39, 41, 50, 58):
                    old = pins.get(g, lambda: None)
                    pins[g] = lambda g=g, old=old: (old(), self.stamp(f"s{700+g}"))
            self.weave(mf, streams, pins)
            if s == 7 and b1 == 10:
                wa = []
        assert not rs
        self.stamp("gemm2")

        def recv():
            for i in range(5):
                so, off = (sGAT, 1024 * i) if i < 4 else (sHIM, 0)
                a(f"buffer_load_dwordx4 {v4(A+16*i)}, v{self.VH}, {srd(SWS)}, s{so} offen offset:{off} sc1", tag=f"xr{i}")
        per = -(-len(rk) // max(len(wb), 1))
        for w in wb:
            w()
            now, rk = rk[:per], rk[per:]
            run(now)
        run(rk)
        a.wait(vm="xp")
        a(f"v_cmp_ne_u32 vcc, s{sTAG}, v{PV}")
        a("s_cbranch_vccz L_got3")
        a("L_poll3:")
        a(f"buffer_load_dword v{PV}, v{T+3}, {srd(SWS)}, s{sXR} offen offset:4 sc1", tag="xpb")
        a(f"s_sub_u32 s{sSPIN}, s{sSPIN}, 1")
        a.wait(vm=0)
        a(f"v_cmp_ne_u32 vcc, s{sTAG}, v{PV}")
        a(f"s_cmp_eq_u32 s{sSPIN}, 0")
        a("s_cbranch_scc1 L_got3")
        a("s_cbranch_vccnz L_poll3")
        a("L_got3:")
        recv()
        self.stamp("got3")
        a.wait(lgkm=0)
        a("s_barrier")
        run(self.part_reads(B, "rb"))
        for i in range(5):
            b, rv, sk = B + 16 * i, A + 16 * i, A + 16 * i + 4
            a.wait(lgkm=f"rb{i}")
            for hf in range(2):
                a(f"v_pk_add_f32 {v2(b+2*hf)}, {v2(b+2*hf)}, {v2(b+4+2*hf)}")
                a(f"v_pk_add_f32 {v2(b+8+2*hf)}, {v2(b+8+2*hf)}, {v2(b+12+2*hf)}")
            for hf in range(2):
                a(f"v_pk_add_f32 {v2(b+2*hf)}, {v2(b+2*hf)}, {v2(b+8+2*hf)}")
            for hf in range(2):
                a(f"v_pk_fma_f32 {v2(sk+2*hf)}, {v2(b+2*hf)}, {v2(GG+2)}, {v2(sk+2*hf)} op_sel_hi:[1,0,1]")
        for i in range(5):
            rv, sk = A + 16 * i, A + 16 * i + 4
            a.wait(vm=f"xr{i}")
            for hf in range(2):
                a(f"v_pk_fma_f32 {v2(sk+2*hf)}, {v2(rv+2*hf)}, {v2(GG+2)}, {v2(sk+2*hf)} op_sel:[0,1,0] op_sel_hi:[1,1,1]")
            a(f"buffer_store_dwordx4 {v4(sk)}, v{self.OO}, {srd(SOUT)}, 0 offen offset:{64*i} {cfg.opol}", tag="out")
        self.stamp("outst")
        a(f"s_xor_b32 s{sT0}, s{sTC}, 15")
        a(f"s_or_b32 s{sT0}, s{sT0}, s{sCG}")
        a(f"s_or_b32 s{sT0}, s{sT0}, s{sW}")
        a("s_cbranch_scc1 L_noep")
        a("s_mov_b64 exec, 1")
        a(f"buffer_store_dword v{T+2}, v{T+3}, {srd(SWS)}, 0 offen offset:{WS_EPOCH}", counted=False)
        a("s_mov_b64 exec, -1")
        a("L_noep:")

    def finish(self):
        a = self.a
        if self.cfg.prof:
            a.wait(vm=0)
            self.stamp("end")
            self.stamp("rt1")
            a("s_waitcnt lgkmcnt(0)")
            a(f"s_lshl_b32 s{sT0}, s2, 2")
            a(f"s_add_u32 s{sT0}, s{sT0}, s{sW}")
            a(f"s_lshl_b32 s{sT0}, s{sT0}, 7")
            a(f"s_add_u32 s{sT0}, s{sT0}, {WS_PROF}")
            a("v_mov_b32 v6, 0")
            a("s_mov_b64 exec, 1")
            for k in range(self.nstamp):
                a(f"v_mov_b32 v7, s{STAMP_REGS[k]}")
                a(f"buffer_store_dword v7, v6, {srd(SWS)}, s{sT0} offen offset:{4*k}")
            a(f"s_getreg_b32 s{sT1}, hwreg(HW_REG_XCC_ID)")
            a(f"v_mov_b32 v7, s{sT1}")
            a(f"buffer_store_dword v7, v6, {srd(SWS)}, s{sT0} offen offset:124")
            a(f"v_mov_b32 v7, s{sLATE}")
            a(f"buffer_store_dword v7, v6, {srd(SWS)}, s{sT0} offen offset:120")
        a("L_end:")
        a("s_endpgm")

    def build(self):
        self.prologue()
        self.gemm1()
        self.scan()
        self.gemm2()
        self.finish()
        errs = self.a.check_waits()
        for e in errs:
            print("WAIT ERROR:", e, file=sys.stderr)
        assert not errs
        for t in self.tail:
            self.a(t)
        self.a("L_last:")
        self.a("s_endpgm")
        n = self.a.fix_hazards(verbose=self.cfg.verbose)
        if self.cfg.align:
            print("aligned:", self.a.align8(self.cfg.align), file=sys.stderr)
        print("wait states inserted:", n, " instructions:", len(self.a.ins), file=sys.stderr)
        ref = open(os.path.join(os.path.dirname(os.path.abspath(__file__)), "..", "cdna_kernels", NAME + ".s.ref")).read()
        head = []
        for line in ref.split("\n"):
            if line.startswith("; @launch"):
                break
            head.append(line)
        txt = "\n".join(head) + f"\n; @launch grid=(256,1,1) block=(256,1,1) lds={LDS_BYTES}\n"
        txt += f""".amdgcn_target "amdgcn-amd-amdhsa--gfx950"
.text
.globl {NAME}_kernel
.p2align 8
.type {NAME}_kernel,@function
{NAME}_kernel:
"""
        txt += self.a.text().replace(" ;POL", "")
        txt += f""".section .rodata,"a"
.p2align 6
.amdhsa_kernel {NAME}_kernel
  .amdhsa_next_free_vgpr 512
  .amdhsa_next_free_sgpr 102
  .amdhsa_accum_offset 256
  .amdhsa_group_segment_fixed_size 0
  .amdhsa_kernarg_size 176
  .amdhsa_user_sgpr_count 2
  .amdhsa_user_sgpr_kernarg_segment_ptr 1
  .amdhsa_system_sgpr_workgroup_id_x 1
  .amdhsa_float_denorm_mode_32 3
.end_amdhsa_kernel
"""
        return txt


def main():
    p = argparse.ArgumentParser()
    p.add_argument("-o", default=None)
    for name, default in dict(prof=0, pf=2, pf_at=99, pace0=5, pace0_h=8, pace=5, pace_c=0, pace_h=16, cap=2, k1=6, p1=14, k2a=1, k2=14, p2=14,
                              k3=10, p3=10, k4=0, p4=22, ew_lag=5, xf_at=16, split=0, tb_at=-1, fast=0, n1=14, ndl=3, st_j=2, c_after=1, align=100, remap=0, pfc0=0, htouch=0, ht2=-1, hold_c=0, order=1, touch=9, full=1, p5=12, dr_early=0, rk_in=16, pks=0, b1=10, nwin=16, xp_gap=40, hd0=1, hds=3, cpf=1, abl=0, nap=0, rot=1, p2_at=4, spin=20000, verbose=0).items():
        p.add_argument("--" + name, type=int, default=default)
    p.add_argument("--maxstep", type=float, default=20)
    p.add_argument("--wstep", type=float, default=2)
    p.add_argument("--dma_phase", type=float, default=1)
    p.add_argument("--hpol", default="sc1")
    p.add_argument("--opol", default="")
    p.add_argument("--only", default="")
    p.add_argument("--nostamp", default="karg,dma0,dma1,coef,w3done,gh2,gh4,gh8,gh12,gh16,pre,bar,lst,ack,got3")
    cfg = p.parse_args()
    g = Gen(cfg)
    txt = g.build()
    out = cfg.o or os.path.join(os.path.dirname(os.path.abspath(__file__)), "..", "cdna_kernels", NAME + ".s")
    open(out, "w").write(txt)
    if cfg.prof:
        open(out + ".stamps", "w").write("\n".join(g.stamp_names))


if __name__ == "__main__":
    main()
```
